```python
import torch

def _softmax(x, axis=-1):
    return torch.softmax(x, dim=axis)
def _gelu(x):
    return torch.nn.functional.gelu(x, approximate="tanh")
def _silu(x):
    return torch.nn.functional.silu(x)
def _sigmoid(x):
    return torch.sigmoid(x)
def _layernorm(x, axis=-1, eps=1e-5):
    m = x.mean(dim=axis, keepdim=True)
    v = x.var(dim=axis, keepdim=True, unbiased=False)
    return (x - m) / torch.sqrt(v + eps)
def _scatter_add(tgt, idx, src, axis=0):
    return tgt.clone().index_add_(axis, idx, src)
def _segment_sum(src, seg, n):
    out = torch.zeros((n,) + src.shape[1:], dtype=src.dtype)
    return out.index_add_(0, seg, src)
def _pad(x, pw):
    flat = tuple(v for pair in reversed(pw) for v in pair)
    return torch.nn.functional.pad(x, flat)

kernel_name = 'gated_mix__linear_attn_block__glu_gated_swiglu__prompt'

def setup_inputs():

    _w = (lambda a: (lambda t: t.to(torch.bfloat16) if t.is_floating_point() else t)(torch.as_tensor(a)))
    def _A_setup():
        B, S, D = 1, 2048, 512
        return {
            "x": _w((lambda *s: torch.randn(*s, dtype=torch.bfloat16) * 0.05)(B, S, D)),
            "wqkv": _w((lambda *s: torch.randn(*s, dtype=torch.bfloat16) * 0.8)(D, 3 * D)),
            "wo": _w((lambda *s: torch.randn(*s, dtype=torch.bfloat16) * 0.05)(D, D)),
        }
    _A_in = _A_setup()

    def _B_setup():
        B, S, D, F = 1, 2048, 512, 1792
        return {
            "x": _w((lambda *s: torch.randn(*s, dtype=torch.bfloat16) * 0.05)(B, S, D)),
            "w1": _w((lambda *s: torch.randn(*s, dtype=torch.bfloat16) * 1.6)(D, F) * (2.0 / D) ** 0.5),
            "w3": _w((lambda *s: torch.randn(*s, dtype=torch.bfloat16) * 1.6)(D, F) * (2.0 / D) ** 0.5),
            "w2": _w((lambda *s: torch.randn(*s, dtype=torch.bfloat16) * 1.6)(F, D) * (2.0 / F) ** 0.5),
        }
    _B_in = _B_setup()

    return {
        "A_x": _A_in["x"],
        "A_wqkv": _A_in["wqkv"],
        "A_wo": _A_in["wo"],
        "B_x": _B_in["x"],
        "B_w1": _B_in["w1"],
        "B_w3": _B_in["w3"],
        "B_w2": _B_in["w2"],
        "gate_w": _w((lambda *s: torch.randn(*s, dtype=torch.bfloat16) * 0.05)(512) * 16.0),
    }

def reference(A_x, A_wqkv, A_wo, B_x, B_w1, B_w3, B_w2, gate_w):
    def _A_ref(x, wqkv, wo):
        B, S, D = x.shape
        H = 32; Dh = D // H
        qkv = (lambda x, *d: x.permute(*d))((x @ wqkv).reshape(B, S, 3, H, Dh), 2, 0, 3, 1, 4)
        q, k, v = qkv[0], qkv[1], qkv[2]
        phi = lambda t: torch.where(t > 0, t + 1, torch.exp(t)) + 1e-6
        pq, pk = phi(q), phi(k)
        kv = torch.einsum("bhsd,bhse->bhde", pk, v)
        z = torch.einsum("bhsd->bhd", pk)
        num = torch.einsum("bhqd,bhde->bhqe", pq, kv)
        den = torch.einsum("bhqd,bhd->bhq", pq, z)[..., None] + 1e-6
        o = num / den
        return (lambda x, *d: x.permute(*d))(o, 0, 2, 1, 3).reshape(B, S, D) @ wo

    def _B_ref(x, w1, w3, w2):
        gate = torch.einsum("bsd,df->bsf", x, w1)
        up = torch.einsum("bsd,df->bsf", x, w3)
        h = _silu(gate) * up
        out = torch.einsum("bsf,fd->bsd", h, w2)
        return out

    x = A_x
    g = _sigmoid((x * gate_w).sum(-1, keepdims=True))
    a = _A_ref(x, A_wqkv, A_wo)
    b = _B_ref(x, B_w1, B_w3, B_w2)
    return g * a + (1 - g) * b
```

```python
import sys

NAME = "gated_mix__linear_attn_block__glu_gated_swiglu__prompt"

AF_OFF = 0
AF_TT = 144 * 1024
AF_SIZE = 64 * AF_TT
KVT_OFF = AF_SIZE
KVT_HEAD = 1152
KVT_SIZE = 32 * KVT_HEAD
G_OFF = KVT_OFF + KVT_SIZE
G_SIZE = 2048 * 8
WS_USED = G_OFF + G_SIZE

LOG2E = 0x3FB8AA3B
NLOG2E = 0xBFB8AA3B
EPS = 0x358637BD


class Asm:
    def __init__(self):
        self.L = []
        self.n = 0
        self.vm = []
        self.vm_done = 0
        self.ds = []
        self.ds_done = 0
        self.mfma_w = {}

    def raw(self, s):
        self.L.append(s)

    def i(self, s):
        self.L.append("    " + s)
        self.n += 1

    def label(self, s):
        self.L.append(s + ":")

    def vmem(self, tag, s):
        self.i(s)
        self.vm.append(tag)

    def dsop(self, tag, s):
        self.i(s)
        self.ds.append(tag)

    def _need(self, lst, tags):
        last = -1
        for k, t in enumerate(lst):
            if t in tags:
                last = k
        return last

    def wait(self, vm=(), ds=(), vm_all=False, ds_all=False):
        parts = []
        if vm_all:
            lv = len(self.vm) - 1
        else:
            lv = self._need(self.vm, set(vm)) if vm else -1
        if lv >= self.vm_done:
            n = len(self.vm) - 1 - lv
            assert n <= 63, n
            parts.append(f"vmcnt({n})")
            self.vm_done = lv + 1
        if ds_all:
            ld = len(self.ds) - 1
        else:
            ld = self._need(self.ds, set(ds)) if ds else -1
        if ld >= self.ds_done:
            n = len(self.ds) - 1 - ld
            if n > 15:
                n = 15
                ld = len(self.ds) - 1 - 15
            parts.append(f"lgkmcnt({n})")
            self.ds_done = ld + 1
        if parts:
            self.i("s_waitcnt " + " ".join(parts))

    def nop(self, k):
        while k > 0:
            c = min(k, 16)
            self.L.append(f"    s_nop {c-1}")
            self.n += c
            k -= c

    def mfma(self, d, a, b, c):
        cs = "0" if c is None else f"v[{c}:{c+15}]"
        self.i(f"v_mfma_f32_32x32x16_bf16 v[{d}:{d+15}], {a}, {b}, {cs}")
        self.mfma_w[d] = self.n

    def need_acc(self, d, dist=13):
        if d in self.mfma_w:
            gap = self.n - self.mfma_w[d]
            if gap < dist:
                self.nop(dist - gap)

    def text(self):
        return "\n".join(self.L)


def srd(a, s, ptr, size):
    a.i(f"s_mov_b32 s{s}, s{ptr}")
    a.i(f"s_and_b32 s{s+1}, s{ptr+1}, 0xffff")
    a.i(f"s_mov_b32 s{s+2}, {size}")
    a.i(f"s_mov_b32 s{s+3}, 0x20000")


class K1Cfg:
    N1 = {"mlp": 6, "q": 6, "kv": 4}
    NT = {"mlp": 11, "q": 11, "kv": 8}
    store_aux = "sc1"
    fill_per_gap = 20


S_X, S_A, S_B, S_WS, S_GW, S_DBG, S_W2, S_WO = 40, 44, 48, 52, 56, 60, 64, 68
S_XCD, S_IDX, S_WAVE, S_TILE0, S_PITCH, S_COLA, S_COLB, S_UNIT = 4, 5, 6, 7, 8, 9, 10, 11
S_T0, S_T1, S_T2, S_T3 = 12, 13, 14, 15
S_XK = 72
S_WK = 80
S_M0X = 88
S_M0W = 89
S_ST = 90
S_C1, S_C2, S_C3 = 91, 92, 93
S_MASK = 94
S_TMP = 96
S_P = 97
S_SAVE = 98

V_LANE = 1
V_WA, V_WA2, V_WB, V_WB2, V_XD = 2, 3, 4, 5, 6
V_XF = 8
V_WT = 20
V_STO = 23
V_T = 24
V_ACC = 32
V_XFR = 144
V_E = 192
V_KV = 224
V_Z = 240

SLOT = 40960
BUF = [0, SLOT, 2 * SLOT, 3 * SLOT]
K1_LDS = 3 * SLOT + 32768


def lds_ref(base_reg_first, stride, off):
    w = off >> 16
    return base_reg_first + w * stride, off & 0xFFFF


def k1_prologue(a):
    a.i("s_cmp_ge_u32 s2, 256")
    a.i("s_cbranch_scc1 K1_done")
    a.i("s_load_dwordx16 s[16:31], s[0:1], 0")
    a.i("s_load_dwordx4 s[32:35], s[0:1], 64")
    a.i("s_load_dwordx2 s[36:37], s[0:1], 80")
    a.i("s_getpc_b64 s[98:99]")
    a.label("K1_pc")
    a.i(f"s_and_b32 s{S_XCD}, s2, 7")
    a.i(f"s_lshr_b32 s{S_IDX}, s2, 3")
    a.i(f"v_and_b32 v{V_LANE}, 63, v0")
    a.i(f"v_lshrrev_b32 v{V_T}, 6, v0")
    a.i(f"s_lshl_b32 s{S_T0}, s{S_IDX}, 11")
    a.i(f"v_readfirstlane_b32 s{S_WAVE}, v{V_T}")
    a.i(f"v_lshlrev_b32 v{V_T+1}, 7, v0")
    a.i(f"v_add_u32 v{V_T+1}, s{S_T0}, v{V_T+1}")
    a.i(f"v_min_u32 v{V_T+1}, CODE_END-K1_pc-4, v{V_T+1}")
    a.i("v_cmp_gt_u32 vcc, 16, v0")
    a.i("s_and_saveexec_b64 s[94:95], vcc")
    a.i("s_cbranch_execz K1_nopf")
    a.i(f"global_load_dword v{V_T+7}, v{V_T+1}, s[98:99]")
    a.label("K1_nopf")
    a.i("s_mov_b64 exec, s[94:95]")
    a.i(f"s_cmp_ge_u32 s{S_IDX}, 24")
    a.i("s_cbranch_scc1 K1_role_kv")
    a.i(f"s_mul_i32 s{S_T0}, s{S_IDX}, 43")
    a.i(f"s_lshr_b32 s{S_T0}, s{S_T0}, 8")
    a.i(f"s_mul_i32 s{S_T1}, s{S_T0}, 6")
    a.i(f"s_sub_u32 s{S_P}, s{S_IDX}, s{S_T1}")
    a.i(f"s_lshl_b32 s{S_T0}, s{S_T0}, 3")
    a.i(f"s_add_u32 s{S_UNIT}, s{S_T0}, s{S_XCD}")
    a.i(f"s_mul_i32 s{S_TILE0}, s{S_P}, 11")
    a.i(f"s_max_u32 s{S_T0}, s{S_P}, 3")
    a.i(f"s_sub_u32 s{S_T0}, s{S_T0}, 3")
    a.i(f"s_sub_u32 s{S_TILE0}, s{S_TILE0}, s{S_T0}")
    a.i("s_waitcnt lgkmcnt(0)")
    a.i(f"s_cmp_ge_u32 s{S_UNIT}, 28")
    a.i("s_cbranch_scc1 K1_role_q")
    a.i(f"s_movk_i32 s{S_PITCH}, 3584")
    a.i(f"s_lshl_b32 s{S_COLA}, s{S_UNIT}, 7")
    a.i(f"s_mov_b32 s{S_COLB}, s{S_COLA}")
    srd(a, S_A, 24, 512 * 3584)
    srd(a, S_B, 26, 512 * 3584)
    a.i("s_mov_b32 s3, 0")
    a.i("s_branch K1_common")
    a.label("K1_role_q")
    a.i(f"s_movk_i32 s{S_PITCH}, 3072")
    a.i(f"s_sub_u32 s{S_T0}, s{S_UNIT}, 28")
    a.i(f"s_lshl_b32 s{S_COLA}, s{S_T0}, 8")
    a.i(f"s_add_u32 s{S_COLB}, s{S_COLA}, 128")
    srd(a, S_A, 18, 512 * 3072)
    srd(a, S_B, 18, 512 * 3072)
    a.i("s_mov_b32 s3, 1")
    a.i("s_branch K1_common")
    a.label("K1_role_kv")
    a.i(f"s_sub_u32 s{S_P}, s{S_IDX}, 24")
    a.i(f"s_lshl_b32 s{S_TILE0}, s{S_P}, 3")
    a.i(f"s_mov_b32 s{S_UNIT}, s{S_XCD}")
    a.i(f"s_movk_i32 s{S_PITCH}, 3072")
    a.i(f"s_lshl_b32 s{S_T0}, s{S_XCD}, 7")
    a.i(f"s_add_u32 s{S_COLA}, s{S_T0}, 1024")
    a.i(f"s_add_u32 s{S_COLB}, s{S_T0}, 2048")
    a.i("s_waitcnt lgkmcnt(0)")
    srd(a, S_A, 18, 512 * 3072)
    srd(a, S_B, 18, 512 * 3072)
    a.i("s_mov_b32 s3, 2")
    a.label("K1_common")
    srd(a, S_X, 16, 2048 * 1024)
    srd(a, S_WS, 36, WS_USED)
    srd(a, S_GW, 30, 1024)
    srd(a, S_DBG, 34, 256)
    srd(a, S_W2, 28, 1792 * 1024)
    srd(a, S_WO, 20, 512 * 1024)
    a.i(f"s_lshl_b32 s{S_T2}, s{S_TILE0}, 15")
    a.i(f"s_lshl_b32 s{S_T3}, s{S_PITCH}, 6")
    for i in range(8):
        a.i(f"s_add_u32 s{S_T0}, s{S_XCD}, {i}")
        a.i(f"s_and_b32 s{S_T0}, s{S_T0}, 7")
        a.i(f"s_lshl_b32 s{S_T1}, s{S_T0}, 7")
        a.i(f"s_add_u32 s{S_XK+i}, s{S_T1}, s{S_T2}")
        a.i(f"s_mul_i32 s{S_WK+i}, s{S_T0}, s{S_T3}")
    a.i(f"s_lshl_b32 s{S_M0X}, s{S_WAVE}, 10")
    a.i(f"s_lshl_b32 s{S_M0W}, s{S_WAVE}, 11")
    t = V_T
    a.i(f"v_lshrrev_b32 v{t}, 3, v{V_LANE}")
    a.i(f"v_and_b32 v{t+1}, 7, v{V_LANE}")
    a.i(f"v_bfe_u32 v{t+2}, v{V_LANE}, 4, 1")
    a.i(f"v_lshlrev_b32 v{t+2}, 1, v{t+2}")
    a.i(f"v_xor_b32 v{t+3}, v{t+1}, v{t+2}")
    a.i(f"v_xor_b32 v{t+4}, 4, v{t+3}")
    a.i(f"s_lshl_b32 s{S_T0}, s{S_WAVE}, 4")
    a.i(f"v_add_u32 v{t+5}, s{S_T0}, v{t}")
    a.i(f"v_mul_lo_u32 v{t+5}, v{t+5}, s{S_PITCH}")
    a.i(f"v_lshl_add_u32 v{V_WA}, v{t+3}, 4, v{t+5}")
    a.i(f"v_add_u32 v{V_WA}, s{S_COLA}, v{V_WA}")
    a.i(f"v_lshl_add_u32 v{V_WB}, v{t+4}, 4, v{t+5}")
    a.i(f"v_add_u32 v{V_WB}, s{S_COLB}, v{V_WB}")
    a.i(f"s_lshl_b32 s{S_T1}, s{S_PITCH}, 3")
    a.i(f"v_add_u32 v{V_WA2}, s{S_T1}, v{V_WA}")
    a.i(f"v_add_u32 v{V_WB2}, s{S_T1}, v{V_WB}")
    a.i(f"s_lshl_b32 s{S_T0}, s{S_WAVE}, 3")
    a.i(f"v_add_u32 v{t+5}, s{S_T0}, v{t}")
    a.i(f"v_bfe_u32 v{t+6}, v{t+5}, 1, 3")
    a.i(f"v_xor_b32 v{t+6}, v{t+6}, v{t+1}")
    a.i(f"v_lshlrev_b32 v{t+5}, 10, v{t+5}")
    a.i(f"v_lshl_add_u32 v{V_XD}, v{t+6}, 4, v{t+5}")
    a.i(f"v_lshlrev_b32 v{V_STO}, 4, v{V_LANE}")


def k1_frag_addrs(a):
    t = V_T
    a.i(f"v_and_b32 v{t}, 31, v{V_LANE}")
    a.i(f"v_lshrrev_b32 v{t+1}, 5, v{V_LANE}")
    a.i(f"v_bfe_u32 v{t+2}, v{t}, 1, 3")
    a.i(f"v_xor_b32 v{t+2}, v{t+2}, v{t+1}")
    a.i(f"v_lshlrev_b32 v{t}, 7, v{t}")
    for s in range(4):
        a.i(f"v_xor_b32 v{t+3}, {2*s}, v{t+2}")
        a.i(f"v_lshl_add_u32 v{V_XF+s}, v{t+3}, 4, v{t}")
        a.i(f"v_add_u32 v{V_XF+4+s}, 0x10000, v{V_XF+s}")
        a.i(f"v_add_u32 v{V_XF+8+s}, 0x20000, v{V_XF+s}")
    a.i(f"v_bfe_u32 v{t}, v{V_LANE}, 4, 1")
    a.i(f"v_lshrrev_b32 v{t+1}, 5, v{V_LANE}")
    a.i(f"v_bfe_u32 v{t+2}, v{V_LANE}, 2, 2")
    a.i(f"v_bfe_u32 v{t+3}, v{V_LANE}, 1, 1")
    a.i(f"s_lshl_b32 s{S_T0}, s{S_WAVE}, 1")
    a.i(f"v_add_u32 v{t+3}, s{S_T0}, v{t+3}")
    a.i(f"v_bfe_u32 v{t+4}, v{V_LANE}, 3, 1")
    a.i(f"v_lshlrev_b32 v{t+4}, 1, v{t+4}")
    a.i(f"v_lshl_add_u32 v{t+4}, v{t}, 2, v{t+4}")
    a.i(f"v_xor_b32 v{t+3}, v{t+3}, v{t+4}")
    a.i(f"v_lshlrev_b32 v{t+5}, 13, v{t}")
    a.i(f"v_lshl_add_u32 v{t+5}, v{t+1}, 10, v{t+5}")
    a.i(f"v_lshl_add_u32 v{t+5}, v{t+2}, 7, v{t+5}")
    a.i(f"v_lshl_add_u32 v{t+5}, v{t+3}, 4, v{t+5}")
    a.i(f"v_and_b32 v{t+6}, 1, v{V_LANE}")
    a.i(f"v_lshl_add_u32 v{V_WT}, v{t+6}, 3, v{t+5}")
    a.i(f"v_add_u32 v{V_WT+1}, 0x10000, v{V_WT}")
    a.i(f"v_add_u32 v{V_WT+2}, 0x20000, v{V_WT}")


def k1_g_loads(a):
    a.i(f"s_lshl_b32 s{S_T0}, s2, 13")
    a.i(f"s_lshl_b32 s{S_T1}, s{S_WAVE}, 11")
    a.i(f"s_add_u32 s{S_T0}, s{S_T0}, s{S_T1}")
    e = V_E
    a.vmem("g", f"buffer_load_dwordx4 v[{e}:{e+3}], v{V_STO}, s[{S_GW}:{S_GW+3}], 0 offen")
    a.vmem("g", f"buffer_load_dwordx4 v[{e+4}:{e+7}], v{V_STO}, s[{S_X}:{S_X+3}], s{S_T0} offen")
    a.vmem("g", f"buffer_load_dwordx4 v[{e+8}:{e+11}], v{V_STO}, s[{S_X}:{S_X+3}], s{S_T0} offen offset:1024")


def k1_g_compute(a):
    e = V_E
    a.wait(vm=["g"])
    gw = e + 12
    for j in range(4):
        a.i(f"v_lshlrev_b32 v{gw+2*j}, 16, v{e+j}")
        a.i(f"v_and_b32 v{gw+2*j+1}, 0xffff0000, v{e+j}")
    t = V_T
    for row in range(2):
        xs = e + 4 + 4 * row
        acc = e + 20 + row
        for j in range(4):
            a.i(f"v_lshlrev_b32 v{t}, 16, v{xs+j}")
            a.i(f"v_and_b32 v{t+1}, 0xffff0000, v{xs+j}")
            a.i(f"v_mul_f32 v{t}, v{t}, v{gw+2*j}")
            a.i(f"v_mul_f32 v{t+1}, v{t+1}, v{gw+2*j+1}")
            a.i(f"v_cvt_pk_bf16_f32 v{t+2}, v{t}, v{t+1}")
            a.i(f"v_lshlrev_b32 v{t}, 16, v{t+2}")
            a.i(f"v_and_b32 v{t+1}, 0xffff0000, v{t+2}")
            if j == 0:
                a.i(f"v_add_f32 v{acc}, v{t}, v{t+1}")
            else:
                a.i(f"v_add_f32 v{acc}, v{acc}, v{t}")
                a.i(f"v_add_f32 v{acc}, v{acc}, v{t+1}")
    r0, r1 = e + 20, e + 21
    a.nop(2)
    for mod in ("row_shr:1", "row_shr:2", "row_shr:4", "row_shr:8"):
        a.i(f"v_add_f32_dpp v{r0}, v{r0}, v{r0} {mod} row_mask:0xf bank_mask:0xf bound_ctrl:0")
        a.i(f"v_add_f32_dpp v{r1}, v{r1}, v{r1} {mod} row_mask:0xf bank_mask:0xf bound_ctrl:0")
        a.nop(1)
    a.i(f"v_add_f32_dpp v{r0}, v{r0}, v{r0} row_bcast:15 row_mask:0xa bank_mask:0xf")
    a.i(f"v_add_f32_dpp v{r1}, v{r1}, v{r1} row_bcast:15 row_mask:0xa bank_mask:0xf")
    a.nop(1)
    a.i(f"v_add_f32_dpp v{r0}, v{r0}, v{r0} row_bcast:31 row_mask:0xc bank_mask:0xf")
    a.i(f"v_add_f32_dpp v{r1}, v{r1}, v{r1} row_bcast:31 row_mask:0xc bank_mask:0xf")
    a.i(f"v_cvt_pk_bf16_f32 v{t}, v{r0}, v{r1}")
    a.i(f"v_lshlrev_b32 v{r0}, 16, v{t}")
    a.i(f"v_and_b32 v{r1}, 0xffff0000, v{t}")
    a.i(f"v_mul_f32 v{r0}, {NLOG2E:#x}, v{r0}")
    a.i(f"v_mul_f32 v{r1}, {NLOG2E:#x}, v{r1}")
    a.i(f"v_exp_f32 v{r0}, v{r0}")
    a.i(f"v_exp_f32 v{r1}, v{r1}")
    a.nop(1)
    a.i(f"v_add_f32 v{r0}, 1.0, v{r0}")
    a.i(f"v_add_f32 v{r1}, 1.0, v{r1}")
    a.i(f"v_rcp_f32 v{r0}, v{r0}")
    a.i(f"v_rcp_f32 v{r1}, v{r1}")
    a.nop(1)
    a.i(f"v_cvt_pk_bf16_f32 v{t}, v{r0}, v{r1}")
    o = e + 24
    a.i(f"v_lshlrev_b32 v{o}, 16, v{t}")
    a.i(f"v_and_b32 v{o+2}, 0xffff0000, v{t}")
    a.i(f"v_sub_f32 v{r0}, 1.0, v{o}")
    a.i(f"v_sub_f32 v{r1}, 1.0, v{o+2}")
    a.i(f"v_cvt_pk_bf16_f32 v{t}, v{r0}, v{r1}")
    a.i(f"v_lshlrev_b32 v{o+1}, 16, v{t}")
    a.i(f"v_and_b32 v{o+3}, 0xffff0000, v{t}")
    a.i(f"s_lshl_b32 s{S_T0}, s2, 6")
    a.i(f"s_lshl_b32 s{S_T1}, s{S_WAVE}, 4")
    a.i(f"s_add_u32 s{S_T0}, s{S_T0}, s{S_T1}")
    a.i(f"s_add_u32 s{S_T0}, s{S_T0}, {G_OFF}")
    a.i(f"v_mov_b32 v{t+1}, 0")
    a.i(f"s_mov_b32 s{S_SAVE}, 0")
    a.i(f"s_mov_b32 s{S_SAVE+1}, 0x80000000")
    a.i(f"s_mov_b64 exec, s[{S_SAVE}:{S_SAVE+1}]")
    a.vmem("gst", f"buffer_store_dwordx4 v[{o}:{o+3}], v{t+1}, s[{S_WS}:{S_WS+3}], s{S_T0} offen")
    a.i("s_mov_b64 exec, -1")


def dma_stage_ops(i, n1):
    slot = BUF[i % 3]
    ops = []
    for seg, (va, va2, sr) in enumerate(((V_WA, V_WA2, S_A), (V_WB, V_WB2, S_B))):
        for b, v in enumerate((va, va2)):
            ops.append([("s", None, f"s_add_u32 m0, s{S_M0W}, {slot + seg*8192 + b*1024}"),
                        ("s", None, "s_nop 0"),
                        ("v", f"S{i}", f"buffer_load_dwordx4 v{v}, s[{sr}:{sr+3}], s{S_WK+i} offen lds")])
    for j in range(n1):
        ops.append([("s", None, f"s_add_u32 m0, s{S_M0X}, {slot + 16384 + j*4096}"),
                    ("s", None, f"s_add_u32 s{S_TMP}, s{S_XK+i}, {j*32768}"),
                    ("v", f"S{i}", f"buffer_load_dwordx4 v{V_XD}, s[{S_X}:{S_X+3}], s{S_TMP} offen lds")])
    return ops


def dma_tile_ops(lj, tile, buf):
    ops = []
    for i in range(8):
        ops.append([("s", None, f"s_add_u32 m0, s{S_M0X}, {buf + i*4096}"),
                    ("s", None, f"s_add_u32 s{S_TMP}, s{S_XK+i}, {tile*32768}"),
                    ("v", f"L{lj}", f"buffer_load_dwordx4 v{V_XD}, s[{S_X}:{S_X+3}], s{S_TMP} offen lds")])
    return ops


def emit_group(a, grp):
    for kind, tag, text in grp:
        if kind == "v":
            a.vmem(tag, text)
        else:
            a.i(text)


def epi_mlp(cfg, acc, tile):
    ops = []

    def V(cost, s, chk=False):
        def f(a, s=s, chk=chk):
            if chk:
                a.need_acc(acc)
            a.i(s)
        ops.append((cost, f))
    for r in range(8):
        V(4, f"v_mul_f32 v{acc+8+r}, v{acc+r}, v{acc+8+r}", chk=True)
    for r in range(8):
        V(4, f"v_mul_f32 v{acc+r}, s{S_C2}, v{acc+r}")
    for r in range(8):
        V(8, f"v_exp_f32 v{acc+r}, v{acc+r}")
    for r in range(8):
        V(4, f"v_add_f32 v{acc+r}, 1.0, v{acc+r}")
    for r in range(8):
        V(8, f"v_rcp_f32 v{acc+r}, v{acc+r}")
    for r in range(8):
        V(4, f"v_mul_f32 v{acc+8+r}, v{acc+r}, v{acc+8+r}")
    for j in range(4):
        V(4, f"v_cvt_pk_bf16_f32 v{acc+j}, v{acc+8+2*j}, v{acc+9+2*j}")

    def st(a):
        a.i(f"s_add_u32 s{S_TMP}, s{S_ST}, {tile*AF_TT}")
        a.vmem("st", f"buffer_store_dwordx4 v[{acc}:{acc+3}], v{V_STO}, s[{S_WS}:{S_WS+3}], s{S_TMP} offen {cfg.store_aux}")
        a.nop(1)
    ops.append((12, st))
    return ops


def phi_ops(V, regs, tmp):
    n = len(regs)
    for k, r in enumerate(regs):
        V(4, f"v_mul_f32 v{tmp+k}, s{S_C1}, v{r}", chk=True)
    for k, r in enumerate(regs):
        V(8, f"v_exp_f32_e64 v{tmp+k}, v{tmp+k} clamp")
    for k, r in enumerate(regs):
        V(4, f"v_max_f32 v{r}, 0, v{r}")
    for k, r in enumerate(regs):
        V(4, f"v_add_f32 v{r}, v{r}, v{tmp+k}")
    for k, r in enumerate(regs):
        V(4, f"v_add_f32 v{r}, s{S_C3}, v{r}")


def epi_q(cfg, acc, tile):
    ops = []

    def V(cost, s, chk=False):
        def f(a, s=s, chk=chk):
            if chk:
                a.need_acc(acc)
            a.i(s)
        ops.append((cost, f))
    for half in range(2):
        regs = [acc + 8 * half + r for r in range(8)]
        phi_ops(V, regs, V_E)
        o = V_E + 8 + 4 * half
        for j in range(4):
            V(4, f"v_cvt_pk_bf16_f32 v{o+j}, v{regs[2*j]}, v{regs[2*j+1]}")

        def st(a, o=o, half=half):
            a.i(f"s_add_u32 s{S_TMP}, s{S_ST}, {tile*AF_TT + half*4096}")
            a.vmem("st", f"buffer_store_dwordx4 v[{o}:{o+3}], v{V_STO}, s[{S_WS}:{S_WS+3}], s{S_TMP} offen {cfg.store_aux}")
            a.nop(1)
        ops.append((12, st))
    return ops


def epi_kv(cfg, acc0, acc1, first):
    ops = []

    def V(cost, s, chk=False):
        def f(a, s=s, chk=chk):
            if chk:
                a.need_acc(acc0)
                a.need_acc(acc1)
            a.i(s)
        ops.append((cost, f))
    for r in range(16):
        V(4, f"v_permlane16_swap_b32 v{acc0+r}, v{acc1+r}", chk=True)
    for half in range(2):
        phi_ops(V, [acc0 + 8 * half + r for r in range(8)], V_E)
    pk, vv = V_E + 8, V_E + 16
    for j in range(8):
        V(4, f"v_cvt_pk_bf16_f32 v{pk+j}, v{acc0+2*j}, v{acc0+2*j+1}")
    for j in range(8):
        V(4, f"v_cvt_pk_bf16_f32 v{vv+j}, v{acc1+2*j}, v{acc1+2*j+1}")
    ones = V_E + 28

    def mm(a):
        a.nop(2)
        a.mfma(V_KV, f"v[{pk}:{pk+3}]", f"v[{vv}:{vv+3}]", None if first else V_KV)
        a.mfma(V_Z, f"v[{pk}:{pk+3}]", f"v[{ones}:{ones+3}]", None if first else V_Z)
        a.mfma(V_KV, f"v[{pk+4}:{pk+7}]", f"v[{vv+4}:{vv+7}]", V_KV)
        a.mfma(V_Z, f"v[{pk+4}:{pk+7}]", f"v[{ones}:{ones+3}]", V_Z)
    ops.append((40, mm))
    return ops


def k1_variant(a, cfg, typ):
    n1, nt = cfg.N1[typ], cfg.NT[typ]
    nl = nt - n1
    a.label(f"K1_{typ}")
    a.vm, a.vm_done, a.ds, a.ds_done, a.mfma_w = ["pf"], 0, [], 0, {}
    a.i(f"s_mov_b32 s{S_C1}, {LOG2E:#x}")
    a.i(f"s_mov_b32 s{S_C2}, {NLOG2E:#x}")
    a.i(f"s_mov_b32 s{S_C3}, {EPS:#x}")
    if typ == "mlp":
        a.i(f"s_lshl_b32 s{S_T0}, s{S_UNIT}, 2")
        a.i(f"s_add_u32 s{S_T0}, s{S_T0}, s{S_WAVE}")
    elif typ == "q":
        a.i(f"s_lshl_b32 s{S_T0}, s{S_UNIT}, 3")
        a.i(f"s_add_u32 s{S_T0}, s{S_T0}, s{S_WAVE}")
        a.i(f"s_sub_u32 s{S_T0}, s{S_T0}, {28*8-112}")
    if typ != "kv":
        a.i(f"s_lshl_b32 s{S_T0}, s{S_T0}, 10")
        a.i(f"s_mul_i32 s{S_T1}, s{S_TILE0}, {AF_TT}")
        a.i(f"s_add_u32 s{S_ST}, s{S_T0}, s{S_T1}")
        if AF_OFF:
            a.i(f"s_add_u32 s{S_ST}, s{S_ST}, {AF_OFF}")
    else:
        a.i(f"s_lshl_b32 s{S_T0}, s{S_UNIT}, 2")
        a.i(f"s_add_u32 s{S_T0}, s{S_T0}, s{S_WAVE}")
        a.i(f"s_lshl_b32 s{S_UNIT}, s{S_T0}, 2")
        a.i(f"s_mul_i32 s{S_ST}, s{S_T0}, {KVT_HEAD}")
        a.i(f"s_add_u32 s{S_ST}, s{S_ST}, {KVT_OFF}")
        a.i(f"s_cmp_lg_u32 s{S_P}, 0")
        a.i("s_cbranch_scc1 K1_kv_nozero")
        a.i(f"v_lshlrev_b32 v{V_T}, 3, v{V_LANE}")
        for k in range(3):
            a.i(f"v_mov_b32 v{V_KV+2*k}, 0")
            a.i(f"v_mov_b32 v{V_KV+2*k+1}, 0")
        a.i(f"buffer_atomic_swap_x2 v[{V_KV}:{V_KV+1}], v{V_T}, s[{S_WS}:{S_WS+3}], s{S_ST} offen sc0")
        a.i(f"buffer_atomic_swap_x2 v[{V_KV+2}:{V_KV+3}], v{V_T}, s[{S_WS}:{S_WS+3}], s{S_ST} offen offset:512 sc0")
        a.i("s_mov_b64 exec, 0xffff")
        a.i(f"buffer_atomic_swap_x2 v[{V_KV+4}:{V_KV+5}], v{V_T}, s[{S_WS}:{S_WS+3}], s{S_ST} offen offset:1024 sc0")
        a.i("s_mov_b64 exec, -1")
        a.label("K1_kv_nozero")
    k1_g_loads(a)
    for i in range(3):
        for grp in dma_stage_ops(i, n1):
            emit_group(a, grp)
    k1_frag_addrs(a)
    k1_g_compute(a)
    if typ == "kv":
        for k in range(4):
            a.i(f"v_mov_b32 v{V_E+28+k}, 0x3f803f80")
        a.i(f"s_cmp_lg_u32 s{S_P}, 0")
        a.i("s_cbranch_scc1 K1_kv_noflag")
        a.i("s_mov_b64 exec, 1")
        a.i(f"v_mov_b32 v{V_T}, 1")
        a.i(f"v_mov_b32 v{V_T+1}, 0")
        a.i(f"buffer_atomic_add v{V_T}, v{V_T+1}, s[{S_DBG}:{S_DBG+3}], s{S_UNIT} offen")
        a.i("s_mov_b64 exec, -1")
        a.i("s_branch K1_kv_flagdone")
        a.label("K1_kv_noflag")
        a.i("s_mov_b64 exec, 1")
        a.i(f"v_mov_b32 v{V_T+1}, 0")
        a.i(f"buffer_load_dword v{V_T}, v{V_T+1}, s[{S_DBG}:{S_DBG+3}], s{S_UNIT} offen sc1")
        a.i("s_mov_b64 exec, -1")
        a.label("K1_kv_flagdone")
        a.vm.append("flag0")

    acc_blk = [V_ACC + 16 * k for k in range(7)]

    def opnds(q, xf):
        w = f"a[{4*q}:{4*q+3}]"
        x = f"v[{xf}:{xf+3}]"
        return (x, w) if typ == "kv" else (w, x)

    def fp_reads(n):
        i, s = divmod(n, 4)
        slot = BUF[i % 3]
        L = []
        for rd in range(2):
            reg, off = lds_ref(V_WT, 1, slot + s * 2048 + rd * 512)
            L.append((f"w{n}", f"ds_read_b64_tr_b16 a[{4*n+2*rd}:{4*n+2*rd+1}], v{reg} offset:{off}"))
        for j in range(n1):
            reg, off = lds_ref(V_XF + s, 4, slot + 16384 + j * 4096)
            xf = V_XFR + (n % 2) * 24 + 4 * j
            L.append((f"x{n}_{j}", f"ds_read_b128 v[{xf}:{xf+3}], v{reg} offset:{off}"))
        return L

    lbuf = [BUF[3], BUF[5 % 3], BUF[6 % 3], BUF[7 % 3], BUF[3], BUF[2], BUF[0]]

    def lp_read(lj, q):
        i, s = divmod(q, 4)
        reg, off = lds_ref(V_XF + s, 4, lbuf[lj] + i * 4096)
        xf = V_XFR + 4 * ((lj * 32 + q) % 4)
        return (f"l{lj}_{q}", f"ds_read_b128 v[{xf}:{xf+3}], v{reg} offset:{off}")

    a.wait(vm=["S0"])
    a.i("s_barrier")
    for tag, text in fp_reads(0):
        a.dsop(tag, text)
    dma_q = []
    for n in range(32):
        i, s = divmod(n, 4)
        fill = []
        if s == 3:
            a.wait(ds_all=True)
            tg = f"S{i+1}" if i < 7 else "L0"
            assert not any(op[1] == tg for g in dma_q for op in g), tg
            a.wait(vm=[tg])
            a.i("s_barrier")
            if i + 3 <= 7:
                dma_q += dma_stage_ops(i + 3, n1)
            if i == 4:
                dma_q += dma_tile_ops(0, n1, lbuf[0])
            if i >= 5 and (i - 4) < nl:
                dma_q += dma_tile_ops(i - 4, n1 + i - 4, lbuf[i - 4])
        if n < 31:
            fill = [("d",) + x for x in fp_reads(n + 1)]
        else:
            fill = [("d",) + lp_read(0, q) for q in range(3)]
        for j in range(n1):
            a.wait(ds=[f"w{n}", f"x{n}_{j}"])
            A, B = opnds(n, V_XFR + (n % 2) * 24 + 4 * j)
            a.mfma(acc_blk[j], A, B, None if n == 0 else acc_blk[j])
            k = 0
            while fill and k < 2:
                _, tag, text = fill.pop(0)
                a.dsop(tag, text)
                k += 1
            if dma_q:
                emit_group(a, dma_q.pop(0))
        while fill:
            _, tag, text = fill.pop(0)
            a.dsop(tag, text)
    epi = []
    free_blk = acc_blk[n1:]
    release = []

    def push_epi(blks, tiles, first=False):
        if typ == "mlp":
            ops = epi_mlp(cfg, blks[0], tiles[0])
        elif typ == "q":
            ops = epi_q(cfg, blks[0], tiles[0])
        else:
            ops = epi_kv(cfg, blks[0], blks[1], first)

        def rel(a, blks=blks):
            free_blk.extend(blks)
        ops.append((0, rel))
        epi.extend(ops)

    if typ == "kv":
        for j in range(0, n1, 2):
            push_epi([acc_blk[j], acc_blk[j + 1]], [j, j + 1], first=(j == 0))
    else:
        for j in range(n1):
            push_epi([acc_blk[j]], [j])
    pend = []
    for lj in range(nl):
        while not free_blk:
            c, f = epi.pop(0)
            f(a)
        blk = free_blk.pop(0)
        for q in range(32):
            if q == 29 and lj + 1 < nl:
                assert not any(op[1] == f"L{lj+1}" for g in dma_q for op in g)
                assert f"L{lj+1}" in a.vm
                a.wait(vm=[f"L{lj+1}"])
                a.i("s_barrier")
                nxt = lj + 3
                if lj >= 1 and nxt < nl:
                    dma_q += dma_tile_ops(nxt, n1 + nxt, lbuf[nxt])
            a.wait(ds=[f"l{lj}_{q}"])
            A, B = opnds(q, V_XFR + 4 * ((lj * 32 + q) % 4))
            a.mfma(blk, A, B, None if q == 0 else blk)
            if q + 3 < 32:
                tag, text = lp_read(lj, q + 3)
                a.dsop(tag, text)
            elif lj + 1 < nl:
                tag, text = lp_read(lj + 1, q + 3 - 32)
                a.dsop(tag, text)
            budget = cfg.fill_per_gap
            if dma_q and q % 2 == 0:
                emit_group(a, dma_q.pop(0))
                budget -= 12
            while epi and budget > 0:
                c, f = epi[0]
                if c > budget and budget < cfg.fill_per_gap and c <= cfg.fill_per_gap:
                    break
                epi.pop(0)
                f(a)
                budget -= c
        pend.append(blk)
        if typ == "kv":
            if len(pend) == 2:
                push_epi(pend, [0, 0])
                pend = []
        else:
            push_epi(pend, [n1 + lj])
            pend = []
    assert not dma_q
    while epi:
        c, f = epi.pop(0)
        f(a)
    if typ == "kv":
        k1_kv_tail(a)
    a.i("s_endpgm")


def k1_kv_tail(a):
    t = V_T
    a.label("K1_kv_poll")
    a.i("s_mov_b64 exec, 1")
    a.i(f"v_mov_b32 v{t+1}, 0")
    a.i(f"buffer_load_dword v{t}, v{t+1}, s[{S_DBG}:{S_DBG+3}], s{S_UNIT} offen sc1")
    a.i("s_waitcnt vmcnt(0)")
    a.i(f"v_readfirstlane_b32 s{S_T0}, v{t}")
    a.i("s_mov_b64 exec, -1")
    a.i(f"s_cmp_eq_u32 s{S_T0}, 0")
    a.i("s_cbranch_scc1 K1_kv_poll")
    a.need_acc(V_KV, 16)
    a.need_acc(V_Z, 16)
    a.i(f"s_mov_b32 s{S_MASK}, 0xffff0000")
    a.i(f"s_mov_b32 s{S_MASK+1}, 0xffff0000")
    a.i(f"v_and_b32 v{t}, 15, v{V_LANE}")
    a.i(f"v_lshrrev_b32 v{t+1}, 5, v{V_LANE}")
    a.i(f"v_lshlrev_b32 v{t+1}, 5, v{t+1}")
    a.i(f"v_lshl_add_u32 v{t}, v{t}, 6, v{t+1}")
    for r in range(8):
        a.i(f"v_cndmask_b32 v{V_KV+r}, v{V_KV+r}, v{V_KV+8+r}, s[{S_MASK}:{S_MASK+1}]")
        a.i(f"v_add_f32 v{V_Z+r}, v{V_Z+r}, v{V_Z+8+r}")
    for r in range(8):
        a.i(f"buffer_atomic_add_f32 v{V_KV+r}, v{t}, s[{S_WS}:{S_WS+3}], s{S_ST} offen offset:{4*r}")
    a.i(f"s_mov_b32 s{S_MASK}, 1")
    a.i(f"s_mov_b32 s{S_MASK+1}, 1")
    a.i(f"s_mov_b64 exec, s[{S_MASK}:{S_MASK+1}]")
    for r in range(8):
        a.i(f"buffer_atomic_add_f32 v{V_Z+r}, v{t+1}, s[{S_WS}:{S_WS+3}], s{S_ST} offen offset:{1024+4*r}")
    a.i("s_mov_b64 exec, -1")


def gen_k1(cfg):
    a = Asm()
    a.raw(".globl k1_kernel\n.p2align 8\n.type k1_kernel,@function\nk1_kernel:")
    k1_prologue(a)
    a.i("s_cmp_eq_u32 s3, 0")
    a.i("s_cbranch_scc1 K1_mlp")
    a.i("s_cmp_eq_u32 s3, 1")
    a.i("s_cbranch_scc1 K1_q")
    a.i("s_branch K1_kv")
    a.label("K1_done")
    a.i("s_endpgm")
    for typ in ("mlp", "q", "kv"):
        a.raw(".p2align 6")
        k1_variant(a, cfg, typ)
    return a.text()


class K2Cfg:
    depth = 5
    mode = 0


def gen_k2(cfg):
    a = Asm()
    D = cfg.depth
    S_WS2, S_W2b, S_WOb, S_OUT = 40, 44, 48, 52
    S_W, S_RB, S_CB, S_M0, T0, T1, T2 = 4, 5, 6, 7, 8, 9, 10
    S_HB, S_WB, S_QB, S_OB, S_KVB = 11, 12, 13, 14, 15
    S_EPS = 56
    S_T3 = 57
    V_L = 1
    V_A0, V_A1, V_WD, V_TR0, V_TR1, V_KVA = 2, 3, 4, 5, 6, 7
    VT = 8
    V_G = 16
    ACC_B = 32
    ACC_A = 96
    V_WF = 160
    V_ND = 176
    V_KVR = 208
    V_KVF = 224
    V_OF = 228
    V_RC = 236
    a.raw(".globl k2_kernel\n.p2align 8\n.type k2_kernel,@function\nk2_kernel:")
    a.i("s_cmp_ge_u32 s2, 256")
    a.i("s_cbranch_scc1 K2_done")
    a.i("s_load_dwordx2 s[16:17], s[0:1], 16")
    a.i("s_load_dwordx2 s[18:19], s[0:1], 48")
    a.i("s_load_dwordx2 s[20:21], s[0:1], 64")
    a.i("s_load_dwordx2 s[22:23], s[0:1], 80")
    a.i("s_getpc_b64 s[24:25]")
    a.label("K2_pc")
    a.i(f"s_and_b32 s{T0}, s2, 7")
    a.i(f"s_lshr_b32 s{T1}, s2, 3")
    a.i(f"v_and_b32 v{V_L}, 63, v0")
    a.i(f"v_lshrrev_b32 v{VT}, 6, v0")
    a.i(f"s_lshl_b32 s{T2}, s{T1}, 10")
    a.i(f"v_readfirstlane_b32 s{S_W}, v{VT}")
    a.i(f"v_lshlrev_b32 v{VT+1}, 7, v0")
    a.i(f"v_add_u32 v{VT+1}, s{T2}, v{VT+1}")
    a.i(f"v_min_u32 v{VT+1}, CODE_END-K2_pc-4, v{VT+1}")
    a.i("v_cmp_gt_u32 vcc, 8, v0")
    a.i("s_and_saveexec_b64 s[26:27], vcc")
    a.i("s_cbranch_execz K2_nopf")
    a.i(f"global_load_dword v{V_RC+3}, v{VT+1}, s[24:25]")
    a.label("K2_nopf")
    a.i("s_mov_b64 exec, s[26:27]")
    a.vm.append("pf")
    if cfg.mode == 0:
        a.i(f"s_lshr_b32 s{S_RB}, s{T1}, 3")
        a.i(f"s_lshl_b32 s{T2}, s{T0}, 2")
        a.i(f"s_add_u32 s{S_RB}, s{S_RB}, s{T2}")
        a.i(f"s_and_b32 s{S_CB}, s{T1}, 7")
    else:
        a.i(f"s_lshr_b32 s{S_RB}, s{T0}, 1")
        a.i(f"s_lshl_b32 s{S_RB}, s{S_RB}, 3")
        a.i(f"s_lshr_b32 s{T2}, s{T1}, 2")
        a.i(f"s_add_u32 s{S_RB}, s{S_RB}, s{T2}")
        a.i(f"s_and_b32 s{S_CB}, s{T0}, 1")
        a.i(f"s_lshl_b32 s{S_CB}, s{S_CB}, 2")
        a.i(f"s_and_b32 s{T2}, s{T1}, 3")
        a.i(f"s_add_u32 s{S_CB}, s{S_CB}, s{T2}")
    a.i(f"s_mul_i32 s{T0}, s{S_RB}, {2*AF_TT}")
    a.i(f"v_lshlrev_b32 v{V_A0}, 4, v{V_L}")
    a.i(f"v_add_u32 v{V_A0}, s{T0}, v{V_A0}")
    a.i(f"v_add_u32 v{V_A1}, {AF_TT}, v{V_A0}")
    a.i(f"s_mul_i32 s{S_HB}, s{S_W}, {28*1024}")
    if AF_OFF:
        a.i(f"s_add_u32 s{S_HB}, s{S_HB}, {AF_OFF}")
    a.i(f"s_mul_i32 s{S_WB}, s{S_W}, {28*16*1024}")
    a.i(f"s_lshl_b32 s{S_QB}, s{S_W}, 13")
    a.i(f"s_add_u32 s{S_QB}, s{S_QB}, {AF_OFF + 112*1024}")
    a.i(f"s_lshl_b32 s{S_OB}, s{S_W}, 17")
    a.i(f"s_mul_i32 s{S_KVB}, s{S_W}, {8*KVT_HEAD}")
    a.i(f"s_add_u32 s{S_KVB}, s{S_KVB}, {KVT_OFF}")
    a.i(f"s_mul_i32 s{S_M0}, s{S_W}, {D*2048}")
    a.i(f"s_mov_b32 s{S_EPS}, {EPS:#x}")
    t = VT
    a.i(f"v_lshrrev_b32 v{t}, 3, v{V_L}")
    a.i(f"v_and_b32 v{t+1}, 7, v{V_L}")
    a.i(f"v_bfe_u32 v{t+2}, v{V_L}, 4, 1")
    a.i(f"v_lshlrev_b32 v{t+2}, 2, v{t+2}")
    a.i(f"v_xor_b32 v{t+1}, v{t+1}, v{t+2}")
    a.i(f"v_lshlrev_b32 v{t}, 10, v{t}")
    a.i(f"v_lshl_add_u32 v{V_WD}, v{t+1}, 4, v{t}")
    a.i(f"s_lshl_b32 s{T0}, s{S_CB}, 7")
    a.i(f"v_add_u32 v{V_WD}, s{T0}, v{V_WD}")
    a.i(f"v_lshrrev_b32 v{t}, 5, v{V_L}")
    a.i(f"v_bfe_u32 v{t+1}, v{V_L}, 2, 2")
    a.i(f"v_lshl_add_u32 v{t}, v{t}, 2, v{t+1}")
    a.i(f"v_bfe_u32 v{t+1}, v{V_L}, 4, 1")
    a.i(f"v_bfe_u32 v{t+2}, v{V_L}, 1, 1")
    a.i(f"v_lshl_add_u32 v{t+1}, v{t+1}, 1, v{t+2}")
    a.i(f"v_bfe_u32 v{t+2}, v{V_L}, 3, 1")
    a.i(f"v_lshlrev_b32 v{t+2}, 2, v{t+2}")
    a.i(f"v_xor_b32 v{t+1}, v{t+1}, v{t+2}")
    a.i(f"v_lshlrev_b32 v{t}, 7, v{t}")
    a.i(f"v_lshl_add_u32 v{t}, v{t+1}, 4, v{t}")
    a.i(f"v_and_b32 v{t+1}, 1, v{V_L}")
    a.i(f"v_lshl_add_u32 v{t}, v{t+1}, 3, v{t}")
    a.i(f"v_add_u32 v{V_TR0}, s{S_M0}, v{t}")
    a.i(f"v_xor_b32 v{t}, 64, v{t}")
    a.i(f"v_add_u32 v{V_TR1}, s{S_M0}, v{t}")
    a.i(f"v_and_b32 v{t}, 31, v{V_L}")
    a.i(f"v_min_u32 v{t+1}, 16, v{t}")
    a.i(f"v_lshrrev_b32 v{t+2}, 5, v{V_L}")
    a.i(f"v_lshlrev_b32 v{t+2}, 5, v{t+2}")
    a.i(f"v_lshl_add_u32 v{V_KVA}, v{t+1}, 6, v{t+2}")
    a.i(f"v_lshlrev_b32 v{t+3}, 3, v{t}")
    a.i(f"s_lshl_b32 s{T0}, s{S_RB}, 9")
    a.i(f"s_add_u32 s{T0}, s{T0}, {G_OFF}")
    a.i("s_waitcnt lgkmcnt(0)")
    srd(a, S_WS2, 22, WS_USED)
    srd(a, S_W2b, 18, 1792 * 1024)
    srd(a, S_WOb, 16, 512 * 1024)
    srd(a, S_OUT, 20, 2048 * 1024)

    steps = []
    hq = list(range(28))
    aq = list(range(8))
    pos_attn = {3, 7, 11, 15, 19, 23, 27, 31}
    for n in range(36):
        if n in pos_attn:
            steps.append(("a", aq.pop(0)))
        else:
            steps.append(("h", hq.pop(0)))
    assert not hq and not aq

    def issue(n):
        kind, k = steps[n]
        d = n % D
        ab, wb, wsrd = (S_HB, S_WB, S_W2b) if kind == "h" else (S_QB, S_OB, S_WOb)
        a.i(f"s_add_u32 s{T1}, s{ab}, {k*1024}")
        a.vmem(f"s{n}", f"buffer_load_dwordx4 a[{8*d}:{8*d+3}], v{V_A0}, s[{S_WS2}:{S_WS2+3}], s{T1} offen")
        a.vmem(f"s{n}", f"buffer_load_dwordx4 a[{8*d+4}:{8*d+7}], v{V_A1}, s[{S_WS2}:{S_WS2+3}], s{T1} offen")
        for b in range(2):
            a.i(f"s_add_u32 m0, s{S_M0}, {d*2048 + b*1024}")
            a.i(f"s_add_u32 s{T2}, s{wb}, {k*16384 + b*8192}")
            a.vmem(f"s{n}", f"buffer_load_dwordx4 v{V_WD}, s[{wsrd}:{wsrd+3}], s{T2} offen lds")
        if kind == "a":
            kr = V_KVR + 8 * (k % 2)
            a.i(f"s_add_u32 s{S_T3}, s{S_KVB}, {k*KVT_HEAD}")
            a.vmem(f"s{n}", f"buffer_load_dwordx4 v[{kr}:{kr+3}], v{V_KVA}, s[{S_WS2}:{S_WS2+3}], s{S_T3} offen")
            a.vmem(f"s{n}", f"buffer_load_dwordx4 v[{kr+4}:{kr+7}], v{V_KVA}, s[{S_WS2}:{S_WS2+3}], s{S_T3} offen offset:16")

    def tr_reads(n):
        d = n % D
        wf = V_WF + 8 * (n % 2)
        for ct, va in enumerate((V_TR0, V_TR1)):
            for rd in range(2):
                r = wf + 4 * ct + 2 * rd
                a.dsop(f"t{n}", f"ds_read_b64_tr_b16 v[{r}:{r+1}], v{va} offset:{d*2048 + rd*1024}")

    a.vmem("g", f"buffer_load_dwordx2 v[{V_G}:{V_G+1}], v{t+3}, s[{S_WS2}:{S_WS2+3}], s{T0} offen")
    a.vmem("g", f"buffer_load_dwordx2 v[{V_G+2}:{V_G+3}], v{t+3}, s[{S_WS2}:{S_WS2+3}], s{T0} offen offset:256")
    for n in range(D):
        issue(n)
    first_b, first_a = True, True
    a.wait(vm=["s0"])
    tr_reads(0)
    for n in range(36):
        kind, k = steps[n]
        d = n % D
        wf = V_WF + 8 * (n % 2)
        if kind == "a":
            kr = V_KVR + 8 * (k % 2)
            for j in range(4):
                a.i(f"v_cvt_pk_bf16_f32 v{V_KVF+j}, v{kr+2*j}, v{kr+2*j+1}")
            a.nop(2)
            for tt in range(2):
                a.mfma(V_ND + 16 * tt, f"v[{V_KVF}:{V_KVF+3}]", f"a[{8*d+4*tt}:{8*d+4*tt+3}]", None)
        if n + 1 < 36:
            a.wait(vm=[f"s{n+1}"])
            tr_reads(n + 1)
        if kind == "a":
            for tt in range(2):
                nd = V_ND + 16 * tt
                a.need_acc(nd)
                a.i(f"v_add_f32 v{V_RC+tt}, s{S_EPS}, v{nd+8}")
            for tt in range(2):
                a.i(f"v_rcp_f32 v{V_RC+tt}, v{V_RC+tt}")
            a.nop(1)
            for tt in range(2):
                nd = V_ND + 16 * tt
                for r in range(8):
                    a.i(f"v_mul_f32 v{nd+r}, v{nd+r}, v{V_RC+tt}")
                for j in range(4):
                    a.i(f"v_cvt_pk_bf16_f32 v{V_OF+4*tt+j}, v{nd+2*j}, v{nd+2*j+1}")
            a.nop(2)
        a.wait(ds=[f"t{n}"])
        for ct in range(2):
            for tt in range(2):
                A = f"v[{wf+4*ct}:{wf+4*ct+3}]"
                if kind == "h":
                    blk = ACC_B + 16 * (ct * 2 + tt)
                    a.mfma(blk, A, f"a[{8*d+4*tt}:{8*d+4*tt+3}]", None if first_b else blk)
                else:
                    blk = ACC_A + 16 * (ct * 2 + tt)
                    a.mfma(blk, A, f"v[{V_OF+4*tt}:{V_OF+4*tt+3}]", None if first_a else blk)
        if kind == "h":
            first_b = False
        else:
            first_a = False
        if n + D < 36:
            issue(n + D)
    a.wait(vm=["g"])
    for blk in range(4):
        a.need_acc(ACC_B + 16 * blk, 16)
        a.need_acc(ACC_A + 16 * blk, 16)
    for blk in range(4):
        tt = blk & 1
        for r in range(16):
            b, aa = ACC_B + 16 * blk + r, ACC_A + 16 * blk + r
            a.i(f"v_mul_f32 v{b}, v{b}, v{V_G+2*tt+1}")
            a.i(f"v_fmac_f32 v{b}, v{aa}, v{V_G+2*tt}")
    PITCH = 272
    WSZ = 64 * PITCH
    a.i("s_waitcnt lgkmcnt(0)")
    a.i("s_barrier")
    a.i(f"v_and_b32 v{t}, 31, v{V_L}")
    a.i(f"v_lshrrev_b32 v{t+1}, 5, v{V_L}")
    a.i(f"v_mul_u32_u24 v{t}, {PITCH}, v{t}")
    a.i(f"v_lshl_add_u32 v{t}, v{t+1}, 4, v{t}")
    a.i(f"s_mul_i32 s{T0}, s{S_W}, {WSZ}")
    a.i(f"v_add_u32 v{t}, s{T0}, v{t}")
    for blk in range(4):
        ct, tt = blk >> 1, blk & 1
        for q in range(4):
            r = ACC_B + 16 * blk + 4 * q
            off = tt * 32 * PITCH + (ct * 32 + 8 * q) * 4
            a.i(f"ds_write_b128 v{t}, v[{r}:{r+3}] offset:{off}")
    a.i(f"v_lshrrev_b32 v{t+1}, 3, v{V_L}")
    a.i(f"s_lshl_b32 s{T0}, s{S_W}, 4")
    a.i(f"v_add_u32 v{t+1}, s{T0}, v{t+1}")
    a.i(f"v_and_b32 v{t+2}, 7, v{V_L}")
    a.i(f"v_mul_u32_u24 v{t+3}, {PITCH}, v{t+1}")
    a.i(f"v_lshl_add_u32 v{t+3}, v{t+2}, 5, v{t+3}")
    a.i(f"v_lshlrev_b32 v{t+4}, 10, v{t+1}")
    a.i(f"v_lshl_add_u32 v{t+4}, v{t+2}, 4, v{t+4}")
    a.i(f"s_lshl_b32 s{T0}, s{S_RB}, 16")
    a.i(f"s_lshl_b32 s{T1}, s{S_CB}, 7")
    a.i(f"s_add_u32 s{T0}, s{T0}, s{T1}")
    a.i("s_waitcnt lgkmcnt(0)")
    a.i("s_barrier")
    R = ACC_A
    for half in range(2):
        for w in range(4):
            for p in range(2):
                r = R + half * 32 + w * 8 + p * 4
                off = w * WSZ + half * 8 * PITCH + p * 16
                if off > 65535:
                    raise Exception("offset")
                a.i(f"ds_read_b128 v[{r}:{r+3}], v{t+3} offset:{off}")
    for half in range(2):
        a.i(f"s_waitcnt lgkmcnt({8 if half == 0 else 0})")
        b = R + half * 32
        for j in range(8):
            a.i(f"v_add_f32 v{b+j}, v{b+j}, v{b+8+j}")
            a.i(f"v_add_f32 v{b+16+j}, v{b+16+j}, v{b+24+j}")
        for j in range(8):
            a.i(f"v_add_f32 v{b+j}, v{b+j}, v{b+16+j}")
        for j in range(4):
            a.i(f"v_cvt_pk_bf16_f32 v{b+8+j}, v{b+2*j}, v{b+2*j+1}")
        a.i(f"buffer_store_dwordx4 v[{b+8}:{b+11}], v{t+4}, s[{S_OUT}:{S_OUT+3}], s{T0} offen offset:0" if half == 0 else
            f"s_add_u32 s{T0}, s{T0}, 8192")
        if half == 1:
            a.i(f"buffer_store_dwordx4 v[{b+8}:{b+11}], v{t+4}, s[{S_OUT}:{S_OUT+3}], s{T0} offen")
    a.label("K2_done")
    a.i("s_endpgm")
    lds = max(4 * D * 2048, 4 * WSZ)
    return a.text(), lds, 8 * D


def kd(name, nv, accum, nsgpr=102):
    return f""".p2align 6
.amdhsa_kernel {name}
  .amdhsa_next_free_vgpr {nv}
  .amdhsa_next_free_sgpr {nsgpr}
  .amdhsa_accum_offset {accum}
  .amdhsa_group_segment_fixed_size 0
  .amdhsa_kernarg_size 88
  .amdhsa_user_sgpr_count 2
  .amdhsa_user_sgpr_kernarg_segment_ptr 1
  .amdhsa_system_sgpr_workgroup_id_x 1
  .amdhsa_float_denorm_mode_32 3
.end_amdhsa_kernel"""


def build(c1=None, c2=None):
    c1 = c1 or K1Cfg()
    c2 = c2 or K2Cfg()
    k1 = gen_k1(c1)
    k2, lds2, na2 = gen_k2(c2)
    hdr = f"""; gated_mix: linear attention block + SwiGLU block, gated mix.  Generated by gen/gen.py
; @launch kernel=k1_kernel grid=(256,1,1) block=(256,1,1) lds={K1_LDS}
; @launch kernel=k2_kernel grid=(256,1,1) block=(256,1,1) lds={lds2}
.amdgcn_target "amdgcn-amd-amdhsa--gfx950"
.text
"""
    tail = """
.p2align 8
CODE_END:
    s_endpgm
.section .rodata,"a"
"""
    return hdr + k1 + "\n" + k2 + tail + kd("k1_kernel", 384, 256) + "\n" + kd("k2_kernel", 256 + na2, 256) + "\n"


if __name__ == "__main__":
    out = sys.argv[1] if len(sys.argv) > 1 else f"cdna_kernels/{NAME}.s"
    open(out, "w").write(build())
    print("wrote", out)
```

```python
def gen(name, NW, DEPTH, mode, lds=False, steps_total=144, aux=""):
    STEPS = steps_total // NW
    L = []
    a = L.append
    a(f".globl {name}\n.p2align 8\n.type {name},@function\n{name}:")
    a("s_cmp_ge_u32 s2, 256\ns_cbranch_scc1 L_done_%s" % name)
    a("s_load_dwordx4 s[4:7], s[0:1], 0")
    a("s_load_dwordx2 s[8:9], s[0:1], 16")
    a("s_memrealtime s[10:11]")
    a("s_and_b32 s12, s2, 7")
    a("s_lshr_b32 s13, s2, 3")
    if mode == 0:
        a("s_lshr_b32 s14, s13, 3\ns_lshl_b32 s15, s12, 2\ns_add_u32 s14, s14, s15")
        a("s_and_b32 s15, s13, 7")
    elif mode == 1:
        a("s_lshr_b32 s14, s12, 1\ns_lshl_b32 s14, s14, 3\ns_lshr_b32 s15, s13, 2\ns_add_u32 s14, s14, s15")
        a("s_and_b32 s15, s12, 1\ns_lshl_b32 s15, s15, 2\ns_and_b32 s16, s13, 3\ns_add_u32 s15, s15, s16")
    else:
        a("s_lshr_b32 s14, s2, 3\ns_and_b32 s15, s2, 7")
    a("v_lshrrev_b32 v1, 6, v0\nv_and_b32 v2, 63, v0\nv_lshlrev_b32 v2, 4, v2")
    a(f"v_mul_u32_u24 v1, {STEPS*1024}, v1\nv_add_u32 v2, v1, v2")
    a(f"s_mul_i32 s16, s14, {2*steps_total*1024}\ns_mul_i32 s17, s15, {2*steps_total*1024}")
    a("v_add_u32 v4, s16, v2")
    a(f"v_add_u32 v5, {steps_total*1024}, v4")
    a("v_add_u32 v6, s17, v2")
    a(f"v_add_u32 v7, {steps_total*1024}, v6")
    a("v_mov_b32 v8, 0")
    a("v_lshrrev_b32 v1, 6, v0\ns_nop 0\nv_readfirstlane_b32 s30, v1")
    a(f"s_mul_i32 s30, s30, {DEPTH*4096}")
    a("s_waitcnt lgkmcnt(0)")
    a(f"s_mov_b32 s20, s4\ns_and_b32 s21, s5, 0xffff\ns_mov_b32 s22, {64*steps_total*1024}\ns_mov_b32 s23, 0x20000")
    a(f"s_mov_b32 s24, s6\ns_and_b32 s25, s7, 0xffff\ns_mov_b32 s26, {16*steps_total*1024}\ns_mov_b32 s27, 0x20000")
    def issue(s):
        d = s % DEPTH
        a(f"s_mov_b32 s28, {s*1024}")
        for i, (vo, srd) in enumerate((("v4","s[20:23]"),("v5","s[20:23]"),("v6","s[24:27]"),("v7","s[24:27]"))):
            if lds:
                a(f"s_add_u32 s31, s30, {d*4096+i*1024}\ns_mov_b32 m0, s31\ns_nop 0")
                a(f"buffer_load_dwordx4 {vo}, {srd}, s28 offen lds {aux}")
            else:
                r = 16 + d*16 + i*4
                a(f"buffer_load_dwordx4 v[{r}:{r+3}], {vo}, {srd}, s28 offen {aux}")
    for s in range(min(DEPTH, STEPS)):
        issue(s)
    for s in range(STEPS):
        inflight_after = min(DEPTH-1, STEPS-1-s)
        a(f"s_waitcnt vmcnt({4*inflight_after})")
        d = s % DEPTH
        if not lds:
            for i in range(4):
                r = 16 + d*16 + i*4
                a(f"v_xor_b32 v8, v8, v{r}")
        if s + DEPTH < STEPS:
            issue(s + DEPTH)
    a("s_barrier")
    a("s_memrealtime s[12:13]")
    a("s_waitcnt lgkmcnt(0)")
    a("v_mov_b32 v10, s10\nv_mov_b32 v11, s11\nv_mov_b32 v12, s12\nv_mov_b32 v13, s13")
    a("s_lshl_b32 s14, s2, 4\nv_mov_b32 v9, s14")
    a("v_cmp_eq_u32 vcc, 0, v0\ns_and_saveexec_b64 s[16:17], vcc")
    a("s_cbranch_execz L_done_%s" % name)
    a("global_store_dwordx4 v9, v[10:13], s[8:9]")
    a(f"L_done_{name}:\ns_endpgm")
    nv = 16 + DEPTH*16
    nv = (nv + 7)//8*8
    kd = f""".amdhsa_kernel {name}
  .amdhsa_next_free_vgpr {nv}
  .amdhsa_next_free_sgpr 40
  .amdhsa_accum_offset {nv}
  .amdhsa_group_segment_fixed_size 0
  .amdhsa_kernarg_size 24
  .amdhsa_user_sgpr_count 2
  .amdhsa_user_sgpr_kernarg_segment_ptr 1
  .amdhsa_system_sgpr_workgroup_id_x 1
.end_amdhsa_kernel"""
    return "\n".join(L), kd, (NW*DEPTH*4096 if lds else 0)

def file(configs):
    hdr, body, kds = [], [], []
    for c in configs:
        name = c["name"]
        b, kd, lds = gen(**c)
        hdr.append(f"; @launch kernel={name} grid=(256,1,1) block=({c['NW']*64},1,1) lds={lds}")
        body.append(b); kds.append(".p2align 6\n" + kd)
    return "\n".join(hdr) + '\n.amdgcn_target "amdgcn-amd-amdhsa--gfx950"\n.text\n' + "\n".join(body) + '\n.section .rodata,"a"\n' + "\n".join(kds) + "\n"

if __name__ == "__main__":
    cfgs = []
    for lds in (False, True):
        for NW, D in ((4,2),(4,4),(4,8),(4,12),(8,2),(8,4),(8,6),(16,2),(16,3)):
            if lds and NW*D*4096 > 160*1024: continue
            cfgs.append(dict(name=f"bw_{'l' if lds else 'v'}_w{NW}_d{D}_kernel", NW=NW, DEPTH=D, mode=0, lds=lds))
    open("bw_asm.s","w").write(file(cfgs))
```

```python
def prolog(name, a):
    a(f".globl {name}\n.p2align 8\n.type {name},@function\n{name}:")
    a("s_cmp_ge_u32 s2, 256\ns_cbranch_scc1 L_done_%s" % name)
    a("s_load_dwordx4 s[4:7], s[0:1], 0")
    a("s_load_dwordx2 s[8:9], s[0:1], 16")
    a("s_memrealtime s[10:11]")
def epilog(name, a):
    a("s_barrier")
    a("s_memrealtime s[12:13]")
    a("s_waitcnt lgkmcnt(0)")
    a("v_mov_b32 v10, s10\nv_mov_b32 v11, s11\nv_mov_b32 v12, s12\nv_mov_b32 v13, s13")
    a("s_lshl_b32 s14, s2, 4\nv_mov_b32 v9, s14")
    a("v_cmp_eq_u32 vcc, 0, v0\ns_and_saveexec_b64 s[16:17], vcc")
    a("s_cbranch_execz L_done_%s" % name)
    a("global_store_dwordx4 v9, v[10:13], s[8:9]")
    a(f"L_done_{name}:\ns_endpgm")
def kd(name, nv):
    return f""".amdhsa_kernel {name}
  .amdhsa_next_free_vgpr {nv}
  .amdhsa_next_free_sgpr 40
  .amdhsa_accum_offset {nv}
  .amdhsa_group_segment_fixed_size 0
  .amdhsa_kernarg_size 24
  .amdhsa_user_sgpr_count 2
  .amdhsa_user_sgpr_kernarg_segment_ptr 1
  .amdhsa_system_sgpr_workgroup_id_x 1
.end_amdhsa_kernel"""

def gen_unique(name, NW, KB_per_wg, interleave):
    L=[]; a=L.append
    prolog(name,a)
    per_wave = KB_per_wg // NW
    a("v_lshrrev_b32 v1, 6, v0\nv_and_b32 v2, 63, v0\nv_lshlrev_b32 v2, 4, v2")
    if interleave == 0:
        a(f"v_mul_u32_u24 v1, {per_wave*1024}, v1\nv_add_u32 v2, v1, v2")
        a(f"s_mul_i32 s16, s2, {KB_per_wg*1024}\nv_add_u32 v4, s16, v2")
        step = 1024
    else:
        a(f"v_mul_u32_u24 v1, {256*1024}, v1\nv_add_u32 v2, v1, v2")
        a(f"s_lshl_b32 s16, s2, 10\nv_add_u32 v4, s16, v2")
        step = NW*256*1024
    a("v_mov_b32 v8, 0")
    a("s_waitcnt lgkmcnt(0)")
    a(f"s_mov_b32 s20, s4\ns_and_b32 s21, s5, 0xffff\ns_mov_b32 s22, {64*144*1024}\ns_mov_b32 s23, 0x20000")
    for i in range(per_wave):
        a(f"s_mov_b32 s28, {i*step}")
        r = 16 + i*4
        a(f"buffer_load_dwordx4 v[{r}:{r+3}], v4, s[20:23], s28 offen")
    a("s_waitcnt vmcnt(0)")
    for i in range(per_wave):
        a(f"v_xor_b32 v8, v8, v{16+i*4}")
    epilog(name,a)
    nv = (16+per_wave*4+7)//8*8
    return "\n".join(L), kd(name,nv), NW

def gen_flushread(name):
    L=[]; a=L.append
    a(f".globl {name}\n.p2align 8\n.type {name},@function\n{name}:")
    a("s_cmp_ge_u32 s2, 256\ns_cbranch_scc1 L_done_%s" % name)
    a("s_load_dwordx2 s[4:5], s[0:1], 0")
    a("v_lshlrev_b32 v2, 4, v0")
    a("s_lshl_b32 s16, s2, 21\nv_add_u32 v4, s16, v2")
    a("s_waitcnt lgkmcnt(0)")
    a(f"s_mov_b32 s20, s4\ns_and_b32 s21, s5, 0xffff\ns_mov_b32 s22, {512<<20}\ns_mov_b32 s23, 0x20000")
    a("s_mov_b32 s28, 0")
    a(f"L_loop_{name}:")
    for i in range(4):
        a(f"buffer_load_dwordx4 v[{16+i*4}:{19+i*4}], v4, s[20:23], s28 offen\ns_add_u32 s28, s28, 16384")
    a("s_waitcnt vmcnt(0)")
    a(f"s_cmp_lt_u32 s28, {1<<21}\ns_cbranch_scc1 L_loop_{name}")
    a(f"L_done_{name}:\ns_endpgm")
    return "\n".join(L), kd(name,32), 16

def gen_tlbwarm(name):
    L=[]; a=L.append
    a(f".globl {name}\n.p2align 8\n.type {name},@function\n{name}:")
    a("s_cmp_ge_u32 s2, 256\ns_cbranch_scc1 L_done_%s" % name)
    a("s_load_dwordx4 s[4:7], s[0:1], 0")
    a("v_lshlrev_b32 v4, 16, v0")
    a("s_waitcnt lgkmcnt(0)")
    a(f"s_mov_b32 s20, s4\ns_and_b32 s21, s5, 0xffff\ns_mov_b32 s22, {64*144*1024}\ns_mov_b32 s23, 0x20000")
    a(f"s_mov_b32 s24, s6\ns_and_b32 s25, s7, 0xffff\ns_mov_b32 s26, {16*144*1024}\ns_mov_b32 s27, 0x20000")
    a("buffer_load_dword v16, v4, s[20:23], 0 offen")
    a("buffer_load_dword v17, v4, s[24:27], 0 offen")
    a("s_waitcnt vmcnt(0)")
    a(f"L_done_{name}:\ns_endpgm")
    return "\n".join(L), kd(name,32), 4

import gen_bw
def file(items):
    hdr, body, kds = [], [], []
    for name, (b, k, NW), lds in items:
        hdr.append(f"; @launch kernel={name} grid=(256,1,1) block=({NW*64},1,1) lds={lds}")
        body.append(b); kds.append(".p2align 6\n" + k)
    return "\n".join(hdr) + '\n.amdgcn_target "amdgcn-amd-amdhsa--gfx950"\n.text\n' + "\n".join(body) + '\n.section .rodata,"a"\n' + "\n".join(kds) + "\n"
items = []
items.append(("flushread_kernel", gen_flushread("flushread_kernel"), 0))
items.append(("tlbwarm_kernel", gen_tlbwarm("tlbwarm_kernel"), 0))
for NW, KB, il in ((4,36,0),(4,36,1),(8,32,0),(8,32,1),(4,8,0),(4,8,1)):
    n = f"uniq_w{NW}_kb{KB}_i{il}_kernel"
    items.append((n, gen_unique(n, NW, KB, il), 0))
b, k, lds = gen_bw.gen(name="bw_v_w8_d4_kernel", NW=8, DEPTH=4, mode=0)
items.append(("bw_v_w8_d4_kernel", (b, k, 8), 0))
open("bw2_asm.s","w").write(file(items))
```

```python
from gen_bw2 import kd as kd0
def kd(name, nv, acc):
    return f""".amdhsa_kernel {name}
  .amdhsa_next_free_vgpr {nv}
  .amdhsa_next_free_sgpr 40
  .amdhsa_accum_offset {acc}
  .amdhsa_group_segment_fixed_size 0
  .amdhsa_kernarg_size 24
  .amdhsa_user_sgpr_count 2
  .amdhsa_user_sgpr_kernarg_segment_ptr 1
  .amdhsa_system_sgpr_workgroup_id_x 1
.end_amdhsa_kernel"""
def gen(name, NW, shape, lds_per, iters, nvalu=0, agpr=False):
    L=[]; a=L.append
    a(f".globl {name}\n.p2align 8\n.type {name},@function\n{name}:")
    a("s_cmp_ge_u32 s2, 256\ns_cbranch_scc1 L_done_%s" % name)
    a("s_load_dwordx4 s[4:7], s[0:1], 0\ns_load_dwordx2 s[8:9], s[0:1], 16")
    a("v_lshlrev_b32 v1, 4, v0\ns_lshl_b32 s3, s2, 14\ns_waitcnt lgkmcnt(0)")
    a(f"s_mov_b32 s20, s4\ns_and_b32 s21, s5, 0xffff\ns_mov_b32 s22, {64*144*1024}\ns_mov_b32 s23, 0x20000")
    for i in range(16):
        a(f"s_add_u32 s24, s3, {i*8192}\nbuffer_load_dwordx4 v[{64+4*i}:{67+4*i}], v1, s[20:23], s24 offen")
    a("s_waitcnt vmcnt(0)")
    for i in range(8):
        a(f"ds_write_b128 v1, v[{64+4*i}:{67+4*i}] offset:{i*8192}")
    if agpr:
        for i in range(32):
            a(f"v_accvgpr_write_b32 a{i}, v{64+i}")
    a("v_and_b32 v2, 63, v0\nv_lshlrev_b32 v2, 4, v2")
    for i in range(64): a(f"v_mov_b32 v{i if i>2 else 3}, 0") if False else None
    a("s_waitcnt lgkmcnt(0)\ns_barrier")
    a("s_memrealtime s[10:11]\ns_memtime s[14:15]")
    a(f"s_mov_b32 s25, {iters}")
    a("s_waitcnt lgkmcnt(0)")
    a(f"L_loop_{name}:")
    rd = 0
    acc = 0.0
    for u in range(16):
        A = f"a[{4*(u%8)}:{4*(u%8)+3}]" if agpr else f"v[{64+4*(u%8)}:{67+4*(u%8)}]"
        B = f"v[{96+4*((u*3)%8)}:{99+4*((u*3)%8)}]"
        B2 = f"v[{96+4*((u*3+1)%8)}:{99+4*((u*3+1)%8)}]"
        if shape == 32:
            d = 128 + 16*(u%4)
            a(f"v_mfma_f32_32x32x16_bf16 v[{d}:{d+15}], {A}, {B}, v[{d}:{d+15}]")
        else:
            d = 128 + 8*(u%8)
            a(f"v_mfma_f32_16x16x32_bf16 v[{d}:{d+3}], {A}, {B}, v[{d}:{d+3}]")
            a(f"v_mfma_f32_16x16x32_bf16 v[{d+4}:{d+7}], {A}, {B2}, v[{d+4}:{d+7}]")
        acc += lds_per
        while acc >= 1.0:
            tgt = 96 + 4*(((u+5)*3)%8)
            a(f"s_waitcnt lgkmcnt(3)\nds_read_b128 v[{tgt}:{tgt+3}], v2 offset:{(rd%48)*1024}")
            rd += 1; acc -= 1.0
        for k in range(nvalu):
            a(f"v_fma_f32 v{4+k}, v{64+k}, v{65+k}, v{4+k}")
    a(f"s_sub_u32 s25, s25, 1\ns_cmp_lg_u32 s25, 0\ns_cbranch_scc1 L_loop_{name}")
    a("s_waitcnt lgkmcnt(0)\ns_nop 15\ns_barrier")
    a("s_memrealtime s[12:13]\ns_memtime s[16:17]\ns_waitcnt lgkmcnt(0)")
    a("v_mov_b32 v10, s10\nv_mov_b32 v11, s11\nv_mov_b32 v12, s12\nv_mov_b32 v13, s13")
    a("v_mov_b32 v14, s14\nv_mov_b32 v15, s15\nv_mov_b32 v16, s16\nv_mov_b32 v17, s17")
    a("s_lshl_b32 s14, s2, 5\nv_mov_b32 v9, s14")
    a("v_cmp_eq_u32 vcc, 0, v0\ns_and_saveexec_b64 s[16:17], vcc")
    a("s_cbranch_execz L_done_%s" % name)
    a("global_store_dwordx4 v9, v[10:13], s[8:9]\nglobal_store_dwordx4 v9, v[14:17], s[8:9] offset:16")
    a(f"L_done_{name}:\ns_endpgm")
    return "\n".join(L), kd(name, 224, 192), NW
def file(items):
    hdr, body, kds = [], [], []
    for name, (b, k, NW), lds in items:
        hdr.append(f"; @launch kernel={name} grid=(256,1,1) block=({NW*64},1,1) lds={lds}")
        body.append(b); kds.append(".p2align 6\n" + k)
    return "\n".join(hdr) + '\n.amdgcn_target "amdgcn-amd-amdhsa--gfx950"\n.text\n' + "\n".join(body) + '\n.section .rodata,"a"\n' + "\n".join(kds) + "\n"
items=[]
for NW in (4, 8):
    it = 22 if NW == 4 else 11
    for shape in (32, 16):
        for lp in (0, 0.5, 1):
            n = f"mf_w{NW}_s{shape}_l{int(lp*2)}_kernel"
            items.append((n, gen(n, NW, shape, lp, it), 65536+8192))
n="mf_w8_s32_l2_v3_kernel"; items.append((n, gen(n, 8, 32, 1, 11, nvalu=3), 65536+8192))
n="mf_w8_s32_l2_agpr_kernel"; items.append((n, gen(n, 8, 32, 1, 11, agpr=True), 65536+8192))
n="mf_w4_s32_l0_long_kernel"; items.append((n, gen(n, 4, 32, 0, 220), 65536+8192))
n="mf_w4_s16_l0_long_kernel"; items.append((n, gen(n, 4, 16, 0, 220), 65536+8192))
n="mf_w4_s32_l0_short_kernel"; items.append((n, gen(n, 4, 32, 0, 6), 65536+8192))
open("mf_asm.s","w").write(file(items))
```

```python
import sys

NAME = "gated_mix__linear_attn_block__glu_gated_swiglu__prompt"

AF_OFF = 0
AF_TT = 144 * 1024
AF_SIZE = 64 * AF_TT
KVT_OFF = AF_SIZE
KVT_HEAD = 1152
KVT_SIZE = 32 * KVT_HEAD
G_OFF = KVT_OFF + KVT_SIZE
G_SIZE = 2048 * 8
WS_USED = G_OFF + G_SIZE

STAMP_OFF = 16 << 20
DIAG = False

LOG2E = 0x3FB8AA3B
NLOG2E = 0xBFB8AA3B
EPS = 0x358637BD


class Asm:
    def __init__(self):
        self.L = []
        self.n = 0
        self.vm = []
        self.vm_done = 0
        self.ds = []
        self.ds_done = 0
        self.mfma_w = {}

    def raw(self, s):
        self.L.append(s)

    def i(self, s):
        self.L.append("    " + s)
        self.n += 1

    def label(self, s):
        self.L.append(s + ":")

    def vmem(self, tag, s):
        self.i(s)
        self.vm.append(tag)

    def dsop(self, tag, s):
        self.i(s)
        self.ds.append(tag)

    def _need(self, lst, tags):
        last = -1
        for k, t in enumerate(lst):
            if t in tags:
                last = k
        return last

    def wait(self, vm=(), ds=(), vm_all=False, ds_all=False):
        parts = []
        if vm_all:
            lv = len(self.vm) - 1
        else:
            lv = self._need(self.vm, set(vm)) if vm else -1
        if lv >= self.vm_done:
            n = len(self.vm) - 1 - lv
            assert n <= 63, n
            parts.append(f"vmcnt({n})")
            self.vm_done = lv + 1
        if ds_all:
            ld = len(self.ds) - 1
        else:
            ld = self._need(self.ds, set(ds)) if ds else -1
        if ld >= self.ds_done:
            n = len(self.ds) - 1 - ld
            if n > 15:
                n = 15
                ld = len(self.ds) - 1 - 15
            parts.append(f"lgkmcnt({n})")
            self.ds_done = ld + 1
        if parts:
            self.i("s_waitcnt " + " ".join(parts))

    def nop(self, k):
        while k > 0:
            c = min(k, 16)
            self.L.append(f"    s_nop {c-1}")
            self.n += c
            k -= c

    def mfma(self, d, a, b, c):
        cs = "0" if c is None else f"v[{c}:{c+15}]"
        self.i(f"v_mfma_f32_32x32x16_bf16 v[{d}:{d+15}], {a}, {b}, {cs}")
        self.mfma_w[d] = self.n

    def need_acc(self, d, dist=13):
        if d in self.mfma_w:
            gap = self.n - self.mfma_w[d]
            if gap < dist:
                self.nop(dist - gap)

    def text(self):
        return "\n".join(self.L)


def stamp(a, k, base=16):
    if DIAG:
        a.i(f"s_memrealtime s[{base+2*k}:{base+2*k+1}]")


def stamp_flush(a, kern, nst, ws_ptr_srd, base=16, t0=38):
    if not DIAG:
        return
    a.i("s_waitcnt vmcnt(0)")
    stamp(a, nst - 1, base)
    a.i("s_waitcnt lgkmcnt(0)")
    a.i("v_cmp_eq_u32 vcc, 0, v0")
    a.i("s_and_saveexec_b64 s[94:95], vcc")
    a.i(f"s_cbranch_execz STAMP_skip_{a.n}")
    lbl = f"STAMP_skip_{a.n-1}"
    a.L[-1] = f"    s_cbranch_execz {lbl}"
    a.i(f"s_mov_b32 s{ws_ptr_srd+2}, {STAMP_OFF + 65536}")
    a.i(f"s_lshl_b32 s3, s2, 6")
    a.i(f"s_add_u32 s3, s3, {STAMP_OFF + kern*16384}")
    a.i("v_mov_b32 v2, 0")
    for k in range(nst):
        src = t0 if k == 0 else base + 2 * k
        a.i(f"v_mov_b32 v4, s{src}")
        a.i(f"v_mov_b32 v5, s{src+1}")
        a.i(f"buffer_store_dwordx2 v[4:5], v2, s[{ws_ptr_srd}:{ws_ptr_srd+3}], s3 offen offset:{8*k}")
        a.i("s_nop 1")
    a.label(lbl)


def srd(a, s, ptr, size):
    a.i(f"s_mov_b32 s{s}, s{ptr}")
    a.i(f"s_and_b32 s{s+1}, s{ptr+1}, 0xffff")
    a.i(f"s_mov_b32 s{s+2}, {size}")
    a.i(f"s_mov_b32 s{s+3}, 0x20000")


class K1Cfg:
    store_aux = "sc1"
    fill_per_gap = 40
    ahead = 5
    pf_w2 = True


S_X, S_A, S_B, S_WS, S_GW, S_DBG, S_W2, S_WO = 40, 44, 48, 52, 56, 60, 64, 68
S_XCD, S_IDX, S_WAVE, S_TILE0, S_PITCH, S_COLA, S_COLB, S_UNIT = 4, 5, 6, 7, 8, 9, 10, 11
S_T0, S_T1, S_T2, S_T3 = 12, 13, 14, 15
S_XKF = 72
S_WK = 80
S_M0X = 88
S_M0W = 89
S_ST = 90
S_C1, S_C2, S_C3 = 91, 92, 93
S_MASK = 94
S_TMP = 96
S_P = 97
S_SAVE = 98
S_PR, S_CT = 100, 101
S_XKP = 30
S_LB = 34

V_LANE = 1
V_WA, V_WB, V_XD = 2, 3, 4
V_WT = 5
V_STO = 6
V_ZS = 7
V_XF = 8
V_T = 12
V_XFR = 20
V_E = 44
V_KV = 48
V_ACC = 64

SLOT = 40960
BUF = [0, SLOT, 2 * SLOT, 3 * SLOT]
K1_LDS = 3 * SLOT + 32768


def dma_stage_ops(i, nm):
    slot = BUF[i % 3]
    ops = []
    for seg, (va, sr) in enumerate(((V_WA, S_A), (V_WB, S_B))):
        ops.append([("s", None, f"s_add_u32 m0, s{S_M0W}, {slot + seg*8192}"),
                    ("s", None, "s_nop 0"),
                    ("v", f"S{i}", f"buffer_load_dwordx4 v{va}, s[{sr}:{sr+3}], s{S_WK+i} offen lds")])
    for m in range(nm):
        ops.append([("s", None, f"s_add_u32 m0, s{S_M0X}, {slot + 16384 + m*8192}"),
                    ("s", None, f"s_add_u32 s{S_TMP}, s{S_XKF+i}, {m*65536}"),
                    ("v", f"S{i}", f"buffer_load_dwordx4 v{V_XD}, s[{S_X}:{S_X+3}], s{S_TMP} offen lds")])
    return ops


def dma_tile_ops(lj, tile, buf):
    ops = []
    for m in range(4):
        ops.append([("s", None, f"s_add_u32 m0, s{S_M0X}, {buf + m*8192}"),
                    ("s", None, f"s_add_u32 s{S_TMP}, s{S_XKP+m}, {tile*32768}"),
                    ("v", f"L{lj}", f"buffer_load_dwordx4 v{V_XD}, s[{S_X}:{S_X+3}], s{S_TMP} offen lds")])
    return ops


def emit_group(a, grp):
    for kind, tag, text in grp:
        if kind == "v":
            a.vmem(tag, text)
        else:
            a.i(text)


def k1_prologue(a):
    a.i("s_cmp_ge_u32 s2, 256")
    a.i("s_cbranch_scc1 K1_done")
    if DIAG:
        a.i("s_memrealtime s[38:39]")
    a.i("s_load_dwordx16 s[16:31], s[0:1], 0")
    a.i("s_load_dwordx4 s[32:35], s[0:1], 64")
    a.i("s_load_dwordx2 s[36:37], s[0:1], 80")
    a.i("s_getpc_b64 s[98:99]")
    a.label("K1_pc")
    a.i(f"s_and_b32 s{S_XCD}, s2, 7")
    a.i(f"s_lshr_b32 s{S_IDX}, s2, 3")
    a.i(f"v_and_b32 v{V_LANE}, 63, v0")
    a.i(f"v_lshrrev_b32 v{V_T}, 6, v0")
    a.i(f"s_lshl_b32 s{S_T0}, s{S_IDX}, 11")
    a.i(f"v_readfirstlane_b32 s{S_WAVE}, v{V_T}")
    a.i(f"v_lshlrev_b32 v{V_T+1}, 7, v0")
    a.i(f"v_add_u32 v{V_T+1}, s{S_T0}, v{V_T+1}")
    a.i(f"v_min_u32 v{V_T+1}, CODE_END-K1_pc-4, v{V_T+1}")
    a.i("v_cmp_gt_u32 vcc, 16, v0")
    a.i("s_and_saveexec_b64 s[94:95], vcc")
    a.i("s_cbranch_execz K1_nopf")
    a.i(f"global_load_dword v{V_E}, v{V_T+1}, s[98:99]")
    a.label("K1_nopf")
    a.i("s_mov_b64 exec, s[94:95]")
    a.i(f"s_lshr_b32 s{S_PR}, s{S_WAVE}, 2")
    a.i(f"s_and_b32 s{S_CT}, s{S_WAVE}, 3")
    a.i(f"s_mul_i32 s{S_T0}, s{S_IDX}, 43")
    a.i(f"s_lshr_b32 s{S_T0}, s{S_T0}, 8")
    a.i(f"s_mul_i32 s{S_T1}, s{S_T0}, 6")
    a.i(f"s_sub_u32 s{S_P}, s{S_IDX}, s{S_T1}")
    a.i(f"s_lshl_b32 s{S_T0}, s{S_T0}, 3")
    a.i(f"s_add_u32 s{S_UNIT}, s{S_T0}, s{S_XCD}")
    a.i(f"s_mul_i32 s{S_TILE0}, s{S_P}, 11")
    a.i(f"s_max_u32 s{S_T0}, s{S_P}, 3")
    a.i(f"s_sub_u32 s{S_T0}, s{S_T0}, 3")
    a.i(f"s_sub_u32 s{S_TILE0}, s{S_TILE0}, s{S_T0}")
    a.i(f"s_lshl_b32 s{S_COLA}, s{S_UNIT}, 7")
    a.i(f"s_mov_b32 s{S_COLB}, s{S_COLA}")
    a.i(f"s_sub_u32 s{S_T0}, s{S_UNIT}, 28")
    a.i(f"s_lshl_b32 s{S_T0}, s{S_T0}, 8")
    a.i(f"s_add_u32 s{S_T1}, s{S_T0}, 128")
    a.i(f"s_cmp_ge_u32 s{S_UNIT}, 28")
    a.i(f"s_cselect_b32 s{S_COLA}, s{S_T0}, s{S_COLA}")
    a.i(f"s_cselect_b32 s{S_COLB}, s{S_T1}, s{S_COLB}")
    a.i("s_cselect_b32 s3, 1, 0")
    a.i(f"s_lshl_b32 s{S_T0}, s{S_XCD}, 7")
    a.i(f"s_add_u32 s{S_T1}, s{S_T0}, 2048")
    a.i(f"s_add_u32 s{S_T0}, s{S_T0}, 1024")
    a.i(f"s_sub_u32 s{S_T2}, s{S_IDX}, 24")
    a.i(f"s_lshl_b32 s{S_T3}, s{S_T2}, 3")
    a.i(f"s_cmp_ge_u32 s{S_IDX}, 24")
    a.i(f"s_cselect_b32 s{S_COLA}, s{S_T0}, s{S_COLA}")
    a.i(f"s_cselect_b32 s{S_COLB}, s{S_T1}, s{S_COLB}")
    a.i(f"s_cselect_b32 s{S_P}, s{S_T2}, s{S_P}")
    a.i(f"s_cselect_b32 s{S_TILE0}, s{S_T3}, s{S_TILE0}")
    a.i("s_cselect_b32 s3, 2, s3")
    a.i("s_cmp_eq_u32 s3, 0")
    a.i(f"s_movk_i32 s{S_T0}, 3584")
    a.i(f"s_movk_i32 s{S_T1}, 3072")
    a.i(f"s_cselect_b32 s{S_PITCH}, s{S_T0}, s{S_T1}")
    a.i(f"s_add_u32 s{S_T2}, s{S_TILE0}, s{S_PR}")
    a.i(f"s_lshl_b32 s{S_T2}, s{S_T2}, 15")
    a.i(f"s_lshl_b32 s{S_T3}, s{S_PITCH}, 6")
    for i in range(8):
        a.i(f"s_add_u32 s{S_T0}, s{S_XCD}, {i}")
        a.i(f"s_and_b32 s{S_T0}, s{S_T0}, 7")
        a.i(f"s_lshl_b32 s{S_T1}, s{S_T0}, 7")
        a.i(f"s_add_u32 s{S_XKF+i}, s{S_T1}, s{S_T2}")
        a.i(f"s_mul_i32 s{S_WK+i}, s{S_T0}, s{S_T3}")
    a.i(f"s_lshl_b32 s{S_M0W}, s{S_WAVE}, 10")
    a.i(f"s_lshl_b32 s{S_M0X}, s{S_PR}, 12")
    a.i(f"s_lshl_b32 s{S_T0}, s{S_CT}, 10")
    a.i(f"s_add_u32 s{S_M0X}, s{S_M0X}, s{S_T0}")
    t = V_T
    a.i(f"v_lshrrev_b32 v{t}, 3, v{V_LANE}")
    a.i(f"v_and_b32 v{t+1}, 7, v{V_LANE}")
    a.i(f"v_bfe_u32 v{t+2}, v{V_LANE}, 4, 1")
    a.i(f"v_lshlrev_b32 v{t+2}, 1, v{t+2}")
    a.i(f"v_xor_b32 v{t+3}, v{t+1}, v{t+2}")
    a.i(f"v_xor_b32 v{t+4}, 4, v{t+3}")
    a.i(f"s_lshl_b32 s{S_T0}, s{S_WAVE}, 3")
    a.i(f"v_add_u32 v{t+5}, s{S_T0}, v{t}")
    a.i(f"v_mul_lo_u32 v{t+5}, v{t+5}, s{S_PITCH}")
    a.i(f"v_lshl_add_u32 v{V_WA}, v{t+3}, 4, v{t+5}")
    a.i(f"v_add_u32 v{V_WA}, s{S_COLA}, v{V_WA}")
    a.i(f"v_lshl_add_u32 v{V_WB}, v{t+4}, 4, v{t+5}")
    a.i(f"v_add_u32 v{V_WB}, s{S_COLB}, v{V_WB}")
    a.i(f"s_lshl_b32 s{S_T0}, s{S_CT}, 3")
    a.i(f"v_add_u32 v{t+5}, s{S_T0}, v{t}")
    a.i(f"v_bfe_u32 v{t+6}, v{t+5}, 1, 3")
    a.i(f"v_xor_b32 v{t+6}, v{t+6}, v{t+1}")
    a.i(f"v_lshlrev_b32 v{t+5}, 10, v{t+5}")
    a.i(f"v_lshl_add_u32 v{V_XD}, v{t+6}, 4, v{t+5}")
    a.i("s_waitcnt lgkmcnt(0)")
    a.i("s_cmp_eq_u32 s3, 0")
    a.i(f"s_cselect_b32 s{S_A}, s24, s18")
    a.i(f"s_cselect_b32 s{S_A+1}, s25, s19")
    a.i(f"s_cselect_b32 s{S_B}, s26, s18")
    a.i(f"s_cselect_b32 s{S_B+1}, s27, s19")
    a.i(f"s_lshl_b32 s{S_A+2}, s{S_PITCH}, 9")
    a.i(f"s_and_b32 s{S_A+1}, s{S_A+1}, 0xffff")
    a.i(f"s_and_b32 s{S_B+1}, s{S_B+1}, 0xffff")
    a.i(f"s_mov_b32 s{S_B+2}, s{S_A+2}")
    a.i(f"s_mov_b32 s{S_A+3}, 0x20000")
    a.i(f"s_mov_b32 s{S_B+3}, 0x20000")
    srd(a, S_X, 16, 2048 * 1024)
    for i in range(3):
        ops = dma_stage_ops(i, 3)
        for grp in ops[:-1]:
            emit_group(a, grp)
        a.i("s_cmp_eq_u32 s3, 2")
        a.i(f"s_cbranch_scc1 K1_skip{i}")
        emit_group(a, ops[-1])
        a.label(f"K1_skip{i}")
    srd(a, S_WS, 36, WS_USED)
    srd(a, S_GW, 30, 1024)
    srd(a, S_DBG, 34, 256)
    srd(a, S_W2, 28, 1792 * 1024)
    srd(a, S_WO, 20, 512 * 1024)
    a.i(f"s_lshl_b32 s{S_T2}, s{S_TILE0}, 15")
    for m in range(4):
        a.i(f"s_add_u32 s{S_T0}, s{S_XCD}, s{S_PR}")
        a.i(f"s_add_u32 s{S_T0}, s{S_T0}, {2*m}")
        a.i(f"s_and_b32 s{S_T0}, s{S_T0}, 7")
        a.i(f"s_lshl_b32 s{S_T0}, s{S_T0}, 7")
        a.i(f"s_add_u32 s{S_XKP+m}, s{S_T0}, s{S_T2}")
    a.i(f"s_mov_b32 s{S_C1}, {LOG2E:#x}")
    a.i(f"s_mov_b32 s{S_C2}, {NLOG2E:#x}")
    a.i(f"s_mov_b32 s{S_C3}, {EPS:#x}")
    a.i(f"v_lshlrev_b32 v{V_STO}, 4, v{V_LANE}")
    a.i(f"v_and_b32 v{t}, 31, v{V_LANE}")
    a.i(f"v_lshrrev_b32 v{t+1}, 5, v{V_LANE}")
    a.i(f"v_bfe_u32 v{t+2}, v{t}, 1, 3")
    a.i(f"v_xor_b32 v{t+2}, v{t+2}, v{t+1}")
    a.i(f"v_lshlrev_b32 v{t}, 7, v{t}")
    a.i(f"s_lshl_b32 s{S_T0}, s{S_PR}, 12")
    a.i(f"v_add_u32 v{t}, s{S_T0}, v{t}")
    for s in range(4):
        a.i(f"v_xor_b32 v{t+3}, {2*s}, v{t+2}")
        a.i(f"v_lshl_add_u32 v{V_XF+s}, v{t+3}, 4, v{t}")
    a.i(f"v_bfe_u32 v{t}, v{V_LANE}, 4, 1")
    a.i(f"v_lshrrev_b32 v{t+1}, 5, v{V_LANE}")
    a.i(f"v_bfe_u32 v{t+2}, v{V_LANE}, 2, 2")
    a.i(f"v_bfe_u32 v{t+3}, v{V_LANE}, 1, 1")
    a.i(f"s_lshl_b32 s{S_T0}, s{S_CT}, 1")
    a.i(f"v_add_u32 v{t+3}, s{S_T0}, v{t+3}")
    a.i(f"v_bfe_u32 v{t+4}, v{V_LANE}, 3, 1")
    a.i(f"v_lshlrev_b32 v{t+4}, 1, v{t+4}")
    a.i(f"v_lshl_add_u32 v{t+4}, v{t}, 2, v{t+4}")
    a.i(f"v_xor_b32 v{t+3}, v{t+3}, v{t+4}")
    a.i(f"v_lshlrev_b32 v{t+5}, 13, v{t}")
    a.i(f"v_lshl_add_u32 v{t+5}, v{t+1}, 10, v{t+5}")
    a.i(f"v_lshl_add_u32 v{t+5}, v{t+2}, 7, v{t+5}")
    a.i(f"v_lshl_add_u32 v{t+5}, v{t+3}, 4, v{t+5}")
    a.i(f"v_and_b32 v{t+6}, 1, v{V_LANE}")
    a.i(f"v_lshl_add_u32 v{V_WT}, v{t+6}, 3, v{t+5}")
    cur0, cur1 = BUF[1], BUF[1] + 4096
    b0 = [BUF[3], BUF[0], BUF[3]]
    b1 = [BUF[2], BUF[1], BUF[1]]
    a.i(f"s_cmp_eq_u32 s{S_PR}, 0")
    for r in range(3):
        d0 = (b0[r] - cur0) & 0xffffffff
        d1 = (b1[r] - cur1) & 0xffffffff
        cur0, cur1 = b0[r], b1[r]
        a.i(f"s_mov_b32 s{S_T0}, {d0:#x}")
        a.i(f"s_mov_b32 s{S_T1}, {d1:#x}")
        a.i(f"s_cselect_b32 s{S_LB+r}, s{S_T0}, s{S_T1}")


def mk_ops(chk_blks):
    ops = []

    def V(cost, s, chk=False):
        def f(a, s=s, chk=chk):
            if chk:
                for b in chk_blks:
                    a.need_acc(b)
            a.i(s)
        ops.append((cost, f))
    return ops, V


def epi_mlp(cfg, acc, m):
    ops, V = mk_ops([acc])
    for r in range(8):
        V(4, f"v_mul_f32 v{acc+8+r}, v{acc+r}, v{acc+8+r}", chk=True)
    for r in range(8):
        V(4, f"v_mul_f32 v{acc+r}, s{S_C2}, v{acc+r}")
    for r in range(8):
        V(8, f"v_exp_f32 v{acc+r}, v{acc+r}")
    for r in range(8):
        V(4, f"v_add_f32 v{acc+r}, 1.0, v{acc+r}")
    for r in range(8):
        V(8, f"v_rcp_f32 v{acc+r}, v{acc+r}")
    for r in range(8):
        V(4, f"v_mul_f32 v{acc+8+r}, v{acc+r}, v{acc+8+r}")
    for j in range(4):
        V(4, f"v_cvt_pk_bf16_f32 v{acc+j}, v{acc+8+2*j}, v{acc+9+2*j}")

    def st(a):
        a.i(f"s_add_u32 s{S_TMP}, s{S_ST}, {2*m*AF_TT}")
        a.vmem("st", f"buffer_store_dwordx4 v[{acc}:{acc+3}], v{V_STO}, s[{S_WS}:{S_WS+3}], s{S_TMP} offen {cfg.store_aux}")
        a.nop(1)
    ops.append((12, st))
    return ops


def phi_ops(V, regs, tmp):
    for k, r in enumerate(regs):
        V(4, f"v_mul_f32 v{tmp+k}, s{S_C1}, v{r}", chk=True)
    for k, r in enumerate(regs):
        V(8, f"v_exp_f32_e64 v{tmp+k}, v{tmp+k} clamp")
    for k, r in enumerate(regs):
        V(4, f"v_max_f32 v{r}, 0, v{r}")
    for k, r in enumerate(regs):
        V(4, f"v_add_f32 v{r}, v{r}, v{tmp+k}")
    for k, r in enumerate(regs):
        V(4, f"v_add_f32 v{r}, s{S_C3}, v{r}")


def epi_q(cfg, acc, m):
    ops, V = mk_ops([acc])
    for half in range(2):
        regs = [acc + 8 * half + r for r in range(8)]
        phi_ops(V, regs, V_T)
        o = acc + 8 * half
        for j in range(4):
            V(4, f"v_cvt_pk_bf16_f32 v{o+j}, v{regs[2*j]}, v{regs[2*j+1]}")

        def st(a, o=o, half=half):
            a.i(f"s_add_u32 s{S_TMP}, s{S_ST}, {2*m*AF_TT + half*4096}")
            a.vmem("st", f"buffer_store_dwordx4 v[{o}:{o+3}], v{V_STO}, s[{S_WS}:{S_WS+3}], s{S_TMP} offen {cfg.store_aux}")
            a.nop(1)
        ops.append((12, st))
    return ops


def epi_kv(cfg, acc0, acc1, first):
    ops, V = mk_ops([acc0, acc1])
    for r in range(16):
        V(4, f"v_permlane16_swap_b32 v{acc0+r}, v{acc1+r}", chk=True)
    for half in range(2):
        phi_ops(V, [acc0 + 8 * half + r for r in range(8)], V_T)
    for j in range(8):
        V(4, f"v_cvt_pk_bf16_f32 v{acc1+j}, v{acc1+2*j}, v{acc1+2*j+1}")
    for r in range(16):
        if first and r == 0:
            V(4, f"v_mov_b32 v{V_ZS}, v{acc0}")
        else:
            V(4, f"v_add_f32 v{V_ZS}, v{V_ZS}, v{acc0+r}")
    for j in range(8):
        V(4, f"v_cvt_pk_bf16_f32 v{acc0+j}, v{acc0+2*j}, v{acc0+2*j+1}")

    def mm(a):
        a.nop(2)
        a.mfma(V_KV, f"v[{acc0}:{acc0+3}]", f"v[{acc1}:{acc1+3}]", None if first else V_KV)
        a.mfma(V_KV, f"v[{acc0+4}:{acc0+7}]", f"v[{acc1+4}:{acc1+7}]", V_KV)
    ops.append((24, mm))
    return ops


class K1State:
    pass


def k1_first_pass(a, cfg, kv):
    nm = 2 if kv else 3
    nl = 4 if kv else 5
    n1 = 2 * nm
    acc_blk = [V_ACC + 16 * k for k in range(4)]
    lbuf = [BUF[3], BUF[2], BUF[0], BUF[1], BUF[3]]
    a.vm, a.vm_done, a.ds, a.ds_done, a.mfma_w = ["pf"], 0, [], 0, {}
    for i in range(3):
        for grp in dma_stage_ops(i, nm):
            a.vm.append(f"S{i}")

    def opnds(q, xf):
        w = f"a[{4*q}:{4*q+3}]"
        x = f"v[{xf}:{xf+3}]"
        return (x, w) if kv else (w, x)

    def fp_reads(n):
        i, s = divmod(n, 4)
        L = []
        for rd in range(2):
            L.append((f"w{n}", f"ds_read_b64_tr_b16 a[{4*n+2*rd}:{4*n+2*rd+1}], v{V_WT} offset:{s*2048 + rd*512}"))
        for m in range(nm):
            xf = V_XFR + (n % 2) * 12 + 4 * m
            L.append((f"x{n}_{m}", f"ds_read_b128 v[{xf}:{xf+3}], v{V_XF+s} offset:{16384 + m*8192}"))
        return L

    st = K1State()
    st.nm, st.nl, st.n1, st.acc_blk, st.lbuf, st.opnds, st.kv = nm, nl, n1, acc_blk, lbuf, opnds, kv
    stamp(a, 1)
    a.wait(vm=["S0"])
    a.i("s_barrier")
    stamp(a, 2)
    for tag, text in fp_reads(0):
        a.dsop(tag, text)
    dma_q = []
    for n in range(32):
        i, s = divmod(n, 4)
        pre = []
        if s == 3:
            a.wait(ds_all=True)
            tgs = [f"S{i+1}"] if i < 7 else ["L0", "L1"]
            for tg in tgs:
                assert not any(op[1] == tg for g in dma_q for op in g), tg
                assert tg in a.vm
            a.wait(vm=tgs)
            a.i("s_barrier")
            if kv and i == 2:
                a.i(f"s_or_b32 s{S_T0}, s{S_P}, s{S_PR}")
                a.i(f"s_cmp_lg_u32 s{S_T0}, 0")
                a.i("s_cbranch_scc1 K1_kv_noflag")
                a.i("s_mov_b64 exec, 1")
                a.i(f"v_mov_b32 v{V_T}, 1")
                a.i(f"v_mov_b32 v{V_T+1}, 0")
                a.i(f"buffer_atomic_add v{V_T}, v{V_T+1}, s[{S_DBG}:{S_DBG+3}], s{S_UNIT} offen")
                a.i("s_mov_b64 exec, -1")
                a.label("K1_kv_noflag")
            if i + 3 <= 7:
                dma_q += dma_stage_ops(i + 3, nm)
            if i == 4:
                dma_q += dma_tile_ops(0, n1, lbuf[0])
            if i >= 5:
                dma_q += dma_tile_ops(i - 4, n1 + i - 4, lbuf[i - 4])
            if i < 7:
                d = (BUF[(i + 1) % 3] - BUF[i % 3]) & 0xffffffff
                pre = [f"v_add_u32 v{r}, {d:#x}, v{r}" for r in (V_WT, V_XF, V_XF + 1, V_XF + 2, V_XF + 3)]
            else:
                pre = [f"v_add_u32 v{r}, s{S_LB}, v{r}" for r in (V_XF, V_XF + 1, V_XF + 2, V_XF + 3)]
        for p in pre:
            a.i(p)
        if n < 31:
            fill = fp_reads(n + 1)
        else:
            fill = [lp_read(0, q) for q in range(3)]
        for m in range(nm):
            a.wait(ds=[f"w{n}", f"x{n}_{m}"])
            A, B = opnds(n, V_XFR + (n % 2) * 12 + 4 * m)
            a.mfma(acc_blk[m], A, B, None if n == 0 else acc_blk[m])
            k = 0
            while fill and k < 2:
                tag, text = fill.pop(0)
                a.dsop(tag, text)
                k += 1
            if dma_q:
                emit_group(a, dma_q.pop(0))
        while fill:
            tag, text = fill.pop(0)
            a.dsop(tag, text)
    st.dma_q = dma_q
    stamp(a, 3)
    return st


RING = 6


def lp_read(rd, q):
    i, s = divmod(q, 4)
    xf = V_XFR + 4 * ((rd * 32 + q) % RING)
    return (f"l{rd}_{q}", f"ds_read_b128 v[{xf}:{xf+3}], v{V_XF+s} offset:{i*4096}")


def k1_later(a, cfg, st, typ):
    nm, nl, n1, acc_blk, lbuf, opnds = st.nm, st.nl, st.n1, st.acc_blk, st.lbuf, st.opnds
    dma_q = list(st.dma_q)
    AH = cfg.ahead
    if typ == "mlp":
        a.i(f"s_lshl_b32 s{S_T0}, s{S_UNIT}, 2")
        a.i(f"s_add_u32 s{S_T0}, s{S_T0}, s{S_CT}")
    elif typ == "q":
        a.i(f"s_lshl_b32 s{S_T0}, s{S_UNIT}, 3")
        a.i(f"s_add_u32 s{S_T0}, s{S_T0}, s{S_CT}")
        a.i(f"s_sub_u32 s{S_T0}, s{S_T0}, {28*8-112}")
    if typ != "kv":
        a.i(f"s_lshl_b32 s{S_T0}, s{S_T0}, 10")
        a.i(f"s_add_u32 s{S_T1}, s{S_TILE0}, s{S_PR}")
        a.i(f"s_mul_i32 s{S_T1}, s{S_T1}, {AF_TT}")
        a.i(f"s_add_u32 s{S_ST}, s{S_T0}, s{S_T1}")
        if AF_OFF:
            a.i(f"s_add_u32 s{S_ST}, s{S_ST}, {AF_OFF}")
    for q in range(3, AH):
        tag, text = lp_read(0, q)
        a.dsop(tag, text)
    epi = []
    free_blk = acc_blk[nm:]

    def push_epi(blks, m, first=False):
        if typ == "mlp":
            ops = epi_mlp(cfg, blks[0], m)
        elif typ == "q":
            ops = epi_q(cfg, blks[0], m)
        else:
            ops = epi_kv(cfg, blks[0], blks[1], first)

        def rel(a, blks=blks):
            free_blk.extend(blks)
        ops.append((0, rel))
        epi.extend(ops)

    if typ == "kv":
        push_epi([acc_blk[0], acc_blk[1]], 0, first=True)
    else:
        for m in range(nm):
            push_epi([acc_blk[m]], m)
    extra = []
    if cfg.pf_w2 and typ != "kv":
        extra = pf_w2_ops()
    nrounds = (nl + 1) // 2
    pend = []

    def drain():
        while epi:
            c, f = epi.pop(0)
            f(a)

    for rd in range(nrounds):
        last_odd = (2 * rd + 1 >= nl)
        if last_odd:
            snap = (list(a.vm), a.vm_done, list(a.ds), a.ds_done, dict(a.mfma_w), list(epi), list(free_blk), a.n)
            a.i(f"s_cmp_eq_u32 s{S_PR}, 0")
            a.i(f"s_cbranch_scc1 K1_{typ}_last")
            stamp(a, 4)
            drain()
            stamp(a, 5)
            stamp_flush(a, 0, 7, S_WS)
            a.i("s_endpgm")
            a.label(f"K1_{typ}_last")
            a.vm, a.vm_done, a.ds, a.ds_done, a.mfma_w = snap[0], snap[1], snap[2], snap[3], snap[4]
            epi[:] = snap[5]
            free_blk[:] = snap[6]
            a.mfma_w = {k: a.n - (snap[7] - v) for k, v in snap[4].items()}
        while not free_blk:
            c, f = epi.pop(0)
            f(a)
        blk = free_blk.pop(0)
        has_next = rd + 1 < nrounds
        for q in range(32):
            if q == 32 - AH and has_next:
                tgs = [f"L{j}" for j in (2 * rd + 2, 2 * rd + 3) if j < nl]
                for tg in tgs:
                    assert not any(op[1] == tg for g in dma_q for op in g), tg
                    assert tg in a.vm
                a.wait(vm=tgs, ds_all=True)
                a.i("s_barrier")
                nxt = 2 * rd + 4
                if nxt < nl:
                    dma_q += dma_tile_ops(nxt, n1 + nxt, lbuf[nxt])
                for r in range(4):
                    a.i(f"v_add_u32 v{V_XF+r}, s{S_LB+rd+1}, v{V_XF+r}")
            a.wait(ds=[f"l{rd}_{q}"])
            A, B = opnds(q, V_XFR + 4 * ((rd * 32 + q) % RING))
            a.mfma(blk, A, B, None if q == 0 else blk)
            if q + AH < 32:
                tag, text = lp_read(rd, q + AH)
                a.dsop(tag, text)
            elif has_next:
                tag, text = lp_read(rd + 1, q + AH - 32)
                a.dsop(tag, text)
            budget = cfg.fill_per_gap
            if dma_q:
                emit_group(a, dma_q.pop(0))
                budget -= 16
            elif extra and rd == 1 and q % 2 == 0:
                emit_group(a, extra.pop(0))
                budget -= 16
            while epi and budget > 0:
                c, f = epi[0]
                if c > budget and budget < cfg.fill_per_gap and c <= cfg.fill_per_gap:
                    break
                epi.pop(0)
                f(a)
                budget -= c
        pend.append(blk)
        if typ == "kv":
            if len(pend) == 2:
                push_epi(pend, 0)
                pend = []
        else:
            push_epi(pend, nm + rd)
            pend = []
    assert not dma_q and not extra
    stamp(a, 4)
    if typ == "kv":
        k1_g_loads(a)
    drain()
    if typ == "kv":
        k1_kv_tail(a)
        k1_g_compute(a)
    stamp(a, 5)
    stamp_flush(a, 0, 7, S_WS)
    a.i("s_endpgm")


def pf_w2_ops():
    ops = []
    ops.append([("s", None, f"s_lshl_b32 s{S_T0}, s2, 3"),
                ("s", None, f"s_add_u32 s{S_T0}, s{S_T0}, s{S_WAVE}"),
                ("s", None, f"s_lshl_b32 s{S_T0}, s{S_T0}, 11"),
                ("s", None, f"v_lshlrev_b32 v{V_E+1}, 7, v{V_LANE}"),
                ("s", None, f"s_sub_u32 s{S_T1}, s{S_T0}, {1792*1024}"),
                ("s", None, "s_mov_b64 exec, 0xffff"),
                ("v", "pf", f"buffer_load_dword v{V_E}, v{V_E+1}, s[{S_W2}:{S_W2+3}], s{S_T0} offen"),
                ("v", "pf", f"buffer_load_dword v{V_E}, v{V_E+1}, s[{S_WO}:{S_WO+3}], s{S_T1} offen"),
                ("s", None, "s_mov_b64 exec, -1")])
    return ops


def k1_kv_head(a):
    a.i(f"s_lshl_b32 s{S_T0}, s{S_XCD}, 2")
    a.i(f"s_add_u32 s{S_T0}, s{S_T0}, s{S_CT}")
    a.i(f"s_lshl_b32 s{S_UNIT}, s{S_T0}, 2")
    a.i(f"s_mul_i32 s{S_ST}, s{S_T0}, {KVT_HEAD}")
    a.i(f"s_add_u32 s{S_ST}, s{S_ST}, {KVT_OFF}")
    a.i(f"s_or_b32 s{S_T0}, s{S_P}, s{S_PR}")
    a.i(f"s_cmp_lg_u32 s{S_T0}, 0")
    a.i("s_cbranch_scc1 K1_kv_nozero")
    a.i(f"v_lshlrev_b32 v{V_T}, 3, v{V_LANE}")
    for k in range(6):
        a.i(f"v_mov_b32 v{V_KV+k}, 0")
    a.i(f"buffer_atomic_swap_x2 v[{V_KV}:{V_KV+1}], v{V_T}, s[{S_WS}:{S_WS+3}], s{S_ST} offen sc0")
    a.i(f"buffer_atomic_swap_x2 v[{V_KV+2}:{V_KV+3}], v{V_T}, s[{S_WS}:{S_WS+3}], s{S_ST} offen offset:512 sc0")
    a.i("s_mov_b64 exec, 0xffff")
    a.i(f"buffer_atomic_swap_x2 v[{V_KV+4}:{V_KV+5}], v{V_T}, s[{S_WS}:{S_WS+3}], s{S_ST} offen offset:1024 sc0")
    a.i("s_mov_b64 exec, -1")
    a.label("K1_kv_nozero")


def k1_kv_tail(a):
    t = V_T
    a.label("K1_kv_poll")
    a.i("s_mov_b64 exec, 1")
    a.i(f"v_mov_b32 v{t+1}, 0")
    a.i(f"buffer_load_dword v{t}, v{t+1}, s[{S_DBG}:{S_DBG+3}], s{S_UNIT} offen sc1")
    a.i("s_waitcnt vmcnt(0)")
    a.i(f"v_readfirstlane_b32 s{S_T0}, v{t}")
    a.i("s_mov_b64 exec, -1")
    a.i(f"s_cmp_eq_u32 s{S_T0}, 0")
    a.i("s_cbranch_scc1 K1_kv_poll")
    a.vm_done = len(a.vm)
    a.need_acc(V_KV, 16)
    for r in range(8):
        a.i(f"v_permlane16_swap_b32 v{V_KV+8+r}, v{t+r}")
    e = V_KV + 8
    a.i(f"v_and_b32 v{e}, 15, v{V_LANE}")
    a.i(f"v_lshrrev_b32 v{e+1}, 5, v{V_LANE}")
    a.i(f"v_lshl_add_u32 v{e+1}, v{e+1}, 4, v{e}")
    a.i(f"v_lshlrev_b32 v{e+1}, 2, v{e+1}")
    a.i(f"v_and_b32 v{e+2}, 3, v{e}")
    a.i(f"v_lshrrev_b32 v{e+3}, 3, v{e}")
    a.i(f"v_lshl_add_u32 v{e+2}, v{e+3}, 2, v{e+2}")
    a.i(f"v_mul_u32_u24 v{e+2}, 144, v{e+2}")
    a.i(f"v_bfe_u32 v{e+3}, v{e}, 2, 1")
    a.i(f"v_lshl_add_u32 v{e+2}, v{e+3}, 2, v{e+2}")
    for r in range(8):
        a.i(f"v_add_f32 v{V_KV+r}, v{V_KV+r}, v{t+r}")
    a.vmem("at", f"buffer_atomic_add_f32 v{V_ZS}, v{e+2}, s[{S_WS}:{S_WS+3}], s{S_ST} offen offset:128")
    a.i(f"s_mov_b32 s{S_MASK}, 0xffff")
    a.i(f"s_mov_b32 s{S_MASK+1}, 0xffff")
    a.i(f"s_mov_b64 exec, s[{S_MASK}:{S_MASK+1}]")
    for r in range(8):
        a.vmem("at", f"buffer_atomic_add_f32 v{V_KV+r}, v{e+1}, s[{S_WS}:{S_WS+3}], s{S_ST} offen offset:{144*r}")
    a.i("s_mov_b64 exec, -1")


def k1_g_loads(a):
    a.i(f"s_lshl_b32 s{S_T0}, s{S_P}, 8")
    a.i(f"s_lshl_b32 s{S_T1}, s{S_XCD}, 5")
    a.i(f"s_add_u32 s{S_T0}, s{S_T0}, s{S_T1}")
    a.i(f"s_lshl_b32 s{S_T1}, s{S_WAVE}, 2")
    a.i(f"s_add_u32 s{S_T2}, s{S_T0}, s{S_T1}")
    a.i(f"s_lshl_b32 s{S_T0}, s{S_T2}, 10")
    e = V_XFR
    a.nop(4)
    a.vmem("g", f"buffer_load_dwordx4 v[{e}:{e+3}], v{V_STO}, s[{S_GW}:{S_GW+3}], 0 offen")
    for k in range(4):
        a.vmem("g", f"buffer_load_dwordx4 v[{e+4+4*k}:{e+7+4*k}], v{V_STO}, s[{S_X}:{S_X+3}], s{S_T0} offen offset:{1024*k}")


def k1_g_compute(a):
    e = V_XFR
    a.wait(vm=["g"])
    gw = V_ACC
    for j in range(4):
        a.i(f"v_lshlrev_b32 v{gw+2*j}, 16, v{e+j}")
        a.i(f"v_and_b32 v{gw+2*j+1}, 0xffff0000, v{e+j}")
    t = V_ACC + 8
    R = [V_ACC + 16 + k for k in range(4)]
    for row in range(4):
        xs = e + 4 + 4 * row
        acc = R[row]
        for j in range(4):
            a.i(f"v_lshlrev_b32 v{t}, 16, v{xs+j}")
            a.i(f"v_and_b32 v{t+1}, 0xffff0000, v{xs+j}")
            a.i(f"v_mul_f32 v{t}, v{t}, v{gw+2*j}")
            a.i(f"v_mul_f32 v{t+1}, v{t+1}, v{gw+2*j+1}")
            a.i(f"v_cvt_pk_bf16_f32 v{t+2}, v{t}, v{t+1}")
            a.i(f"v_lshlrev_b32 v{t}, 16, v{t+2}")
            a.i(f"v_and_b32 v{t+1}, 0xffff0000, v{t+2}")
            if j == 0:
                a.i(f"v_add_f32 v{acc}, v{t}, v{t+1}")
            else:
                a.i(f"v_add_f32 v{acc}, v{acc}, v{t}")
                a.i(f"v_add_f32 v{acc}, v{acc}, v{t+1}")
    a.nop(2)
    for mod in ("row_shr:1", "row_shr:2", "row_shr:4", "row_shr:8"):
        for r in R:
            a.i(f"v_add_f32_dpp v{r}, v{r}, v{r} {mod} row_mask:0xf bank_mask:0xf bound_ctrl:0")
    for r in R:
        a.i(f"v_add_f32_dpp v{r}, v{r}, v{r} row_bcast:15 row_mask:0xa bank_mask:0xf")
    for r in R:
        a.i(f"v_add_f32_dpp v{r}, v{r}, v{r} row_bcast:31 row_mask:0xc bank_mask:0xf")
    o = V_ACC + 24
    for p in range(2):
        r0, r1 = R[2 * p], R[2 * p + 1]
        a.i(f"v_cvt_pk_bf16_f32 v{t+p}, v{r0}, v{r1}")
    for p in range(2):
        r0, r1 = R[2 * p], R[2 * p + 1]
        a.i(f"v_lshlrev_b32 v{r0}, 16, v{t+p}")
        a.i(f"v_and_b32 v{r1}, 0xffff0000, v{t+p}")
    for r in R:
        a.i(f"v_mul_f32 v{r}, s{S_C2}, v{r}")
    for r in R:
        a.i(f"v_exp_f32 v{r}, v{r}")
    for r in R:
        a.i(f"v_add_f32 v{r}, 1.0, v{r}")
    for r in R:
        a.i(f"v_rcp_f32 v{r}, v{r}")
    a.nop(1)
    for p in range(2):
        a.i(f"v_cvt_pk_bf16_f32 v{t+p}, v{R[2*p]}, v{R[2*p+1]}")
    for p in range(2):
        a.i(f"v_lshlrev_b32 v{o+4*p}, 16, v{t+p}")
        a.i(f"v_and_b32 v{o+4*p+2}, 0xffff0000, v{t+p}")
    for k in range(4):
        a.i(f"v_sub_f32 v{R[k]}, 1.0, v{o+2*k}")
    for p in range(2):
        a.i(f"v_cvt_pk_bf16_f32 v{t+p}, v{R[2*p]}, v{R[2*p+1]}")
    for p in range(2):
        a.i(f"v_lshlrev_b32 v{o+4*p+1}, 16, v{t+p}")
        a.i(f"v_and_b32 v{o+4*p+3}, 0xffff0000, v{t+p}")
    a.i(f"s_lshl_b32 s{S_T0}, s{S_T2}, 3")
    a.i(f"s_add_u32 s{S_T0}, s{S_T0}, {G_OFF}")
    a.i(f"v_mov_b32 v{t+2}, 0")
    a.i(f"s_mov_b32 s{S_SAVE}, 0")
    a.i(f"s_mov_b32 s{S_SAVE+1}, 0x80000000")
    a.i(f"s_mov_b64 exec, s[{S_SAVE}:{S_SAVE+1}]")
    a.vmem("gst", f"buffer_store_dwordx4 v[{o}:{o+3}], v{t+2}, s[{S_WS}:{S_WS+3}], s{S_T0} offen")
    a.vmem("gst", f"buffer_store_dwordx4 v[{o+4}:{o+7}], v{t+2}, s[{S_WS}:{S_WS+3}], s{S_T0} offen offset:16")
    a.i("s_mov_b64 exec, -1")


def gen_k1(cfg):
    import copy
    a = Asm()
    a.raw(".globl k1_kernel\n.p2align 8\n.type k1_kernel,@function\nk1_kernel:")
    k1_prologue(a)
    a.i("s_cmp_eq_u32 s3, 2")
    a.i("s_cbranch_scc1 K1_kv")
    st = k1_first_pass(a, cfg, False)
    snap = (list(a.vm), a.vm_done, list(a.ds), a.ds_done, dict(a.mfma_w), a.n)
    a.i("s_cmp_eq_u32 s3, 1")
    a.i("s_cbranch_scc1 K1_q")
    k1_later(a, cfg, st, "mlp")
    a.raw(".p2align 6")
    a.label("K1_q")
    a.vm, a.vm_done, a.ds, a.ds_done = list(snap[0]), snap[1], list(snap[2]), snap[3]
    a.mfma_w = {k: a.n - (snap[5] - v) for k, v in snap[4].items()}
    k1_later(a, cfg, st, "q")
    a.raw(".p2align 6")
    a.label("K1_kv")
    k1_kv_head(a)
    st = k1_first_pass(a, cfg, True)
    k1_later(a, cfg, st, "kv")
    a.label("K1_done")
    a.i("s_endpgm")
    return a.text()


class K2Cfg:
    depth = 5
    mode = 0


def gen_k2(cfg):
    a = Asm()
    D = cfg.depth
    S_WS2, S_W2b, S_WOb, S_OUT = 40, 44, 48, 52
    S_W, S_RB, S_CB, S_M0, T0, T1, T2 = 4, 5, 6, 7, 8, 9, 10
    S_HB, S_WB, S_QB, S_OB, S_KVB = 11, 12, 13, 14, 15
    S_EPS = 56
    S_T3 = 57
    V_L = 1
    V_A0, V_A1, V_WD, V_TR0, V_TR1, V_KVA = 2, 3, 4, 5, 6, 7
    VT = 8
    V_G = 16
    ACC_B = 32
    ACC_A = 96
    V_WF = 160
    V_ND = 176
    V_KVR = 208
    V_KVF = 224
    V_OF = 228
    V_RC = 236
    a.raw(".globl k2_kernel\n.p2align 8\n.type k2_kernel,@function\nk2_kernel:")
    a.i("s_cmp_ge_u32 s2, 256")
    a.i("s_cbranch_scc1 K2_done")
    if DIAG:
        a.i("s_memrealtime s[38:39]")
    a.i("s_load_dwordx2 s[16:17], s[0:1], 16")
    a.i("s_load_dwordx2 s[18:19], s[0:1], 48")
    a.i("s_load_dwordx2 s[20:21], s[0:1], 64")
    a.i("s_load_dwordx2 s[22:23], s[0:1], 80")
    a.i("s_getpc_b64 s[24:25]")
    a.label("K2_pc")
    a.i(f"s_and_b32 s{T0}, s2, 7")
    a.i(f"s_lshr_b32 s{T1}, s2, 3")
    a.i(f"v_and_b32 v{V_L}, 63, v0")
    a.i(f"v_lshrrev_b32 v{VT}, 6, v0")
    a.i(f"s_lshl_b32 s{T2}, s{T1}, 10")
    a.i(f"v_readfirstlane_b32 s{S_W}, v{VT}")
    a.i(f"v_lshlrev_b32 v{VT+1}, 7, v0")
    a.i(f"v_add_u32 v{VT+1}, s{T2}, v{VT+1}")
    a.i(f"v_min_u32 v{VT+1}, CODE_END-K2_pc-4, v{VT+1}")
    a.i("v_cmp_gt_u32 vcc, 8, v0")
    a.i("s_and_saveexec_b64 s[26:27], vcc")
    a.i("s_cbranch_execz K2_nopf")
    a.i(f"global_load_dword v{V_RC+3}, v{VT+1}, s[24:25]")
    a.label("K2_nopf")
    a.i("s_mov_b64 exec, s[26:27]")
    a.vm.append("pf")
    if cfg.mode == 0:
        a.i(f"s_lshr_b32 s{S_RB}, s{T1}, 3")
        a.i(f"s_lshl_b32 s{T2}, s{T0}, 2")
        a.i(f"s_add_u32 s{S_RB}, s{S_RB}, s{T2}")
        a.i(f"s_and_b32 s{S_CB}, s{T1}, 7")
    else:
        a.i(f"s_lshr_b32 s{S_RB}, s{T0}, 1")
        a.i(f"s_lshl_b32 s{S_RB}, s{S_RB}, 3")
        a.i(f"s_lshr_b32 s{T2}, s{T1}, 2")
        a.i(f"s_add_u32 s{S_RB}, s{S_RB}, s{T2}")
        a.i(f"s_and_b32 s{S_CB}, s{T0}, 1")
        a.i(f"s_lshl_b32 s{S_CB}, s{S_CB}, 2")
        a.i(f"s_and_b32 s{T2}, s{T1}, 3")
        a.i(f"s_add_u32 s{S_CB}, s{S_CB}, s{T2}")
    a.i(f"s_mul_i32 s{T0}, s{S_RB}, {2*AF_TT}")
    a.i(f"v_lshlrev_b32 v{V_A0}, 4, v{V_L}")
    a.i(f"v_add_u32 v{V_A0}, s{T0}, v{V_A0}")
    a.i(f"v_add_u32 v{V_A1}, {AF_TT}, v{V_A0}")
    a.i(f"s_mul_i32 s{S_HB}, s{S_W}, {28*1024}")
    if AF_OFF:
        a.i(f"s_add_u32 s{S_HB}, s{S_HB}, {AF_OFF}")
    a.i(f"s_mul_i32 s{S_WB}, s{S_W}, {28*16*1024}")
    a.i(f"s_lshl_b32 s{S_QB}, s{S_W}, 13")
    a.i(f"s_add_u32 s{S_QB}, s{S_QB}, {AF_OFF + 112*1024}")
    a.i(f"s_lshl_b32 s{S_OB}, s{S_W}, 17")
    a.i(f"s_mul_i32 s{S_KVB}, s{S_W}, {8*KVT_HEAD}")
    a.i(f"s_add_u32 s{S_KVB}, s{S_KVB}, {KVT_OFF}")
    a.i(f"s_mul_i32 s{S_M0}, s{S_W}, {D*2048}")
    a.i(f"s_mov_b32 s{S_EPS}, {EPS:#x}")
    t = VT
    a.i(f"v_lshrrev_b32 v{t}, 3, v{V_L}")
    a.i(f"v_and_b32 v{t+1}, 7, v{V_L}")
    a.i(f"v_bfe_u32 v{t+2}, v{V_L}, 4, 1")
    a.i(f"v_lshlrev_b32 v{t+2}, 2, v{t+2}")
    a.i(f"v_xor_b32 v{t+1}, v{t+1}, v{t+2}")
    a.i(f"v_lshlrev_b32 v{t}, 10, v{t}")
    a.i(f"v_lshl_add_u32 v{V_WD}, v{t+1}, 4, v{t}")
    a.i(f"s_lshl_b32 s{T0}, s{S_CB}, 7")
    a.i(f"v_add_u32 v{V_WD}, s{T0}, v{V_WD}")
    a.i(f"v_lshrrev_b32 v{t}, 5, v{V_L}")
    a.i(f"v_bfe_u32 v{t+1}, v{V_L}, 2, 2")
    a.i(f"v_lshl_add_u32 v{t}, v{t}, 2, v{t+1}")
    a.i(f"v_bfe_u32 v{t+1}, v{V_L}, 4, 1")
    a.i(f"v_bfe_u32 v{t+2}, v{V_L}, 1, 1")
    a.i(f"v_lshl_add_u32 v{t+1}, v{t+1}, 1, v{t+2}")
    a.i(f"v_bfe_u32 v{t+2}, v{V_L}, 3, 1")
    a.i(f"v_lshlrev_b32 v{t+2}, 2, v{t+2}")
    a.i(f"v_xor_b32 v{t+1}, v{t+1}, v{t+2}")
    a.i(f"v_lshlrev_b32 v{t}, 7, v{t}")
    a.i(f"v_lshl_add_u32 v{t}, v{t+1}, 4, v{t}")
    a.i(f"v_and_b32 v{t+1}, 1, v{V_L}")
    a.i(f"v_lshl_add_u32 v{t}, v{t+1}, 3, v{t}")
    a.i(f"v_add_u32 v{V_TR0}, s{S_M0}, v{t}")
    a.i(f"v_xor_b32 v{t}, 64, v{t}")
    a.i(f"v_add_u32 v{V_TR1}, s{S_M0}, v{t}")
    a.i(f"v_and_b32 v{t}, 31, v{V_L}")
    a.i(f"v_lshrrev_b32 v{t+2}, 5, v{V_L}")
    a.i(f"v_lshl_add_u32 v{t+1}, v{t+2}, 4, v{t}")
    a.i(f"v_add_u32 v{t+2}, 32, v{t+2}")
    a.i(f"v_cmp_gt_u32 vcc, 16, v{t}")
    a.nop(2)
    a.i(f"v_cndmask_b32 v{t+1}, v{t+2}, v{t+1}, vcc")
    a.i(f"v_lshlrev_b32 v{V_KVA}, 2, v{t+1}")
    a.i(f"v_lshlrev_b32 v{t+3}, 3, v{t}")
    a.i(f"s_lshl_b32 s{T0}, s{S_RB}, 9")
    a.i(f"s_add_u32 s{T0}, s{T0}, {G_OFF}")
    a.i("s_waitcnt lgkmcnt(0)")
    srd(a, S_WS2, 22, WS_USED)
    srd(a, S_W2b, 18, 1792 * 1024)
    srd(a, S_WOb, 16, 512 * 1024)
    srd(a, S_OUT, 20, 2048 * 1024)

    steps = []
    hq = list(range(28))
    aq = list(range(8))
    pos_attn = {3, 7, 11, 15, 19, 23, 27, 31}
    for n in range(36):
        if n in pos_attn:
            steps.append(("a", aq.pop(0)))
        else:
            steps.append(("h", hq.pop(0)))
    assert not hq and not aq

    def issue(n):
        kind, k = steps[n]
        d = n % D
        ab, wb, wsrd = (S_HB, S_WB, S_W2b) if kind == "h" else (S_QB, S_OB, S_WOb)
        a.i(f"s_add_u32 s{T1}, s{ab}, {k*1024}")
        a.vmem(f"s{n}", f"buffer_load_dwordx4 a[{8*d}:{8*d+3}], v{V_A0}, s[{S_WS2}:{S_WS2+3}], s{T1} offen")
        a.vmem(f"s{n}", f"buffer_load_dwordx4 a[{8*d+4}:{8*d+7}], v{V_A1}, s[{S_WS2}:{S_WS2+3}], s{T1} offen")
        for b in range(2):
            a.i(f"s_add_u32 m0, s{S_M0}, {d*2048 + b*1024}")
            a.i(f"s_add_u32 s{T2}, s{wb}, {k*16384 + b*8192}")
            a.vmem(f"s{n}", f"buffer_load_dwordx4 v{V_WD}, s[{wsrd}:{wsrd+3}], s{T2} offen lds")
        if kind == "a":
            kr = V_KVR + 8 * (k % 2)
            a.i(f"s_add_u32 s{S_T3}, s{S_KVB}, {k*KVT_HEAD}")
            for r in range(8):
                a.vmem(f"s{n}", f"buffer_load_dword v{kr+r}, v{V_KVA}, s[{S_WS2}:{S_WS2+3}], s{S_T3} offen offset:{144*r}")

    def tr_reads(n):
        d = n % D
        wf = V_WF + 8 * (n % 2)
        for ct, va in enumerate((V_TR0, V_TR1)):
            for rd in range(2):
                r = wf + 4 * ct + 2 * rd
                a.dsop(f"t{n}", f"ds_read_b64_tr_b16 v[{r}:{r+1}], v{va} offset:{d*2048 + rd*1024}")

    a.vmem("g", f"buffer_load_dwordx2 v[{V_G}:{V_G+1}], v{t+3}, s[{S_WS2}:{S_WS2+3}], s{T0} offen")
    a.vmem("g", f"buffer_load_dwordx2 v[{V_G+2}:{V_G+3}], v{t+3}, s[{S_WS2}:{S_WS2+3}], s{T0} offen offset:256")
    for n in range(D):
        issue(n)
    first_b, first_a = True, True
    stamp(a, 1, 60)
    a.wait(vm=["s0"])
    stamp(a, 2, 60)
    tr_reads(0)
    for n in range(36):
        kind, k = steps[n]
        d = n % D
        wf = V_WF + 8 * (n % 2)
        if kind == "a":
            kr = V_KVR + 8 * (k % 2)
            for j in range(4):
                a.i(f"v_cvt_pk_bf16_f32 v{V_KVF+j}, v{kr+2*j}, v{kr+2*j+1}")
            a.nop(2)
            for tt in range(2):
                a.mfma(V_ND + 16 * tt, f"v[{V_KVF}:{V_KVF+3}]", f"a[{8*d+4*tt}:{8*d+4*tt+3}]", None)
        if n + 1 < 36:
            a.wait(vm=[f"s{n+1}"])
            tr_reads(n + 1)
        if kind == "a":
            for tt in range(2):
                nd = V_ND + 16 * tt
                a.need_acc(nd)
                a.i(f"v_add_f32 v{V_RC+tt}, s{S_EPS}, v{nd+8}")
            for tt in range(2):
                a.i(f"v_rcp_f32 v{V_RC+tt}, v{V_RC+tt}")
            a.nop(1)
            for tt in range(2):
                nd = V_ND + 16 * tt
                for r in range(8):
                    a.i(f"v_mul_f32 v{nd+r}, v{nd+r}, v{V_RC+tt}")
                for j in range(4):
                    a.i(f"v_cvt_pk_bf16_f32 v{V_OF+4*tt+j}, v{nd+2*j}, v{nd+2*j+1}")
            a.nop(2)
        a.wait(ds=[f"t{n}"])
        for ct in range(2):
            for tt in range(2):
                A = f"v[{wf+4*ct}:{wf+4*ct+3}]"
                if kind == "h":
                    blk = ACC_B + 16 * (ct * 2 + tt)
                    a.mfma(blk, A, f"a[{8*d+4*tt}:{8*d+4*tt+3}]", None if first_b else blk)
                else:
                    blk = ACC_A + 16 * (ct * 2 + tt)
                    a.mfma(blk, A, f"v[{V_OF+4*tt}:{V_OF+4*tt+3}]", None if first_a else blk)
        if kind == "h":
            first_b = False
        else:
            first_a = False
        if n + D < 36:
            issue(n + D)
    stamp(a, 3, 60)
    a.wait(vm=["g"])
    for blk in range(4):
        a.need_acc(ACC_B + 16 * blk, 16)
        a.need_acc(ACC_A + 16 * blk, 16)
    for blk in range(4):
        tt = blk & 1
        for r in range(16):
            b, aa = ACC_B + 16 * blk + r, ACC_A + 16 * blk + r
            a.i(f"v_mul_f32 v{b}, v{b}, v{V_G+2*tt+1}")
            a.i(f"v_fmac_f32 v{b}, v{aa}, v{V_G+2*tt}")
    PITCH = 272
    WSZ = 64 * PITCH
    a.i("s_waitcnt lgkmcnt(0)")
    a.i("s_barrier")
    a.i(f"v_and_b32 v{t}, 31, v{V_L}")
    a.i(f"v_lshrrev_b32 v{t+1}, 5, v{V_L}")
    a.i(f"v_mul_u32_u24 v{t}, {PITCH}, v{t}")
    a.i(f"v_lshl_add_u32 v{t}, v{t+1}, 4, v{t}")
    a.i(f"s_mul_i32 s{T0}, s{S_W}, {WSZ}")
    a.i(f"v_add_u32 v{t}, s{T0}, v{t}")
    for blk in range(4):
        ct, tt = blk >> 1, blk & 1
        for q in range(4):
            r = ACC_B + 16 * blk + 4 * q
            off = tt * 32 * PITCH + (ct * 32 + 8 * q) * 4
            a.i(f"ds_write_b128 v{t}, v[{r}:{r+3}] offset:{off}")
    a.i(f"v_lshrrev_b32 v{t+1}, 3, v{V_L}")
    a.i(f"s_lshl_b32 s{T0}, s{S_W}, 4")
    a.i(f"v_add_u32 v{t+1}, s{T0}, v{t+1}")
    a.i(f"v_and_b32 v{t+2}, 7, v{V_L}")
    a.i(f"v_mul_u32_u24 v{t+3}, {PITCH}, v{t+1}")
    a.i(f"v_lshl_add_u32 v{t+3}, v{t+2}, 5, v{t+3}")
    a.i(f"v_lshlrev_b32 v{t+4}, 10, v{t+1}")
    a.i(f"v_lshl_add_u32 v{t+4}, v{t+2}, 4, v{t+4}")
    a.i(f"s_lshl_b32 s{T0}, s{S_RB}, 16")
    a.i(f"s_lshl_b32 s{T1}, s{S_CB}, 7")
    a.i(f"s_add_u32 s{T0}, s{T0}, s{T1}")
    a.i("s_waitcnt lgkmcnt(0)")
    a.i("s_barrier")
    R = ACC_A
    for half in range(2):
        for w in range(4):
            for p in range(2):
                r = R + half * 32 + w * 8 + p * 4
                off = w * WSZ + half * 8 * PITCH + p * 16
                if off > 65535:
                    raise Exception("offset")
                a.i(f"ds_read_b128 v[{r}:{r+3}], v{t+3} offset:{off}")
    for half in range(2):
        a.i(f"s_waitcnt lgkmcnt({8 if half == 0 else 0})")
        b = R + half * 32
        for j in range(8):
            a.i(f"v_add_f32 v{b+j}, v{b+j}, v{b+8+j}")
            a.i(f"v_add_f32 v{b+16+j}, v{b+16+j}, v{b+24+j}")
        for j in range(8):
            a.i(f"v_add_f32 v{b+j}, v{b+j}, v{b+16+j}")
        for j in range(4):
            a.i(f"v_cvt_pk_bf16_f32 v{b+8+j}, v{b+2*j}, v{b+2*j+1}")
        a.i(f"buffer_store_dwordx4 v[{b+8}:{b+11}], v{t+4}, s[{S_OUT}:{S_OUT+3}], s{T0} offen offset:0" if half == 0 else
            f"s_add_u32 s{T0}, s{T0}, 8192")
        if half == 1:
            a.i(f"buffer_store_dwordx4 v[{b+8}:{b+11}], v{t+4}, s[{S_OUT}:{S_OUT+3}], s{T0} offen")
    stamp(a, 4, 60)
    stamp_flush(a, 1, 6, S_WS2, 60)
    if DIAG:
        a.i("s_mov_b64 exec, -1")
        a.i("s_cmp_lg_u32 s2, 0")
        a.i("s_cbranch_scc1 K2_done")
        a.i(f"s_cmp_lg_u32 s{S_W}, 0")
        a.i("s_cbranch_scc1 K2_done")
        a.i("s_load_dwordx2 s[16:17], s[0:1], 72")
        a.i("s_waitcnt vmcnt(0) lgkmcnt(0)")
        srd(a, 44, 16, 256)
        a.i(f"s_mov_b32 s{S_WS2+2}, {STAMP_OFF + 65536}")
        a.i(f"v_and_b32 v2, 7, v{V_L}")
        a.i(f"v_lshlrev_b32 v2, 3, v2")
        a.i(f"v_lshrrev_b32 v3, 3, v{V_L}")
        a.i(f"v_lshl_add_u32 v2, v3, 14, v2")
        a.i(f"s_mov_b32 s3, {STAMP_OFF}")
        a.i("s_mov_b64 exec, 0xffff")
        a.i(f"buffer_load_dword v4, v2, s[{S_WS2}:{S_WS2+3}], s3 offen sc1")
        a.i(f"v_lshlrev_b32 v5, 2, v{V_L}")
        a.i("s_waitcnt vmcnt(0)")
        a.i("buffer_store_dword v4, v5, s[44:47], 0 offen")
    a.label("K2_done")
    a.i("s_endpgm")
    lds = max(4 * D * 2048, 4 * WSZ)
    return a.text(), lds, 8 * D


def kd(name, nv, accum, nsgpr=102):
    return f""".p2align 6
.amdhsa_kernel {name}
  .amdhsa_next_free_vgpr {nv}
  .amdhsa_next_free_sgpr {nsgpr}
  .amdhsa_accum_offset {accum}
  .amdhsa_group_segment_fixed_size 0
  .amdhsa_kernarg_size 88
  .amdhsa_user_sgpr_count 2
  .amdhsa_user_sgpr_kernarg_segment_ptr 1
  .amdhsa_system_sgpr_workgroup_id_x 1
  .amdhsa_float_denorm_mode_32 3
.end_amdhsa_kernel"""


def build(c1=None, c2=None):
    c1 = c1 or K1Cfg()
    c2 = c2 or K2Cfg()
    k1 = gen_k1(c1)
    k2, lds2, na2 = gen_k2(c2)
    hdr = f"""; gated_mix: linear attention block + SwiGLU block, gated mix.  Generated by gen/gen.py
; @launch kernel=k1_kernel grid=(256,1,1) block=(512,1,1) lds={K1_LDS}
; @launch kernel=k2_kernel grid=(256,1,1) block=(256,1,1) lds={lds2}
.amdgcn_target "amdgcn-amd-amdhsa--gfx950"
.text
"""
    tail = """
.p2align 8
CODE_END:
    s_endpgm
.section .rodata,"a"
"""
    return hdr + k1 + "\n" + k2 + tail + kd("k1_kernel", 256, 128) + "\n" + kd("k2_kernel", 256 + na2, 256) + "\n"


if __name__ == "__main__":
    if "--diag" in sys.argv:
        DIAG = True
        sys.argv.remove("--diag")
    out = sys.argv[1] if len(sys.argv) > 1 else f"cdna_kernels/{NAME}.s"
    open(out, "w").write(build())
    print("wrote", out)
```

```python
import sys
from gen import Asm, srd, LOG2E, NLOG2E, EPS
import gen as G0

NAME = "gated_mix__linear_attn_block__glu_gated_swiglu__prompt"

AF_OFF = 0
AF_TT = 144 * 1024
AF_SIZE = 64 * AF_TT
KVT_OFF = AF_SIZE
KVT_HEAD = 1152
KVT_SIZE = 32 * KVT_HEAD
G_OFF = KVT_OFF + KVT_SIZE
G_SIZE = 2048 * 8
FL_OFF = G_OFF + G_SIZE
FL_TT = 640
FL_SIZE = 64 * FL_TT
FLK_OFF = FL_OFF + FL_SIZE
WS_USED = FLK_OFF + 2 * FL_TT
STAMP_OFF = 16 << 20
DIAG = False

SPIN_MAX = 1 << 20

SLOT = 32768
NSLOT = 4
CST_OFF = 3 * SLOT
CST_WAVE = 14336


def slot_of(s):
    return (s % 4 if s < 8 else (s - 8) % 3) * SLOT
SYNC_OFF = None
KVS_OFF = None


class Cfg:
    store_aux = "sc1"
    fill_per_gap = 24
    pub_age = 16
    ahead = 5
    depth = 4
    wdepth = 7
    prio_p = 2
    mode = 0
    poll_sleep = 8
    h_first = 20
    q_bias = 9
    pre_stages = 2
    kv_sleep = 16
    fp_stamps = 0
    st3 = 12
    st4 = 28
    af_aux = 'sc1'
    x_nomfma = 0
    x_krot = 0
    x_now = 0
    x_nox = 0
    fp_dma_per_gap = 1
    x_nocons = False
    x_noepi = False
    x_nopub = False


PART_START = [0, 11, 22, 33, 44, 54]
PART_N = [11, 11, 11, 11, 10, 10]


def rot_of(u):
    return ((u & 7) * 11) >> 3


FPST = 0


def stamp(a, k, base=16, force=False):
    if DIAG and (force or not FPST or k == 6):
        a.i(f"s_memrealtime s[{base+2*k}:{base+2*k+1}]")


_sf = [0]


def stamp_flush(a, kern, nst, ws_srd, tid, base=16, t0=38):
    if not DIAG:
        return
    _sf[0] += 1
    lbl = f"STAMP_skip_{_sf[0]}"
    a.i("s_waitcnt vmcnt(0)")
    stamp(a, nst - 1, base)
    a.i("s_waitcnt lgkmcnt(0)")
    a.i(f"v_cmp_eq_u32 vcc, {tid}, v0" if tid <= 64 else f"v_cmp_eq_u32 vcc, {tid:#x}, v0")
    a.i("s_and_saveexec_b64 s[94:95], vcc")
    a.i(f"s_cbranch_execz {lbl}")
    a.i(f"s_mov_b32 s{ws_srd+2}, {STAMP_OFF + 65536}")
    a.i("s_lshl_b32 s3, s2, 6")
    a.i(f"s_add_u32 s3, s3, {STAMP_OFF + kern*16384}")
    a.i("v_mov_b32 v2, 0")
    for k in range(nst):
        src = t0 if k == 0 else base + 2 * k
        a.i(f"v_mov_b32 v4, s{src}")
        a.i(f"v_mov_b32 v5, s{src+1}")
        a.i(f"buffer_store_dwordx2 v[4:5], v2, s[{ws_srd}:{ws_srd+3}], s3 offen offset:{8*k}")
        a.i("s_nop 1")
    a.label(lbl)
    a.i("s_mov_b64 exec, -1")


S_XCD, S_IDX, S_WAVE, S_TILE0, S_PITCH, S_COLA, S_COLB, S_UNIT = 4, 5, 6, 7, 8, 9, 10, 11
S_T0, S_T1, S_T2, S_T3 = 12, 13, 14, 15
S_X, S_A, S_B, S_WS, S_DBG = 40, 44, 48, 52, 56
S_TJ = 60
S_NT = 71
S_XK = 72
S_WK = 80
S_M0X = 88
S_M0W = 89
S_ST = 90
S_C1, S_C2, S_C3 = 91, 92, 93
S_MASK = 94
S_TMP = 96
S_P = 97
S_SAVE = 98
S_FLB = 100
S_XB = 101
S_GWP = 30
S_SPIN = 32

V_LANE = 1
V_WA, V_WA2, V_WB, V_WB2, V_XD = 2, 3, 4, 5, 6
V_WT = 7
V_XF = 8
V_STO = 12
V_ZS = 13
V_SYA = 14
V_THR = 15
V_T = 16
V_SY = 24
V_SYW = 25
V_ONE = 26
V_TAG = 7
V_SV = 27
V_XFR = 28
V_KV = 48
V_ACC = 64


def emit_group(a, grp):
    for kind, tag, text in grp:
        if kind == "v":
            a.vmem(tag, text)
        else:
            a.i(text)


XNOW = XNOX = 0


def dma_stage_ops(s, nm):
    ops = dma_stage_ops0(s, nm)
    if s < 8 and XNOW:
        ops = ops[3:]
    if s < 8 and XNOX:
        ops = ops[:4] + ops[-1:]
    return ops


def dma_stage_ops0(s, nm):
    slot = slot_of(s)
    ops = []
    tag = f"S{s}"
    if s < 8:
        for seg, (vs, sr) in enumerate((((V_WA, V_WA2), S_A), ((V_WB, V_WB2), S_B))):
            for b, v in enumerate(vs):
                ops.append([("s", None, f"s_add_u32 m0, s{S_M0W}, {slot + seg*8192 + b*1024}"),
                            ("s", None, "s_nop 0"),
                            ("v", tag, f"buffer_load_dwordx4 v{v}, s[{sr}:{sr+3}], s{S_WK+s} offen lds")])
        for m in range(nm):
            ops.append([("s", None, f"s_lshl_b32 s{S_XB}, s{S_TJ+m}, 15"),
                        ("s", None, f"s_add_u32 m0, s{S_M0X}, {slot + 16384 + m*4096}"),
                        ("s", None, f"s_add_u32 s{S_TMP}, s{S_XB}, s{S_XK+s}"),
                        ("v", tag, f"buffer_load_dwordx4 v{V_XD}, s[{S_X}:{S_X+3}], s{S_TMP} offen lds")])
    else:
        j = nm + s - 8
        for i in range(8):
            g = []
            if i == 0:
                g.append(("s", None, f"s_lshl_b32 s{S_XB}, s{S_TJ+j}, 15"))
            g += [("s", None, f"s_add_u32 m0, s{S_M0X}, {slot + i*4096}"),
                  ("s", None, f"s_add_u32 s{S_TMP}, s{S_XB}, s{S_XK+i}"),
                  ("v", tag, f"buffer_load_dwordx4 v{V_XD}, s[{S_X}:{S_X+3}], s{S_TMP} offen lds")]
            ops.append(g)
    return ops


NLOAD = 10
S_W8 = 99
V_SYA2 = 53


def tj(a, j):
    a.i(f"s_add_u32 s{S_T0}, s{S_SAVE}, {j}")
    for _ in range(2):
        a.i(f"s_sub_u32 s{S_T1}, s{S_T0}, s{S_NT}")
        a.i(f"s_cmp_ge_u32 s{S_T0}, s{S_NT}")
        a.i(f"s_cselect_b32 s{S_T0}, s{S_T1}, s{S_T0}")
    a.i(f"s_add_u32 s{S_TJ+j}, s{S_T0}, s{S_TILE0}")


def prologue(a, cfg):
    a.i("s_cmp_ge_u32 s2, 256")
    a.i("s_cbranch_scc1 L_done")
    if DIAG:
        a.i("s_memrealtime s[38:39]")
    a.i("s_load_dwordx16 s[16:31], s[0:1], 0")
    a.i("s_load_dwordx4 s[32:35], s[0:1], 64")
    a.i("s_load_dwordx2 s[36:37], s[0:1], 80")
    a.i(f"v_lshrrev_b32 v{V_T}, 6, v0")
    a.i(f"s_and_b32 s{S_XCD}, s2, 7")
    a.i(f"v_readfirstlane_b32 s{S_W8}, v{V_T}")
    a.i(f"s_lshr_b32 s{S_IDX}, s2, 3")
    a.i(f"v_and_b32 v{V_LANE}, 63, v0")
    a.i(f"s_and_b32 s{S_WAVE}, s{S_W8}, 3")
    a.i(f"s_mul_i32 s{S_T0}, s{S_IDX}, 43")
    a.i(f"s_lshr_b32 s{S_T0}, s{S_T0}, 8")
    a.i(f"s_mul_i32 s{S_T1}, s{S_T0}, 6")
    a.i(f"s_sub_u32 s{S_P}, s{S_IDX}, s{S_T1}")
    a.i(f"s_lshl_b32 s{S_T0}, s{S_T0}, 3")
    a.i(f"s_add_u32 s{S_UNIT}, s{S_T0}, s{S_XCD}")
    a.i(f"s_mul_i32 s{S_TILE0}, s{S_P}, 11")
    a.i(f"s_max_u32 s{S_T0}, s{S_P}, 4")
    a.i(f"s_sub_u32 s{S_T0}, s{S_T0}, 4")
    a.i(f"s_sub_u32 s{S_TILE0}, s{S_TILE0}, s{S_T0}")
    a.i(f"s_cmp_ge_u32 s{S_P}, 4")
    a.i(f"s_cselect_b32 s{S_NT}, 10, 11")
    a.i(f"s_mul_i32 s{S_SAVE}, s{S_XCD}, 11")
    a.i(f"s_lshr_b32 s{S_SAVE}, s{S_SAVE}, 3")
    a.i(f"s_lshl_b32 s{S_COLA}, s{S_UNIT}, 7")
    a.i(f"s_mov_b32 s{S_COLB}, s{S_COLA}")
    a.i(f"s_sub_u32 s{S_T0}, s{S_UNIT}, 28")
    a.i(f"s_lshl_b32 s{S_T0}, s{S_T0}, 8")
    a.i(f"s_add_u32 s{S_T1}, s{S_T0}, 128")
    a.i(f"s_cmp_ge_u32 s{S_UNIT}, 28")
    a.i(f"s_cselect_b32 s{S_COLA}, s{S_T0}, s{S_COLA}")
    a.i(f"s_cselect_b32 s{S_COLB}, s{S_T1}, s{S_COLB}")
    a.i("s_cselect_b32 s3, 1, 0")
    a.i(f"s_lshl_b32 s{S_T0}, s{S_XCD}, 7")
    a.i(f"s_add_u32 s{S_T1}, s{S_T0}, 2048")
    a.i(f"s_add_u32 s{S_T0}, s{S_T0}, 1024")
    a.i(f"s_sub_u32 s{S_T2}, s{S_IDX}, 24")
    a.i(f"s_lshl_b32 s{S_T3}, s{S_T2}, 3")
    a.i(f"s_cmp_ge_u32 s{S_IDX}, 24")
    a.i(f"s_cselect_b32 s{S_COLA}, s{S_T0}, s{S_COLA}")
    a.i(f"s_cselect_b32 s{S_COLB}, s{S_T1}, s{S_COLB}")
    a.i(f"s_cselect_b32 s{S_P}, s{S_T2}, s{S_P}")
    a.i(f"s_cselect_b32 s{S_TILE0}, s{S_T3}, s{S_TILE0}")
    a.i(f"s_cselect_b32 s{S_NT}, 8, s{S_NT}")
    a.i(f"s_cselect_b32 s{S_SAVE}, s{S_XCD}, s{S_SAVE}")
    a.i("s_cselect_b32 s3, 2, s3")
    a.i("s_cmp_eq_u32 s3, 0")
    a.i(f"s_movk_i32 s{S_T0}, 3584")
    a.i(f"s_movk_i32 s{S_T1}, 3072")
    a.i(f"s_cselect_b32 s{S_PITCH}, s{S_T0}, s{S_T1}")
    for j in range(3):
        tj(a, j)
    a.i(f"s_lshl_b32 s{S_T3}, s{S_PITCH}, 6")
    if cfg.x_krot == 0:
        a.i(f"s_add_u32 s{S_T2}, s{S_XCD}, s{S_IDX}")
    elif cfg.x_krot == 1:
        a.i(f"s_mov_b32 s{S_T2}, s{S_XCD}")
    elif cfg.x_krot == 2:
        a.i(f"s_mov_b32 s{S_T2}, s{S_P}")
    else:
        a.i(f"s_mov_b32 s{S_T2}, 0")
    for i in range(8):
        a.i(f"s_add_u32 s{S_T0}, s{S_T2}, {i}")
        a.i(f"s_and_b32 s{S_T0}, s{S_T0}, 7")
        a.i(f"s_lshl_b32 s{S_XK+i}, s{S_T0}, 7")
        a.i(f"s_mul_i32 s{S_WK+i}, s{S_T0}, s{S_T3}")
    a.i(f"s_lshl_b32 s{S_M0X}, s{S_WAVE}, 10")
    a.i(f"s_lshl_b32 s{S_M0W}, s{S_WAVE}, 11")
    t = V_T
    a.i(f"v_lshrrev_b32 v{t}, 3, v{V_LANE}")
    a.i(f"v_and_b32 v{t+1}, 7, v{V_LANE}")
    a.i(f"s_lshl_b32 s{S_T0}, s{S_WAVE}, 3")
    a.i(f"v_add_u32 v{t+5}, s{S_T0}, v{t}")
    a.i(f"v_bfe_u32 v{t+6}, v{t+5}, 1, 3")
    a.i(f"v_xor_b32 v{t+6}, v{t+6}, v{t+1}")
    a.i(f"v_lshlrev_b32 v{t+5}, 10, v{t+5}")
    a.i(f"v_lshl_add_u32 v{V_XD}, v{t+6}, 4, v{t+5}")
    a.i(f"s_cmp_lt_u32 s{S_W8}, 4")
    a.i("s_cbranch_scc1 L_producer")


def loader(a, cfg):
    t = V_T
    a.i("s_setprio 3")
    a.i(f"v_bfe_u32 v{t+2}, v{V_LANE}, 4, 1")
    a.i(f"v_lshlrev_b32 v{t+2}, 1, v{t+2}")
    a.i(f"v_xor_b32 v{t+3}, v{t+1}, v{t+2}")
    a.i(f"v_xor_b32 v{t+4}, 4, v{t+3}")
    a.i(f"s_lshl_b32 s{S_T0}, s{S_WAVE}, 4")
    a.i(f"v_add_u32 v{t+5}, s{S_T0}, v{t}")
    a.i(f"v_mul_lo_u32 v{t+5}, v{t+5}, s{S_PITCH}")
    a.i(f"v_lshl_add_u32 v{V_WA}, v{t+3}, 4, v{t+5}")
    a.i(f"v_add_u32 v{V_WA}, s{S_COLA}, v{V_WA}")
    a.i(f"v_lshl_add_u32 v{V_WB}, v{t+4}, 4, v{t+5}")
    a.i(f"v_add_u32 v{V_WB}, s{S_COLB}, v{V_WB}")
    a.i(f"s_lshl_b32 s{S_T1}, s{S_PITCH}, 3")
    a.i(f"v_add_u32 v{V_WA2}, s{S_T1}, v{V_WA}")
    a.i(f"v_add_u32 v{V_WB2}, s{S_T1}, v{V_WB}")
    a.i("s_waitcnt lgkmcnt(0)")
    a.i("s_cmp_eq_u32 s3, 0")
    a.i(f"s_cselect_b32 s{S_A}, s24, s18")
    a.i(f"s_cselect_b32 s{S_A+1}, s25, s19")
    a.i(f"s_cselect_b32 s{S_B}, s26, s18")
    a.i(f"s_cselect_b32 s{S_B+1}, s27, s19")
    a.i(f"s_lshl_b32 s{S_A+2}, s{S_PITCH}, 9")
    a.i(f"s_and_b32 s{S_A+1}, s{S_A+1}, 0xffff")
    a.i(f"s_and_b32 s{S_B+1}, s{S_B+1}, 0xffff")
    a.i(f"s_mov_b32 s{S_B+2}, s{S_A+2}")
    a.i(f"s_mov_b32 s{S_A+3}, 0x20000")
    a.i(f"s_mov_b32 s{S_B+3}, 0x20000")
    srd(a, S_X, 16, 2048 * 1024)
    for s in range(2):
        ops = dma_stage_ops(s, 3)
        for grp in ops[:-1]:
            emit_group(a, grp)
        a.i("s_cmp_eq_u32 s3, 2")
        a.i(f"s_cbranch_scc1 LD_skip{s}")
        emit_group(a, ops[-1])
        a.label(f"LD_skip{s}")
    a.i(f"s_cmp_lg_u32 s{S_WAVE}, 0")
    a.i("s_cbranch_scc1 LD_noinit")
    a.i(f"v_lshlrev_b32 v{t}, 2, v{V_LANE}")
    a.i(f"v_add_u32 v{t}, {SYNC_OFF}, v{t}")
    a.i(f"v_mov_b32 v{t+1}, 0")
    a.i("s_mov_b64 exec, 0xffffffff")
    a.i(f"ds_write_b32 v{t}, v{t+1}")
    a.i("s_mov_b64 exec, -1")
    a.i("s_waitcnt lgkmcnt(0)")
    a.label("LD_noinit")
    a.i("s_barrier")
    for j in range(3, 5):
        tj(a, j)
    a.i(f"v_and_b32 v{t}, 3, v{V_LANE}")
    a.i(f"v_lshlrev_b32 v{V_SYA}, 2, v{t}")
    a.i(f"v_add_u32 v{V_SYA}, {SYNC_OFF + 16}, v{V_SYA}")
    a.i(f"s_lshl_b32 s{S_T0}, s{S_WAVE}, 2")
    a.i(f"s_add_u32 s{S_T0}, s{S_T0}, {SYNC_OFF}")
    a.i(f"v_mov_b32 v{V_SYW}, s{S_T0}")
    a.i("s_cmp_eq_u32 s3, 2")
    a.i("s_cbranch_scc1 LD_kv")
    for kv in (False, True):
        nm = 2 if kv else 3
        if kv:
            a.label("LD_kv")
        a.vm, a.vm_done, a.ds, a.ds_done = [], 0, [], 0
        for s in range(2):
            for grp in dma_stage_ops(s, nm):
                a.vm.append(f"S{s}")
        for s in range(2, NSLOT):
            for grp in dma_stage_ops(s, nm):
                emit_group(a, grp)

        def landed(k):
            a.wait(vm=[f"S{k}"])
            a.i(f"v_mov_b32 v{V_SV}, {k+1}")
            a.i(f"ds_write_b32 v{V_SYW}, v{V_SV}")
        landed(0)
        for s in range(NSLOT, NLOAD):
            landed(s - 3)
            lp, ok = newlbl("LD_lp"), newlbl("LD_ok")
            a.i(f"s_mov_b32 s{S_ST}, {SPIN_MAX*8}")
            a.label(lp)
            a.i(f"ds_read_b32 v{V_SY}, v{V_SYA}")
            a.i(f"s_sub_u32 s{S_ST}, s{S_ST}, 1")
            a.i(f"s_cbranch_scc1 {ok}")
            a.i("s_waitcnt lgkmcnt(0)")
            a.i(f"v_cmp_le_u32 vcc, {s-3}, v{V_SY}")
            a.i("s_cmp_eq_u64 vcc, exec")
            a.i(f"s_cbranch_scc1 {ok}")
            a.i("s_sleep 1")
            a.i(f"s_branch {lp}")
            a.label(ok)
            for grp in dma_stage_ops(s, nm):
                emit_group(a, grp)
        for k in range(NLOAD - 3, NLOAD):
            landed(k)
        lp, ok = newlbl("LD_lp"), newlbl("LD_ok")
        a.i("s_setprio 0")
        a.i(f"s_mov_b32 s{S_ST}, {SPIN_MAX*8}")
        a.label(lp)
        a.i(f"ds_read_b32 v{V_SY}, v{V_SYA}")
        a.i(f"s_sub_u32 s{S_ST}, s{S_ST}, 1")
        a.i(f"s_cbranch_scc1 {ok}")
        a.i("s_waitcnt lgkmcnt(0)")
        a.i(f"v_cmp_le_u32 vcc, 8, v{V_SY}")
        a.i("s_cmp_eq_u64 vcc, exec")
        a.i(f"s_cbranch_scc1 {ok}")
        a.i("s_sleep 2")
        a.i(f"s_branch {lp}")
        a.label(ok)
        a.i("s_waitcnt lgkmcnt(0)")
        a.i("s_branch L_consumer")


def p_prologue(a, cfg):
    a.label("L_producer")
    a.i("s_memrealtime s[100:101]")
    a.i(f"s_setprio {cfg.prio_p}")
    t = V_T
    for j in range(3, 11):
        tj(a, j)
    a.i(f"s_mov_b32 s{S_C1}, {LOG2E:#x}")
    a.i(f"s_mov_b32 s{S_C2}, {NLOG2E:#x}")
    a.i(f"s_mov_b32 s{S_C3}, {EPS:#x}")
    a.i(f"v_lshlrev_b32 v{V_STO}, 4, v{V_LANE}")
    a.i(f"v_mov_b32 v{V_ONE}, 1")
    a.i(f"v_and_b32 v{t}, 31, v{V_LANE}")
    a.i(f"v_lshrrev_b32 v{t+1}, 5, v{V_LANE}")
    a.i(f"v_bfe_u32 v{t+2}, v{t}, 1, 3")
    a.i(f"v_xor_b32 v{t+2}, v{t+2}, v{t+1}")
    a.i(f"v_lshlrev_b32 v{t}, 7, v{t}")
    for s in range(4):
        a.i(f"v_xor_b32 v{t+3}, {2*s}, v{t+2}")
        a.i(f"v_lshl_add_u32 v{V_XF+s}, v{t+3}, 4, v{t}")
    a.i(f"v_bfe_u32 v{t}, v{V_LANE}, 4, 1")
    a.i(f"v_lshrrev_b32 v{t+1}, 5, v{V_LANE}")
    a.i(f"v_bfe_u32 v{t+2}, v{V_LANE}, 2, 2")
    a.i(f"v_bfe_u32 v{t+3}, v{V_LANE}, 1, 1")
    a.i(f"s_lshl_b32 s{S_T0}, s{S_WAVE}, 1")
    a.i(f"v_add_u32 v{t+3}, s{S_T0}, v{t+3}")
    a.i(f"v_bfe_u32 v{t+4}, v{V_LANE}, 3, 1")
    a.i(f"v_lshlrev_b32 v{t+4}, 1, v{t+4}")
    a.i(f"v_lshl_add_u32 v{t+4}, v{t}, 2, v{t+4}")
    a.i(f"v_xor_b32 v{t+3}, v{t+3}, v{t+4}")
    a.i(f"v_lshlrev_b32 v{t+5}, 13, v{t}")
    a.i(f"v_lshl_add_u32 v{t+5}, v{t+1}, 10, v{t+5}")
    a.i(f"v_lshl_add_u32 v{t+5}, v{t+2}, 7, v{t+5}")
    a.i(f"v_lshl_add_u32 v{t+5}, v{t+3}, 4, v{t+5}")
    a.i(f"v_and_b32 v{t+6}, 1, v{V_LANE}")
    a.i(f"v_lshl_add_u32 v{V_WT}, v{t+6}, 3, v{t+5}")
    a.i(f"v_and_b32 v{t}, 7, v{V_LANE}")
    a.i(f"v_lshlrev_b32 v{V_SYA}, 2, v{t}")
    a.i(f"v_add_u32 v{V_SYA}, {SYNC_OFF}, v{V_SYA}")
    a.i(f"v_bfe_u32 v{t}, v{V_LANE}, 2, 1")
    a.i(f"v_lshlrev_b32 v{t+1}, 1, v{t}")
    a.i(f"v_sub_u32 v{V_THR}, 1, v{t+1}")
    a.i(f"v_lshlrev_b32 v{t}, 5, v{t}")
    a.i(f"v_sub_u32 v{V_WA}, 32, v{t}")
    a.i(f"s_lshl_b32 s{S_T0}, s{S_WAVE}, 2")
    a.i(f"s_add_u32 s{S_T0}, s{S_T0}, {SYNC_OFF}")
    a.i(f"v_mov_b32 v{V_SYW}, s{S_T0}")
    a.i("s_waitcnt lgkmcnt(0)")
    srd(a, S_X, 16, 2048 * 1024)
    srd(a, S_WS, 36, WS_USED)
    srd(a, S_DBG, 34, 256)
    a.i("s_barrier")
    a.i("s_getpc_b64 s[94:95]")
    a.label("P_pc")
    a.i(f"s_cmp_lg_u32 s{S_WAVE}, 0")
    a.i("s_cbranch_scc1 P_notag")
    a.i("s_mov_b64 exec, 0xffff")
    a.i(f"s_lshl_b32 s{S_T0}, s{S_IDX}, 11")
    a.i(f"v_lshlrev_b32 v{t+2}, 7, v{V_LANE}")
    a.i(f"v_add_u32 v{t+2}, s{S_T0}, v{t+2}")
    a.i(f"v_min_u32 v{t+2}, CODE_END-CODE_BEGIN-4, v{t+2}")
    a.i("s_sub_u32 s94, s94, P_pc-CODE_BEGIN")
    a.i("s_subb_u32 s95, s95, 0")
    a.i(f"global_load_dword v{V_WA2}, v{t+2}, s[94:95]")
    a.i("s_cmp_lg_u32 s2, 0")
    a.i("s_cbranch_scc1 P_notag0")
    a.i(f"s_or_b32 s{S_COLA}, s100, 1")
    a.i(f"v_mov_b32 v{V_WB}, s{S_COLA}")
    a.i("s_mov_b64 exec, 1")
    a.i(f"buffer_store_dword v{V_WB}, v{V_STO}, s[{S_DBG}:{S_DBG+3}], 0 offen offset:252 sc1")
    a.label("P_notag0")
    a.i("s_mov_b64 exec, -1")
    a.label("P_notag")


def p_tag_out(a, sfx):
    sk, lp, ok = newlbl("P_nt"), newlbl("P_tl"), newlbl("P_to")
    a.i(f"s_cmp_lg_u32 s{S_WAVE}, 0")
    a.i(f"s_cbranch_scc1 {sk}")
    a.i(f"s_mov_b32 s{S_SPIN}, {SPIN_MAX}")
    a.i("s_mov_b64 exec, 1")
    a.label(lp)
    a.i(f"buffer_load_dword v{V_WB}, v{V_STO}, s[{S_DBG}:{S_DBG+3}], 0 offen offset:252 sc1")
    a.i(f"s_sub_u32 s{S_SPIN}, s{S_SPIN}, 1")
    a.i(f"s_cbranch_scc1 {ok}")
    a.i("s_waitcnt vmcnt(0)")
    a.i(f"v_cmp_ne_u32 vcc, 0, v{V_WB}")
    a.i(f"s_cbranch_vccnz {ok}")
    a.i("s_sleep 8")
    a.i(f"s_branch {lp}")
    a.label(ok)
    a.i(f"v_mov_b32 v{V_T}, {SYNC_OFF + 64}")
    a.i(f"ds_write_b32 v{V_T}, v{V_WB}")
    a.i("s_mov_b64 exec, -1")
    a.label(sk)


_lbl = [0]


def newlbl(p):
    _lbl[0] += 1
    return f"{p}_{_lbl[0]}"


def sync_read(a):
    a.dsop("sy", f"ds_read_b32 v{V_SY}, v{V_SYA}")


def sync_publish_full(a, s):
    a.i(f"v_mov_b32 v{V_SV}, {s+1}")
    a.dsop("syw", f"ds_write_b32 v{V_SYW}, v{V_SV} offset:32")


def sync_enter(a, s):
    a.wait(ds_all=True)
    if s > 0:
        a.i(f"v_mov_b32 v{V_SV}, {s}")
        a.dsop("syw", f"ds_write_b32 v{V_SYW}, v{V_SV} offset:16")
    ok, lp = newlbl("SY_ok"), newlbl("SY_lp")
    a.i(f"v_cmp_ge_i32 vcc, v{V_SY}, v{V_THR}")
    a.i("s_cmp_eq_u64 vcc, exec")
    a.i(f"s_cbranch_scc1 {ok}")
    a.i(f"s_mov_b32 s{S_SPIN}, {SPIN_MAX}")
    a.label(lp)
    a.i(f"ds_read_b32 v{V_SY}, v{V_SYA}")
    a.i(f"s_sub_u32 s{S_SPIN}, s{S_SPIN}, 1")
    a.i(f"s_cbranch_scc1 {ok}")
    a.i("s_waitcnt lgkmcnt(0)")
    a.i(f"v_cmp_ge_i32 vcc, v{V_SY}, v{V_THR}")
    a.i("s_cmp_eq_u64 vcc, exec")
    a.i(f"s_cbranch_scc1 {ok}")
    a.i("s_sleep 1")
    a.i(f"s_branch {lp}")
    a.label(ok)
    a.i(f"v_add_u32 v{V_THR}, 1, v{V_THR}")


XNOEPI = False


def sync_mid(a):
    a.wait(ds=["sy"])
    ok, lp = newlbl("SM_ok"), newlbl("SM_lp")
    a.i(f"v_cmp_ge_i32 vcc, v{V_SY}, v{V_THR}")
    a.i(f"s_and_b32 s{S_T0}, vcc_lo, 0xf0")
    a.i(f"s_cmp_eq_u32 s{S_T0}, 0xf0")
    a.i(f"s_cbranch_scc1 {ok}")
    a.i(f"s_mov_b32 s{S_SPIN}, {SPIN_MAX}")
    a.label(lp)
    a.i(f"ds_read_b32 v{V_SY}, v{V_SYA}")
    a.i(f"s_sub_u32 s{S_SPIN}, s{S_SPIN}, 1")
    a.i(f"s_cbranch_scc1 {ok}")
    a.i("s_waitcnt lgkmcnt(0)")
    a.i(f"v_cmp_ge_i32 vcc, v{V_SY}, v{V_THR}")
    a.i(f"s_and_b32 s{S_T0}, vcc_lo, 0xf0")
    a.i(f"s_cmp_eq_u32 s{S_T0}, 0xf0")
    a.i(f"s_cbranch_scc1 {ok}")
    a.i("s_sleep 1")
    a.i(f"s_branch {lp}")
    a.label(ok)


def mk_ops(chk_blks):
    ops = []

    def V(cost, s, chk=False):
        if XNOEPI and not chk:
            return
        def f(a, s=s, chk=chk):
            if chk:
                for b in chk_blks:
                    a.need_acc(b)
            a.i(s)
        ops.append((cost, f))
    return ops, V


def epi_mlp(cfg, acc, j):
    ops, V = mk_ops([acc])
    for r in range(8):
        V(4, f"v_mul_f32 v{acc+8+r}, v{acc+r}, v{acc+8+r}", chk=True)
    for r in range(8):
        V(4, f"v_mul_f32 v{acc+r}, s{S_C2}, v{acc+r}")
    for r in range(8):
        V(8, f"v_exp_f32 v{acc+r}, v{acc+r}")
    for r in range(8):
        V(4, f"v_add_f32 v{acc+r}, 1.0, v{acc+r}")
    for r in range(8):
        V(8, f"v_rcp_f32 v{acc+r}, v{acc+r}")
    for r in range(8):
        V(4, f"v_mul_f32 v{acc+8+r}, v{acc+r}, v{acc+8+r}")
    for k in range(4):
        V(4, f"v_cvt_pk_bf16_f32 v{acc+k}, v{acc+8+2*k}, v{acc+9+2*k}")

    def st(a):
        a.i(f"s_mul_i32 s{S_T0}, s{S_TJ+j}, {AF_TT}")
        a.i(f"s_add_u32 s{S_T0}, s{S_T0}, s{S_ST}")
        a.vmem(f"st{j}", f"buffer_store_dwordx4 v[{acc}:{acc+3}], v{V_STO}, s[{S_WS}:{S_WS+3}], s{S_T0} offen {cfg.store_aux}")
        a.nop(1)
    ops.append((16, st))
    return ops


def phi_ops(V, regs, tmp):
    for k, r in enumerate(regs):
        V(4, f"v_mul_f32 v{tmp+k}, s{S_C1}, v{r}", chk=True)
    for k, r in enumerate(regs):
        V(8, f"v_exp_f32_e64 v{tmp+k}, v{tmp+k} clamp")
    for k, r in enumerate(regs):
        V(4, f"v_max_f32 v{r}, 0, v{r}")
    for k, r in enumerate(regs):
        V(4, f"v_add_f32 v{r}, v{r}, v{tmp+k}")
    for k, r in enumerate(regs):
        V(4, f"v_add_f32 v{r}, s{S_C3}, v{r}")


def epi_q(cfg, acc, j):
    ops, V = mk_ops([acc])
    for half in range(2):
        regs = [acc + 8 * half + r for r in range(8)]
        o = acc + 8 * half
        for k in range(4):
            V(4, f"v_cvt_pk_bf16_f32 v{o+k}, v{regs[2*k]}, v{regs[2*k+1]}", chk=True)

        def st(a, o=o, half=half):
            a.i(f"s_mul_i32 s{S_T0}, s{S_TJ+j}, {AF_TT}")
            a.i(f"s_add_u32 s{S_T0}, s{S_T0}, s{S_ST}")
            if half:
                a.i(f"s_add_u32 s{S_T0}, s{S_T0}, 4096")
            a.vmem(f"st{j}" if half else f"sth{j}",
                   f"buffer_store_dwordx4 v[{o}:{o+3}], v{V_STO}, s[{S_WS}:{S_WS+3}], s{S_T0} offen {cfg.store_aux}")
            a.nop(1)
        ops.append((16, st))
    return ops


def epi_kv(cfg, acc0, acc1, first):
    ops, V = mk_ops([acc0, acc1])
    for r in range(16):
        V(4, f"v_permlane16_swap_b32 v{acc0+r}, v{acc1+r}", chk=True)
    for half in range(2):
        phi_ops(V, [acc0 + 8 * half + r for r in range(8)], V_T)
    for k in range(8):
        V(4, f"v_cvt_pk_bf16_f32 v{acc1+k}, v{acc1+2*k}, v{acc1+2*k+1}")
    for r in range(16):
        if first and r == 0:
            V(4, f"v_mov_b32 v{V_ZS}, v{acc0}")
        else:
            V(4, f"v_add_f32 v{V_ZS}, v{V_ZS}, v{acc0+r}")
    for k in range(8):
        V(4, f"v_cvt_pk_bf16_f32 v{acc0+k}, v{acc0+2*k}, v{acc0+2*k+1}")

    def mm(a):
        a.nop(2)
        a.mfma(V_KV, f"v[{acc0}:{acc0+3}]", f"v[{acc1}:{acc1+3}]", None if first else V_KV)
        a.mfma(V_KV, f"v[{acc0+4}:{acc0+7}]", f"v[{acc1+4}:{acc1+7}]", V_KV)
    ops.append((24, mm))
    return ops


class St:
    pass


def flag_store(a, j):
    a.i(f"s_mul_i32 s{S_T0}, s{S_TJ+j}, {FL_TT}")
    a.i(f"s_add_u32 s{S_T0}, s{S_T0}, s{S_FLB}")
    a.i(f"s_mov_b64 exec, s[{S_MASK}:{S_MASK+1}]")
    a.vmem("fl", f"buffer_store_dword v{V_TAG}, v{V_STO}, s[{S_WS}:{S_WS+3}], s{S_T0} offen sc1")
    a.i("s_mov_b64 exec, -1")


XNOPUB = False


def publish_ready(a, st):
    if XNOPUB:
        st.unpub.clear()
    for j in list(st.unpub):
        tg = f"st{j}"
        if tg in a.vm and a.vm.index(tg) < a.vm_done:
            flag_store(a, j)
            st.unpub.remove(j)


def p_head(a, kv):
    t = V_T
    if not kv:
        a.i(f"s_lshl_b32 s{S_T0}, s{S_UNIT}, 2")
        a.i(f"s_lshl_b32 s{S_T1}, s{S_UNIT}, 3")
        a.i(f"s_sub_u32 s{S_T1}, s{S_T1}, {28*8-112}")
        a.i("s_cmp_eq_u32 s3, 0")
        a.i(f"s_cselect_b32 s{S_T0}, s{S_T0}, s{S_T1}")
        a.i(f"s_cselect_b32 s{S_MASK}, 1, 3")
        a.i(f"s_mov_b32 s{S_MASK+1}, 0")
        a.i(f"s_add_u32 s{S_T0}, s{S_T0}, s{S_WAVE}")
        a.i(f"s_lshl_b32 s{S_ST}, s{S_T0}, 10")
        if AF_OFF:
            a.i(f"s_add_u32 s{S_ST}, s{S_ST}, {AF_OFF}")
        a.i(f"s_lshl_b32 s{S_FLB}, s{S_T0}, 2")
        a.i(f"s_add_u32 s{S_FLB}, s{S_FLB}, {FL_OFF}")
    else:
        a.i(f"s_lshl_b32 s{S_T0}, s{S_XCD}, 2")
        a.i(f"s_add_u32 s{S_T0}, s{S_T0}, s{S_WAVE}")
        a.i(f"s_lshl_b32 s{S_UNIT}, s{S_T0}, 2")
        a.i(f"s_mul_i32 s{S_ST}, s{S_T0}, {KVT_HEAD}")
        a.i(f"s_add_u32 s{S_ST}, s{S_ST}, {KVT_OFF}")
        a.i(f"s_cmp_lg_u32 s{S_P}, 0")
        a.i("s_cbranch_scc1 P_kv_nozero")
        a.i(f"v_lshlrev_b32 v{t}, 3, v{V_LANE}")
        for k in range(6):
            a.i(f"v_mov_b32 v{V_KV+k}, 0")
        a.i(f"buffer_atomic_swap_x2 v[{V_KV}:{V_KV+1}], v{t}, s[{S_WS}:{S_WS+3}], s{S_ST} offen sc0")
        a.i(f"buffer_atomic_swap_x2 v[{V_KV+2}:{V_KV+3}], v{t}, s[{S_WS}:{S_WS+3}], s{S_ST} offen offset:512 sc0")
        a.i("s_mov_b64 exec, 0xffff")
        a.i(f"buffer_atomic_swap_x2 v[{V_KV+4}:{V_KV+5}], v{t}, s[{S_WS}:{S_WS+3}], s{S_ST} offen offset:1024 sc0")
        a.i("s_mov_b64 exec, -1")
        a.label("P_kv_nozero")


def dbg_add(a, soff_expr_reg, tag):
    a.i("s_mov_b64 exec, 1")
    a.vmem(tag, f"buffer_atomic_add v{V_ONE}, v{V_STO}, s[{S_DBG}:{S_DBG+3}], s{soff_expr_reg} offen")
    a.i("s_mov_b64 exec, -1")


def p_first_pass(a, cfg, kv):
    nm = 2 if kv else 3
    nl = 6 if kv else 8
    ring = 5 if kv else 6
    st = St()
    st.nm, st.nl, st.kv, st.ring = nm, nl, kv, ring
    st.acc_blk = [V_ACC + 16 * k for k in range(4)]
    st.unpub = []
    st.nstage = 8 + nl
    a.vm, a.vm_done, a.ds, a.ds_done, a.mfma_w = [], 0, [], 0, {}
    p_head(a, kv)

    def opnds(q, xf):
        w = f"a[{4*q}:{4*q+3}]"
        x = f"v[{xf}:{xf+3}]"
        return (x, w) if kv else (w, x)
    st.opnds = opnds
    half = 4 * nm

    def fp_reads(n):
        i, s = divmod(n, 4)
        L = []
        for rd in range(2):
            L.append((f"w{n}", f"ds_read_b64_tr_b16 a[{4*n+2*rd}:{4*n+2*rd+1}], v{V_WT} offset:{s*2048 + rd*512}"))
        for m in range(nm):
            xf = V_XFR + (n % 2) * half + 4 * m
            L.append((f"x{n}_{m}", f"ds_read_b128 v[{xf}:{xf+3}], v{V_XF+s} offset:{16384 + m*4096}"))
        return L

    stamp(a, 1)
    sync_read(a)
    sync_enter(a, 0)
    stamp(a, 2)
    for tag, text in fp_reads(0):
        a.dsop(tag, text)
    dma_q = []
    for n in range(32):
        i, s = divmod(n, 4)
        if s == 3:
            if i == 6:
                p_tag_out(a, "kv" if kv else "m")
            if i == 5 and kv:
                a.i(f"s_cmp_lg_u32 s{S_P}, 0")
                a.i("s_cbranch_scc1 P_kv_noflag")
                a.i("s_waitcnt vmcnt(0)")
                a.i("s_mov_b64 exec, 1")
                a.i(f"v_mov_b32 v{V_T}, 0x10000")
                a.i(f"buffer_store_dword v{V_T}, v{V_STO}, s[{S_DBG}:{S_DBG+3}], s{S_UNIT} offen sc1")
                a.i("s_mov_b64 exec, -1")
                a.label("P_kv_noflag")
            sync_enter(a, i + 1)
            if FPST == 1 and i == 4:
                stamp(a, 3, force=True)
            if FPST == 2 and i in (0, 1, 2, 3, 5):
                stamp(a, {0: 1, 1: 2, 2: 3, 3: 4, 5: 5}[i], force=True)
            if i + 3 >= NLOAD:
                dma_q += dma_stage_ops(i + 3, nm)
            d = (slot_of(i + 1) - slot_of(i)) & 0xffffffff
            regs = (V_XF, V_XF + 1, V_XF + 2, V_XF + 3) + ((V_WT,) if i < 7 else ())
            for r in regs:
                a.i(f"v_add_u32 v{r}, {d:#x}, v{r}")
        if FPST == 1 and n == 20:
            stamp(a, 4, force=True)
        if FPST == 1 and n == 22:
            stamp(a, 5, force=True)
        if n < 31:
            fill = fp_reads(n + 1)
        else:
            fill = [lp_read(st, 0, q) for q in range(nm)]
        if s == 2:
            fill = fill + [("sy", f"ds_read_b32 v{V_SY}, v{V_SYA}")]
        if cfg.x_nomfma and n < 31:
            fill = [f for f in fill if f[0] == "sy"]
        for m in range(nm):
            a.wait(ds=[f"w{n}", f"x{n}_{m}"])
            A, B = opnds(n, V_XFR + (n % 2) * half + 4 * m)
            if not cfg.x_nomfma:
                a.mfma(st.acc_blk[m], A, B, None if n == 0 else st.acc_blk[m])
            k = 0
            while fill and k < 2:
                tag, text = fill.pop(0)
                a.dsop(tag, text)
                k += 1
            for _ in range(cfg.fp_dma_per_gap):
                if dma_q:
                    emit_group(a, dma_q.pop(0))
        while fill:
            tag, text = fill.pop(0)
            a.dsop(tag, text)
    st.dma_q = dma_q
    stamp(a, 3)
    return st


def lp_read(st, l, q):
    i, s = divmod(q, 4)
    xf = V_XFR + 4 * ((l * 32 + q) % st.ring)
    return (f"l{l}_{q}", f"ds_read_b128 v[{xf}:{xf+3}], v{V_XF+s} offset:{i*4096}")


def p_later(a, cfg, st, typ):
    nm, nl, acc_blk, opnds, ring = st.nm, st.nl, st.acc_blk, st.opnds, st.ring
    dma_q = list(st.dma_q)
    AH = min(cfg.ahead, ring - 1)
    st.unpub = []
    for q in range(nm, AH):
        tag, text = lp_read(st, 0, q)
        a.dsop(tag, text)
    if True:
        lp, ok = newlbl("TG_lp"), newlbl("TG_ok")
        a.i(f"v_mov_b32 v{V_T}, {SYNC_OFF + 64}")
        a.i(f"s_mov_b32 s{S_SPIN}, {SPIN_MAX*16}")
        a.label(lp)
        a.i(f"ds_read_b32 v{V_TAG}, v{V_T}")
        a.i(f"s_sub_u32 s{S_SPIN}, s{S_SPIN}, 1")
        a.i(f"s_cbranch_scc1 {ok}")
        a.i("s_waitcnt lgkmcnt(0)")
        a.i(f"v_cmp_eq_u32 vcc, 0, v{V_TAG}")
        a.i(f"s_cbranch_vccnz {lp}")
        a.label(ok)
        a.ds_done = len(a.ds)
    epi = []
    free_blk = acc_blk[nm:]

    def push_epi(blks, j, first=False):
        if typ == "mlp":
            ops = epi_mlp(cfg, blks[0], j)
        elif typ == "q":
            ops = epi_q(cfg, blks[0], j)
        else:
            ops = epi_kv(cfg, blks[0], blks[1], first)

        def rel(a, blks=blks, j=j):
            free_blk.extend(blks)
            if typ != "kv":
                st.unpub.append(j)
        ops.append((0, rel))
        epi.extend(ops)

    if typ == "kv":
        push_epi([acc_blk[0], acc_blk[1]], 0, first=True)
    else:
        for m in range(nm):
            push_epi([acc_blk[m]], m)
    pend = []

    def finish():
        stamp(a, 4)
        while epi:
            c, f = epi.pop(0)
            f(a)
        if typ == "kv":
            kv_tail(a, cfg)
        else:
            a.wait(vm_all=True)
            publish_ready(a, st)
            assert not st.unpub
            stamp(a, 5)
        stamp_flush(a, 0, 7, S_WS, 0)
        a.i("s_endpgm")

    for l in range(nl):
        s = 8 + l
        if typ != "kv" and l == nl - 1:
            snap = (list(a.vm), a.vm_done, list(a.ds), a.ds_done, dict(a.mfma_w), list(epi), list(free_blk), a.n, list(st.unpub))
            a.i(f"s_cmp_eq_u32 s{S_NT}, 11")
            a.i(f"s_cbranch_scc1 P_{typ}_last")
            finish()
            a.label(f"P_{typ}_last")
            a.vm, a.vm_done, a.ds, a.ds_done = snap[0], snap[1], snap[2], snap[3]
            epi[:] = snap[5]
            free_blk[:] = snap[6]
            st.unpub = snap[8]
            a.mfma_w = {k: a.n - (snap[7] - v) for k, v in snap[4].items()}
        while not free_blk:
            c, f = epi.pop(0)
            f(a)
        blk = free_blk.pop(0)
        has_next = l + 1 < nl
        for q in range(32):
            budget = cfg.fill_per_gap
            if q == 18:
                if has_next and s + 1 >= NLOAD:
                    tg = f"S{s+1}"
                    assert not any(op[1] == tg for g in dma_q for op in g), tg
                    assert tg in a.vm
                    a.wait(vm=[tg])
                    sync_publish_full(a, s + 1)
                    budget -= 12
                n0 = a.n
                publish_ready(a, st)
                budget -= 4 * (a.n - n0)
            if q % 4 == 0 and st.unpub:
                j = st.unpub[0]
                if st.store_pos.get(j, -99) <= (l * 32 + q) - cfg.pub_age:
                    a.wait(vm=[f"st{j}"])
                    n0 = a.n
                    publish_ready(a, st)
                    budget -= 4 * (a.n - n0)
            if s >= 9 and s + 2 < st.nstage:
                if q == 3:
                    sync_read(a)
                if q == 6:
                    sync_mid(a)
                    dma_q += dma_stage_ops(s + 2, nm)
                    budget -= 16
            if q == 32 - AH - 2 and has_next:
                if s + 1 == NLOAD:
                    a.i(f"v_add_u32 v{V_SYA}, v{V_WA}, v{V_SYA}")
                sync_read(a)
            if q == 32 - AH and has_next:
                sync_enter(a, s + 1)
                d = (slot_of(s + 1) - slot_of(s)) & 0xffffffff
                for r in range(4):
                    a.i(f"v_add_u32 v{V_XF+r}, {d:#x}, v{V_XF+r}")
                budget = 0
            a.wait(ds=[f"l{l}_{q}"])
            A, B = opnds(q, V_XFR + 4 * ((l * 32 + q) % ring))
            a.mfma(blk, A, B, None if q == 0 else blk)
            if q + AH < 32:
                tag, text = lp_read(st, l, q + AH)
                a.dsop(tag, text)
            elif has_next:
                tag, text = lp_read(st, l + 1, q + AH - 32)
                a.dsop(tag, text)
            if dma_q and q % 2 == 1:
                emit_group(a, dma_q.pop(0))
                budget -= 16
            while epi and budget > 0:
                c, f = epi[0]
                if c > budget and budget < cfg.fill_per_gap and c <= cfg.fill_per_gap:
                    break
                epi.pop(0)
                nv = len(a.vm)
                f(a)
                if len(a.vm) > nv and a.vm[-1].startswith("st") and not a.vm[-1].startswith("sth"):
                    st.store_pos[int(a.vm[-1][2:])] = l * 32 + q
                budget -= c
        pend.append(blk)
        if typ == "kv":
            if len(pend) == 2:
                push_epi(pend, 0)
                pend = []
        else:
            push_epi(pend, nm + l)
            pend = []
    assert not dma_q
    finish()


def spin_dbg(a, cond_lines, name, rec=False, sleep=8):
    t = V_T
    lp, ok = newlbl(name + "_lp"), newlbl(name + "_ok")
    a.i(f"s_mov_b32 s{S_SPIN}, {SPIN_MAX}")
    a.label(lp)
    a.i("s_mov_b64 exec, 1")
    if rec:
        a.i(f"buffer_load_dword v{t}, v{V_STO}, s[{S_WS}:{S_WS+3}], s{S_ST} offen offset:1120 sc1")
    else:
        a.i(f"buffer_load_dword v{t}, v{V_STO}, s[{S_DBG}:{S_DBG+3}], s{S_UNIT} offen sc1")
    a.i("s_waitcnt vmcnt(0)")
    a.i(f"v_readfirstlane_b32 s{S_T0}, v{t}")
    a.i("s_mov_b64 exec, -1")
    a.i(f"s_sub_u32 s{S_SPIN}, s{S_SPIN}, 1")
    a.i(f"s_cbranch_scc1 {ok}")
    for c in cond_lines:
        a.i(c)
    a.i(f"s_cbranch_scc1 {ok}")
    a.i(f"s_sleep {sleep}")
    a.i(f"s_branch {lp}")
    a.label(ok)
    a.vm_done = len(a.vm)


def kv_tail(a, cfg):
    t = V_T
    B = V_ACC
    a.i("s_setprio 0")
    a.need_acc(V_KV, 16)
    for r in range(8):
        a.i(f"v_permlane16_swap_b32 v{V_KV+8+r}, v{t+r}")
    a.i(f"v_mov_b32 v{B}, v{V_ZS}")
    a.nop(2)
    a.i(f"v_permlane16_swap_b32 v{B}, v{V_ZS}")
    a.nop(1)
    a.i(f"v_add_f32 v{V_ZS}, v{V_ZS}, v{B}")
    a.i(f"v_mov_b32 v{B}, v{V_ZS}")
    a.nop(2)
    a.i(f"v_permlane32_swap_b32 v{B}, v{V_ZS}")
    a.nop(1)
    a.i(f"v_add_f32 v{V_ZS}, v{V_ZS}, v{B}")
    for r in range(8):
        a.i(f"v_add_f32 v{V_KV+r}, v{V_KV+r}, v{t+r}")
    a.i(f"s_mul_i32 s{S_T1}, s{S_WAVE}, {KVT_HEAD}")
    a.i(f"s_add_u32 s{S_T1}, s{S_T1}, {KVS_OFF}")
    a.i(f"v_and_b32 v{B}, 15, v{V_LANE}")
    a.i(f"v_lshrrev_b32 v{B+1}, 5, v{V_LANE}")
    a.i(f"v_lshl_add_u32 v{B+1}, v{B+1}, 4, v{B}")
    a.i(f"v_lshlrev_b32 v{B+1}, 5, v{B+1}")
    a.i(f"v_add_u32 v{B+1}, s{S_T1}, v{B+1}")
    a.i(f"v_and_b32 v{B+2}, 3, v{B}")
    a.i(f"v_lshrrev_b32 v{B+3}, 3, v{B}")
    a.i(f"v_lshl_add_u32 v{B+2}, v{B+3}, 2, v{B+2}")
    a.i(f"v_bfe_u32 v{B+3}, v{B}, 2, 1")
    a.i(f"v_lshl_add_u32 v{B+2}, v{B+3}, 3, v{B+2}")
    a.i(f"v_lshlrev_b32 v{B+2}, 2, v{B+2}")
    a.i(f"v_add_u32 v{B+2}, s{S_T1}, v{B+2}")
    a.i(f"v_lshlrev_b32 v{B+4}, 2, v{V_LANE}")
    a.i(f"v_add_u32 v{B+3}, s{S_T1}, v{B+4}")
    a.i(f"s_mov_b32 s{S_MASK}, 0xffff")
    a.i(f"s_mov_b32 s{S_MASK+1}, 0xffff")
    a.i(f"s_mov_b64 exec, s[{S_MASK}:{S_MASK+1}]")
    a.i(f"ds_write_b128 v{B+1}, v[{V_KV}:{V_KV+3}]")
    a.i(f"ds_write_b128 v{B+1}, v[{V_KV+4}:{V_KV+7}] offset:16")
    a.i("s_mov_b64 exec, 0xffff")
    a.i(f"ds_write_b32 v{B+2}, v{V_ZS} offset:1024")
    a.i("s_mov_b64 exec, -1")
    a.i("s_waitcnt lgkmcnt(0)")
    for k in range(5):
        a.i(f"ds_read_b32 v{B+8+k}, v{B+3} offset:{256*k}")
    spin_dbg(a, [f"s_cmp_ge_u32 s{S_T0}, 0x10000"], "KZ")
    a.i("s_waitcnt lgkmcnt(0)")
    for k in range(5):
        if k == 4:
            a.i("s_mov_b64 exec, 0xffff")
        a.i(f"buffer_atomic_add_f32 v{B+8+k}, v{B+4}, s[{S_WS}:{S_WS+3}], s{S_ST} offen offset:{256*k}")
    a.i("s_waitcnt vmcnt(0)")
    a.i("s_mov_b64 exec, 1")
    a.i(f"buffer_atomic_add v{V_ONE}, v{V_STO}, s[{S_WS}:{S_WS+3}], s{S_ST} offen offset:1120 sc0")
    a.i("s_waitcnt vmcnt(0)")
    a.i(f"v_readfirstlane_b32 s{S_T0}, v{V_ONE}")
    a.i(f"s_add_u32 s{S_T1}, s{S_UNIT}, {FLK_OFF}")
    a.i(f"s_cmp_lg_u32 s{S_T0}, 7")
    a.i("s_cbranch_scc1 KV_notlast")
    a.i(f"buffer_store_dword v{V_TAG}, v{V_STO}, s[{S_WS}:{S_WS+3}], s{S_T1} offen sc1")
    a.i(f"buffer_store_dword v{V_TAG}, v{V_STO}, s[{S_WS}:{S_WS+3}], s{S_T1} offen offset:{FL_TT} sc1")
    a.label("KV_notlast")
    a.i("s_mov_b64 exec, -1")
    stamp(a, 5)
    a.vm_done = len(a.vm)


def ready_slot(rb, u):
    def slot(tile):
        for p in range(6):
            if PART_START[p] <= tile < PART_START[p] + PART_N[p]:
                pos = tile - PART_START[p]
                return max((pos - rot_of(u)) % PART_N[p], 2)
    return max(slot(2 * rb), slot(2 * rb + 1))


def order_row(rb):
    hu = [u for _, u in sorted((ready_slot(rb, u), u) for u in range(28))]
    qu = [u for _, u in sorted((ready_slot(rb, u), u) for u in range(28, 32))]
    qg = []
    for u in qu:
        qg += [28 + 2 * (u - 28), 29 + 2 * (u - 28)]
    return hu + qg + [36]


def step_pattern(cfg):
    seq = []
    h = q = 0
    nf = cfg.h_first
    qpos = [int(round((k + cfg.q_bias / 10.0) * nf / 4.0)) for k in range(4)]
    while h < nf or q < 8:
        if q < 8 and (h >= qpos[q // 2] or h >= nf):
            seq.append(("q", q)); q += 1
        else:
            seq.append(("h", h)); h += 1
    for k in range(8):
        seq.append(("a", k))
        if h < 28:
            seq.append(("h", h)); h += 1
    while h < 28:
        seq.append(("h", h)); h += 1
    return seq


def consumer(a, cfg):
    D = cfg.depth
    C_WS, C_W2, C_WO, C_OUT, C_DBG, C_X, C_GW = 40, 44, 48, 52, 56, 76, 80
    C_W, C_RB, C_CB, C_M0, T0, T1, T2, T3 = 6, 7, 8, 9, 10, 11, 12, 13
    C_NEED, C_SPIN = 60, 61
    C_MASK = 62
    C_TM = 64
    C_RET = 66
    C_POLL = 68
    C_STEP = 70
    C_EPS, C_L2E = 14, 15
    V_L = 1
    V_A0, V_A1, V_WD, V_TR0, V_TR1, V_KVA = 2, 3, 4, 5, 6, 7
    V_G = 16
    V_KVF = 28
    V_OF = 48
    A_ND, A_PQ = 32, 64
    VT = 8
    V_ST, V_FA0, V_MA, V_TAGC = 20, 21, 22, 23
    V_RC = 26
    V_WF = 32
    P = 56
    ACC = 64
    GL_OFF = SYNC_OFF + 128
    a.label("L_consumer")
    a.vm, a.vm_done, a.ds, a.ds_done, a.mfma_w = [], 0, [], 0, {}
    a.i("s_getpc_b64 s[72:73]")
    a.label("C_pc")
    if cfg.mode == 0:
        a.i(f"s_lshr_b32 s{C_RB}, s{S_IDX}, 3")
        a.i(f"s_lshl_b32 s{T2}, s{S_XCD}, 2")
        a.i(f"s_add_u32 s{C_RB}, s{C_RB}, s{T2}")
        a.i(f"s_and_b32 s{C_CB}, s{S_IDX}, 7")
    else:
        a.i(f"s_lshr_b32 s{C_RB}, s{S_XCD}, 1")
        a.i(f"s_lshl_b32 s{C_RB}, s{C_RB}, 3")
        a.i(f"s_lshr_b32 s{T2}, s{S_IDX}, 2")
        a.i(f"s_add_u32 s{C_RB}, s{C_RB}, s{T2}")
        a.i(f"s_and_b32 s{C_CB}, s{S_XCD}, 1")
        a.i(f"s_lshl_b32 s{C_CB}, s{C_CB}, 2")
        a.i(f"s_and_b32 s{T2}, s{S_IDX}, 3")
        a.i(f"s_add_u32 s{C_CB}, s{C_CB}, s{T2}")
    a.i("s_add_u32 s74, s72, ORDER_TAB-C_pc")
    a.i("s_addc_u32 s75, s73, 0")
    a.i(f"s_lshl_b32 s{T0}, s{C_RB}, 6")
    a.i(f"v_add_u32 v{VT}, s{T0}, v{V_L}")
    a.vmem("tab", f"global_load_ubyte v{V_ST}, v{VT}, s[74:75]")
    a.i("s_add_u32 s68, s72, C_poll-C_pc")
    a.i("s_addc_u32 s69, s73, 0")
    t = VT
    a.i("s_waitcnt lgkmcnt(0)")
    srd(a, C_WS, 36, WS_USED)
    srd(a, C_W2, 28, 1792 * 1024)
    srd(a, C_WO, 20, 512 * 1024)
    srd(a, C_OUT, 32, 2048 * 1024)
    srd(a, C_DBG, 34, 256)
    srd(a, C_X, 16, 2048 * 1024)
    srd(a, C_GW, 30, 1024)
    a.i(f"v_mov_b32 v{V_MA}, {SYNC_OFF + 64}")
    a.i(f"v_lshlrev_b32 v{V_A0}, 4, v{V_L}")
    a.i(f"s_mov_b32 s{C_SPIN}, {SPIN_MAX*8}")
    a.label("C_tlp")
    a.i(f"ds_read_b32 v{V_TAGC}, v{V_MA}")
    a.i(f"s_sub_u32 s{C_SPIN}, s{C_SPIN}, 1")
    a.i("s_cbranch_scc1 C_tok")
    a.i("s_waitcnt lgkmcnt(0)")
    a.i(f"v_cmp_ne_u32 vcc, 0, v{V_TAGC}")
    a.i("s_cbranch_vccnz C_tok")
    a.i("s_sleep 1")
    a.i("s_branch C_tlp")
    a.label("C_tok")
    a.i(f"s_cmp_lg_u32 s{C_CB}, 0")
    a.i("s_cbranch_scc1 C_nogate")
    a.i(f"s_lshl_b32 s{T0}, s{C_RB}, 16")
    a.i(f"s_lshl_b32 s{T1}, s{C_W}, 14")
    a.i(f"s_add_u32 s{T0}, s{T0}, s{T1}")
    a.i(f"buffer_load_dwordx4 v[{P}:{P+3}], v{V_A0}, s[{C_GW}:{C_GW+3}], 0 offen")
    for k in range(16):
        if k % 4 == 0 and k:
            a.i(f"s_add_u32 s{T0}, s{T0}, 4096")
        a.i(f"buffer_load_dwordx4 v[{ACC+4*k}:{ACC+4*k+3}], v{V_A0}, s[{C_X}:{C_X+3}], s{T0} offen offset:{1024*(k%4)}")
    a.i("s_waitcnt vmcnt(0)")
    R = [V_WF + k for k in range(16)]
    for k in range(16):
        a.i(f"v_dot2_f32_bf16 v{R[k]}, v{ACC+4*k}, v{P}, 0")
    for j in range(1, 4):
        for k in range(16):
            a.i(f"v_dot2_f32_bf16 v{R[k]}, v{ACC+4*k+j}, v{P+j}, v{R[k]}")
    a.nop(4)
    for mod in ("row_shr:1", "row_shr:2", "row_shr:4", "row_shr:8"):
        for r in R:
            a.i(f"v_add_f32_dpp v{r}, v{r}, v{r} {mod} row_mask:0xf bank_mask:0xf bound_ctrl:0")
    for r in R:
        a.i(f"v_add_f32_dpp v{r}, v{r}, v{r} row_bcast:15 row_mask:0xa bank_mask:0xf")
    for r in R:
        a.i(f"v_add_f32_dpp v{r}, v{r}, v{r} row_bcast:31 row_mask:0xc bank_mask:0xf")
    a.i(f"s_lshl_b32 s{T0}, s{C_W}, 6")
    a.i(f"s_add_u32 s{T0}, s{T0}, {GL_OFF}")
    a.i(f"v_mov_b32 v{t}, s{T0}")
    a.i(f"v_and_b32 v{t+1}, 15, v{V_L}")
    a.i(f"v_lshl_add_u32 v{t+1}, v{t+1}, 2, v{t}")
    a.i("s_mov_b32 s74, 0")
    a.i("s_mov_b32 s75, 0x80000000")
    a.i("s_mov_b64 exec, s[74:75]")
    for k in range(4):
        a.i(f"ds_write_b128 v{t}, v[{R[4*k]}:{R[4*k]+3}] offset:{16*k}")
    a.i("s_mov_b64 exec, -1")
    a.i("s_waitcnt lgkmcnt(0)")
    a.i(f"ds_read_b32 v{t+2}, v{t+1}")
    a.i("s_waitcnt lgkmcnt(0)")
    a.i(f"v_cvt_pk_bf16_f32 v{t+2}, v{t+2}, v{t+2}")
    a.i(f"v_and_b32 v{t+2}, 0xffff0000, v{t+2}")
    a.i(f"v_mul_f32 v{t+2}, {NLOG2E:#x}, v{t+2}")
    a.i(f"v_exp_f32 v{t+2}, v{t+2}")
    a.nop(1)
    a.i(f"v_add_f32 v{t+2}, 1.0, v{t+2}")
    a.i(f"v_rcp_f32 v{t+2}, v{t+2}")
    a.nop(1)
    a.i(f"v_cvt_pk_bf16_f32 v{t+2}, v{t+2}, v{t+2}")
    a.i(f"v_and_b32 v{t+2}, 0xffff0000, v{t+2}")
    a.i(f"v_sub_f32 v{t+3}, 1.0, v{t+2}")
    a.i(f"v_cvt_pk_bf16_f32 v{t+3}, v{t+3}, v{t+3}")
    a.i(f"v_and_b32 v{t+3}, 0xffff0000, v{t+3}")
    a.i(f"v_max_f32 v{t+5}, 0x30800000, v{t+3}")
    a.i(f"v_rcp_f32 v{t+3}, v{t+5}")
    a.nop(1)
    a.i(f"v_fma_f32 v{t+6}, -v{t+5}, v{t+3}, 1.0")
    a.i(f"v_fma_f32 v{t+3}, v{t+6}, v{t+3}, v{t+3}")
    a.i(f"v_mul_f32 v{t+4}, v{t+2}, v{t+3}")
    a.i(f"s_lshl_b32 s{T0}, s{C_RB}, 9")
    a.i(f"s_lshl_b32 s{T1}, s{C_W}, 7")
    a.i(f"s_add_u32 s{T0}, s{T0}, s{T1}")
    a.i(f"s_add_u32 s{T0}, s{T0}, {G_OFF}")
    a.i(f"v_lshlrev_b32 v{t}, 3, v{V_L}")
    a.i("s_mov_b64 exec, 0xffff")
    a.i(f"buffer_store_dwordx2 v[{t+4}:{t+5}], v{t}, s[{C_WS}:{C_WS+3}], s{T0} offen sc1")
    a.i("s_waitcnt vmcnt(0)")
    a.i(f"s_lshl_b32 s{T0}, s{C_RB}, 1")
    a.i(f"s_lshr_b32 s{T1}, s{C_W}, 1")
    a.i(f"s_add_u32 s{T0}, s{T0}, s{T1}")
    a.i(f"s_mul_i32 s{T0}, s{T0}, {FL_TT}")
    a.i(f"s_and_b32 s{T1}, s{C_W}, 1")
    a.i(f"s_lshl_b32 s{T1}, s{T1}, 2")
    a.i(f"s_add_u32 s{T0}, s{T0}, s{T1}")
    a.i(f"s_add_u32 s{T0}, s{T0}, {FL_OFF + 144*4}")
    a.i("s_mov_b64 exec, 3")
    a.i(f"buffer_store_dword v{V_TAGC}, v{t}, s[{C_WS}:{C_WS+3}], s{T0} offen sc1")
    a.i("s_mov_b64 exec, -1")
    a.label("C_nogate")
    if cfg.x_nocons:
        a.i("s_endpgm")
    a.i(f"s_mul_i32 s{T0}, s{C_RB}, {2*AF_TT}")
    a.i(f"v_add_u32 v{V_A0}, s{T0}, v{V_A0}")
    if AF_OFF:
        a.i(f"v_add_u32 v{V_A0}, {AF_OFF}, v{V_A0}")
    a.i(f"v_add_u32 v{V_A1}, {AF_TT}, v{V_A0}")
    a.i(f"s_mul_i32 s{C_M0}, s{C_W}, {CST_WAVE}")
    a.i(f"s_add_u32 s{C_M0}, s{C_M0}, {CST_OFF}")
    a.i(f"v_lshrrev_b32 v{t}, 3, v{V_L}")
    a.i(f"v_and_b32 v{t+1}, 7, v{V_L}")
    a.i(f"v_bfe_u32 v{t+2}, v{V_L}, 4, 1")
    a.i(f"v_lshlrev_b32 v{t+2}, 2, v{t+2}")
    a.i(f"v_xor_b32 v{t+1}, v{t+1}, v{t+2}")
    a.i(f"v_lshlrev_b32 v{t}, 10, v{t}")
    a.i(f"v_lshl_add_u32 v{V_WD}, v{t+1}, 4, v{t}")
    a.i(f"s_lshl_b32 s{T0}, s{C_CB}, 7")
    a.i(f"v_add_u32 v{V_WD}, s{T0}, v{V_WD}")
    a.i(f"v_lshrrev_b32 v{t}, 5, v{V_L}")
    a.i(f"v_bfe_u32 v{t+1}, v{V_L}, 2, 2")
    a.i(f"v_lshl_add_u32 v{t}, v{t}, 2, v{t+1}")
    a.i(f"v_bfe_u32 v{t+1}, v{V_L}, 4, 1")
    a.i(f"v_bfe_u32 v{t+2}, v{V_L}, 1, 1")
    a.i(f"v_lshl_add_u32 v{t+1}, v{t+1}, 1, v{t+2}")
    a.i(f"v_bfe_u32 v{t+2}, v{V_L}, 3, 1")
    a.i(f"v_lshlrev_b32 v{t+2}, 2, v{t+2}")
    a.i(f"v_xor_b32 v{t+1}, v{t+1}, v{t+2}")
    a.i(f"v_lshlrev_b32 v{t}, 7, v{t}")
    a.i(f"v_lshl_add_u32 v{t}, v{t+1}, 4, v{t}")
    a.i(f"v_and_b32 v{t+1}, 1, v{V_L}")
    a.i(f"v_lshl_add_u32 v{t}, v{t+1}, 3, v{t}")
    a.i(f"v_add_u32 v{V_TR0}, s{C_M0}, v{t}")
    a.i(f"v_xor_b32 v{t}, 64, v{t}")
    a.i(f"v_add_u32 v{V_TR1}, s{C_M0}, v{t}")
    a.i("s_waitcnt vmcnt(0) lgkmcnt(0)")
    a.vm_done, a.ds_done = len(a.vm), len(a.ds)
    a.i(f"s_mul_i32 s{T0}, s{C_RB}, {2*FL_TT}")
    a.i(f"s_add_u32 s{T0}, s{T0}, {FL_OFF}")
    a.i(f"v_lshlrev_b32 v{V_FA0}, 4, v{V_ST}")
    a.i(f"v_add_u32 v{V_FA0}, s{T0}, v{V_FA0}")
    a.i(f"v_subrev_u32 v{t}, 40, v{V_L}")
    a.i(f"v_cmp_gt_u32 vcc, 8, v{t}")
    a.i(f"v_lshlrev_b32 v{t}, 4, v{t}")
    a.i(f"v_add_u32 v{t}, {FLK_OFF}, v{t}")
    a.i(f"v_cndmask_b32 v{V_FA0}, v{V_FA0}, v{t}, vcc")
    a.i(f"v_lshlrev_b32 v{V_ST}, 2, v{V_ST}")
    a.i(f"v_add_u32 v{V_ST}, s{C_W}, v{V_ST}")
    a.i(f"s_mov_b64 s[{C_MASK}:{C_MASK+1}], 0")
    a.i(f"s_mov_b32 s{C_EPS}, {EPS:#x}")
    a.i(f"s_mov_b32 s{C_L2E}, {LOG2E:#x}")
    a.i(f"v_and_b32 v{t}, 31, v{V_L}")
    a.i(f"v_lshrrev_b32 v{t+1}, 5, v{V_L}")
    a.i(f"v_lshl_add_u32 v{t+2}, v{t+1}, 4, v{t}")
    a.i(f"v_add_u32 v{t+1}, 32, v{t+1}")
    a.i(f"v_cmp_gt_u32 vcc, 16, v{t}")
    a.i(f"v_lshlrev_b32 v{V_G+2}, 3, v{t}")
    a.nop(1)
    a.i(f"v_cndmask_b32 v{t+2}, v{t+1}, v{t+2}, vcc")
    a.i(f"v_lshlrev_b32 v{V_KVA}, 5, v{t+2}")
    a.i(f"v_add_u32 v{V_KVA}, {KVT_OFF}, v{V_KVA}")

    seq = step_pattern(cfg)
    NS = len(seq)
    V_KVR = 8

    def gate(bit):
        ok = newlbl("C_ok")
        a.i(f"s_bitcmp1_b64 s[{C_MASK}:{C_MASK+1}], {bit}")
        a.i(f"s_cbranch_scc1 {ok}")
        a.i(f"s_mov_b32 s{C_NEED}, {bit}")
        a.i(f"s_swappc_b64 s[{C_RET}:{C_RET+1}], s[{C_POLL}:{C_POLL+1}]")
        a.label(ok)

    def gate_dyn():
        ok = newlbl("C_ok")
        a.i(f"s_bitcmp1_b64 s[{C_MASK}:{C_MASK+1}], s{C_NEED}")
        a.i(f"s_cbranch_scc1 {ok}")
        a.i(f"s_swappc_b64 s[{C_RET}:{C_RET+1}], s[{C_POLL}:{C_POLL+1}]")
        a.label(ok)

    DW = cfg.wdepth
    wsteps = [n for n, (kd_, k) in enumerate(seq) if kd_ != "q"]
    widx = {n: i for i, n in enumerate(wsteps)}
    hsteps = [n for n, (kd_, k) in enumerate(seq) if kd_ == "h"]
    hidx = {n: i for i, n in enumerate(hsteps)}

    def issue_w(n):
        kind, k = seq[n]
        d = widx[n] % DW
        lane = k if kind == "h" else 28 + k
        a.i(f"v_readlane_b32 s{C_STEP}, v{V_ST}, {lane}")
        a.i(f"s_add_u32 m0, s{C_M0}, {d*2048}")
        if kind == "h":
            a.i(f"s_lshl_b32 s{T2}, s{C_STEP}, 14")
            w = C_W2
        else:
            a.i(f"s_sub_u32 s{T2}, s{C_STEP}, 112")
            a.i(f"s_lshl_b32 s{T2}, s{T2}, 14")
            w = C_WO
        a.vmem(f"s{n}", f"buffer_load_dwordx4 v{V_WD}, s[{w}:{w+3}], s{T2} offen lds")
        a.i(f"s_add_u32 m0, s{C_M0}, {d*2048 + 1024}")
        a.i(f"s_add_u32 s{T3}, s{T2}, 8192")
        a.vmem(f"s{n}", f"buffer_load_dwordx4 v{V_WD}, s[{w}:{w+3}], s{T3} offen lds")

    def issue(n):
        kind, k = seq[n]
        if kind == "a":
            return
        lane = k if kind == "h" else 28 + k
        b = 8 * (hidx[n] % D) if kind == "h" else A_PQ + 8 * k
        a.i(f"v_readlane_b32 s{C_STEP}, v{V_ST}, {lane}")
        gate(lane)
        a.i(f"s_lshl_b32 s{T1}, s{C_STEP}, 10")
        a.vmem(f"s{n}", f"buffer_load_dwordx4 a[{b}:{b+3}], v{V_A0}, s[{C_WS}:{C_WS+3}], s{T1} offen {cfg.af_aux}")
        a.vmem(f"s{n}", f"buffer_load_dwordx4 a[{b+4}:{b+7}], v{V_A1}, s[{C_WS}:{C_WS+3}], s{T1} offen {cfg.af_aux}")

    def kv_issue(k):
        a.i(f"v_readlane_b32 s{C_STEP}, v{V_ST}, {28+k}")
        a.i(f"s_lshr_b32 s{C_NEED}, s{C_STEP}, 2")
        a.i(f"s_add_u32 s{C_NEED}, s{C_NEED}, 12")
        a.i(f"s_sub_u32 s{T3}, s{C_STEP}, 112")
        a.i(f"s_mul_i32 s{T3}, s{T3}, {KVT_HEAD}")
        gate_dyn()
        a.vmem(f"kv{k}", f"buffer_load_dwordx4 v[{V_KVR}:{V_KVR+3}], v{V_KVA}, s[{C_WS}:{C_WS+3}], s{T3} offen sc1")
        a.vmem(f"kv{k}", f"buffer_load_dwordx4 v[{V_KVR+4}:{V_KVR+7}], v{V_KVA}, s[{C_WS}:{C_WS+3}], s{T3} offen offset:16 sc1")
        if k == 0:
            gate(36)
            a.i(f"s_lshl_b32 s{T0}, s{C_RB}, 9")
            a.i(f"s_add_u32 s{T0}, s{T0}, {G_OFF}")
            a.vmem("kv0", f"buffer_load_dword v{V_G}, v{V_G+2}, s[{C_WS}:{C_WS+3}], s{T0} offen sc1")
            a.vmem("kv0", f"buffer_load_dword v{V_G+1}, v{V_G+2}, s[{C_WS}:{C_WS+3}], s{T0} offen offset:256 sc1")

    def tr_reads(n, buf):
        d = widx[n] % DW
        wf = V_WF + 8 * buf
        for ct, va in enumerate((V_TR0, V_TR1)):
            for rd in range(2):
                r = wf + 4 * ct + 2 * rd
                a.dsop(f"t{n}", f"ds_read_b64_tr_b16 v[{r}:{r+1}], v{va} offset:{d*2048 + rd*1024}")

    wbuf = {}
    c = 0
    for n, (kind, k) in enumerate(seq):
        if kind != "q":
            wbuf[n] = c % 2
            c += 1

    def prep(n):
        a.wait(vm=[f"s{n}"])
        if seq[n][0] != "q":
            tr_reads(n, wbuf[n])

    first_a = [n for n, (kd_, k) in enumerate(seq) if kd_ == "a"][0]
    assert all(n < first_a for n, (kd_, k) in enumerate(seq) if kd_ == "q")
    stamp(a, 1)
    for i in range(DW):
        issue_w(wsteps[i])
    for n in range(D):
        issue(n)
    stamp(a, 2)
    prep(0)
    nd_w = {}
    started = False
    for n in range(NS):
        kind, k = seq[n]
        d = hidx[n] % D if kind == "h" else 0
        if n == cfg.st3:
            stamp(a, 3)
        if n == cfg.st4:
            stamp(a, 4)
        if kind == "a":
            a.wait(vm=[f"kv{k}"])
            for j in range(4):
                a.i(f"v_cvt_pk_bf16_f32 v{V_KVF+j}, v{V_KVR+2*j}, v{V_KVR+2*j+1}")
            a.nop(2)
            for tt in range(2):
                b = A_ND + 16 * tt
                pq = A_PQ + 8 * k + 4 * tt
                a.i(f"v_mfma_f32_32x32x16_bf16 a[{b}:{b+15}], v[{V_KVF}:{V_KVF+3}], a[{pq}:{pq+3}], 0")
                nd_w[tt] = a.n
            if k + 1 < 8:
                kv_issue(k + 1)
        if n + 1 < NS:
            prep(n + 1)
        if kind == "q":
            b = A_PQ + 8 * k
            for half in range(2):
                for j in range(4):
                    a.i(f"v_accvgpr_read_b32 v{V_OF+j}, a{b+4*half+j}")
                X, E = P, VT
                for j in range(4):
                    a.i(f"v_lshlrev_b32 v{X+2*j}, 16, v{V_OF+j}")
                    a.i(f"v_and_b32 v{X+2*j+1}, 0xffff0000, v{V_OF+j}")
                for j in range(8):
                    a.i(f"v_mul_f32 v{E+j}, s{C_L2E}, v{X+j}")
                for j in range(8):
                    a.i(f"v_exp_f32_e64 v{E+j}, v{E+j} clamp")
                for j in range(8):
                    a.i(f"v_max_f32 v{X+j}, 0, v{X+j}")
                for j in range(8):
                    a.i(f"v_add_f32 v{X+j}, v{X+j}, v{E+j}")
                for j in range(8):
                    a.i(f"v_add_f32 v{X+j}, s{C_EPS}, v{X+j}")
                for j in range(4):
                    a.i(f"v_cvt_pk_bf16_f32 v{V_OF+j}, v{X+2*j}, v{X+2*j+1}")
                for j in range(4):
                    a.i(f"v_accvgpr_write_b32 a{b+4*half+j}, v{V_OF+j}")
        else:
            if kind == "a":
                for tt in range(2):
                    gap = a.n - nd_w[tt]
                    if gap < 16:
                        a.nop(16 - gap)
                    a.i(f"v_accvgpr_read_b32 v{V_RC+tt}, a{A_ND+16*tt+8}")
                for tt in range(2):
                    a.i(f"v_add_f32 v{V_RC+tt}, s{C_EPS}, v{V_RC+tt}")
                for tt in range(2):
                    a.i(f"v_rcp_f32 v{V_RC+tt}, v{V_RC+tt}")
                a.nop(1)
                for tt in range(2):
                    a.i(f"v_mul_f32 v{V_RC+tt}, v{V_RC+tt}, v{V_G+tt}")
                for tt in range(2):
                    for j in range(8):
                        a.i(f"v_accvgpr_read_b32 v{P+j}, a{A_ND+16*tt+j}")
                    for j in range(8):
                        a.i(f"v_mul_f32 v{P+j}, v{P+j}, v{V_RC+tt}")
                    for j in range(4):
                        a.i(f"v_cvt_pk_bf16_f32 v{V_OF+4*tt+j}, v{P+2*j}, v{P+2*j+1}")
                a.nop(2)
            a.wait(ds=[f"t{n}"])
            wf = V_WF + 8 * wbuf[n]
            for ct in range(2):
                for tt in range(2):
                    A = f"v[{wf+4*ct}:{wf+4*ct+3}]"
                    blk = ACC + 16 * (ct * 2 + tt)
                    B = f"v[{V_OF+4*tt}:{V_OF+4*tt+3}]" if kind == "a" else f"a[{8*d+4*tt}:{8*d+4*tt+3}]"
                    a.mfma(blk, A, B, blk if started else None)
            started = True
            if widx[n] + DW < len(wsteps):
                issue_w(wsteps[widx[n] + DW])
        if n + D < NS:
            issue(n + D)
        if n + 1 == first_a:
            kv_issue(0)
    stamp(a, 5)
    PITCH = 272
    WSZ = 64 * PITCH
    a.i(f"v_lshrrev_b32 v{t+1}, 3, v{V_L}")
    a.i(f"s_lshl_b32 s{T0}, s{C_W}, 4")
    a.i(f"v_add_u32 v{t+1}, s{T0}, v{t+1}")
    gate(36)
    a.i(f"v_lshlrev_b32 v{t+5}, 3, v{t+1}")
    a.i(f"s_lshl_b32 s{T0}, s{C_RB}, 9")
    a.i(f"s_add_u32 s{T0}, s{T0}, {G_OFF + 4}")
    a.i(f"buffer_load_dword v{V_RC}, v{t+5}, s[{C_WS}:{C_WS+3}], s{T0} offen sc1")
    a.i(f"buffer_load_dword v{V_RC+1}, v{t+5}, s[{C_WS}:{C_WS+3}], s{T0} offen offset:64 sc1")
    a.i(f"v_and_b32 v{t}, 31, v{V_L}")
    a.i(f"v_lshrrev_b32 v{t+2}, 5, v{V_L}")
    a.i(f"v_mul_u32_u24 v{t}, {PITCH}, v{t}")
    a.i(f"v_lshl_add_u32 v{t}, v{t+2}, 4, v{t}")
    a.i(f"s_mul_i32 s{T0}, s{C_W}, {WSZ}")
    a.i(f"v_add_u32 v{t}, s{T0}, v{t}")
    a.i(f"v_and_b32 v{t+2}, 7, v{V_L}")
    a.i(f"v_mul_u32_u24 v{t+3}, {PITCH}, v{t+1}")
    a.i(f"v_lshl_add_u32 v{t+3}, v{t+2}, 5, v{t+3}")
    a.i(f"v_lshlrev_b32 v{t+4}, 10, v{t+1}")
    a.i(f"v_lshl_add_u32 v{t+4}, v{t+2}, 4, v{t+4}")
    a.i(f"s_lshl_b32 s{T0}, s{C_RB}, 16")
    a.i(f"s_lshl_b32 s{T1}, s{C_CB}, 7")
    a.i(f"s_add_u32 s{T0}, s{T0}, s{T1}")
    a.i("s_barrier")
    for blk in range(4):
        a.need_acc(ACC + 16 * blk, 16)
    for blk in range(4):
        ct, tt = blk >> 1, blk & 1
        for q in range(4):
            r = ACC + 16 * blk + 4 * q
            off = tt * 32 * PITCH + (ct * 32 + 8 * q) * 4
            a.i(f"ds_write_b128 v{t}, v[{r}:{r+3}] offset:{off}")
    a.i("s_waitcnt lgkmcnt(0)")
    a.i("s_barrier")
    R = ACC
    for half in range(2):
        for w in range(4):
            for p in range(2):
                r = R + half * 32 + w * 8 + p * 4
                off = w * WSZ + half * 8 * PITCH + p * 16
                a.i(f"ds_read_b128 v[{r}:{r+3}], v{t+3} offset:{off}")
    for half in range(2):
        a.i(f"s_waitcnt lgkmcnt({8 if half == 0 else 0})" + (" vmcnt(0)" if half == 0 else ""))
        b = R + half * 32
        for j in range(8):
            a.i(f"v_add_f32 v{b+j}, v{b+j}, v{b+8+j}")
            a.i(f"v_add_f32 v{b+16+j}, v{b+16+j}, v{b+24+j}")
        for j in range(8):
            a.i(f"v_add_f32 v{b+j}, v{b+j}, v{b+16+j}")
        for j in range(8):
            a.i(f"v_mul_f32 v{b+j}, v{b+j}, v{V_RC+half}")
        for j in range(4):
            a.i(f"v_cvt_pk_bf16_f32 v{b+8+j}, v{b+2*j}, v{b+2*j+1}")
        if half == 1:
            a.i(f"s_add_u32 s{T0}, s{T0}, 8192")
        a.i(f"buffer_store_dwordx4 v[{b+8}:{b+11}], v{t+4}, s[{C_OUT}:{C_OUT+3}], s{T0} offen")
    stamp_flush(a, 1, 7, C_WS, 256)
    a.i("s_endpgm")
    a.label("C_poll")
    a.i(f"s_cmp_lg_u32 s{C_W}, 0")
    a.i("s_cbranch_scc1 C_polll")
    a.i(f"s_mov_b32 s{C_SPIN}, {SPIN_MAX}")
    a.label("C_poll_lp")
    a.i(f"buffer_load_dwordx4 v[{P}:{P+3}], v{V_FA0}, s[{C_WS}:{C_WS+3}], 0 offen sc1")
    a.i(f"buffer_load_dwordx4 v[{P+4}:{P+7}], v{V_FA0}, s[{C_WS}:{C_WS+3}], 0 offen offset:{FL_TT} sc1")
    a.i("s_waitcnt vmcnt(0)")
    for k in range(8):
        a.i(f"v_xor_b32 v{P+k}, v{P+k}, v{V_TAGC}")
    a.i(f"v_or3_b32 v{P}, v{P}, v{P+1}, v{P+2}")
    a.i(f"v_or3_b32 v{P+3}, v{P+3}, v{P+4}, v{P+5}")
    a.i(f"v_or3_b32 v{P}, v{P}, v{P+6}, v{P+7}")
    a.i(f"v_or_b32 v{P}, v{P}, v{P+3}")
    a.i(f"v_cmp_eq_u32 s[{C_MASK}:{C_MASK+1}], 0, v{P}")
    a.i("s_nop 1")
    a.i(f"v_mov_b32 v{P}, s{C_MASK}")
    a.i(f"v_mov_b32 v{P+1}, s{C_MASK+1}")
    a.i(f"ds_write_b64 v{V_MA}, v[{P}:{P+1}] offset:8")
    a.i("s_waitcnt lgkmcnt(0)")
    a.i(f"s_bitcmp1_b64 s[{C_MASK}:{C_MASK+1}], s{C_NEED}")
    a.i("s_cbranch_scc1 C_poll_ret")
    a.i(f"s_sub_u32 s{C_SPIN}, s{C_SPIN}, 1")
    a.i("s_cbranch_scc1 C_poll_ret")
    a.i(f"s_sleep {cfg.poll_sleep}")
    a.i("s_branch C_poll_lp")
    a.label("C_poll_ret")
    a.i(f"s_setpc_b64 s[{C_RET}:{C_RET+1}]")
    a.label("C_polll")
    a.i(f"s_mov_b32 s{C_SPIN}, {SPIN_MAX*8}")
    a.label("C_polll_lp")
    a.i(f"ds_read_b64 v[{P}:{P+1}], v{V_MA} offset:8")
    a.i("s_waitcnt lgkmcnt(0)")
    a.i(f"v_readfirstlane_b32 s{C_MASK}, v{P}")
    a.i(f"v_readfirstlane_b32 s{C_MASK+1}, v{P+1}")
    a.i("s_nop 1")
    a.i(f"s_bitcmp1_b64 s[{C_MASK}:{C_MASK+1}], s{C_NEED}")
    a.i("s_cbranch_scc1 C_poll_ret")
    a.i(f"s_sub_u32 s{C_SPIN}, s{C_SPIN}, 1")
    a.i("s_cbranch_scc1 C_poll_ret")
    a.i("s_sleep 3")
    a.i("s_branch C_polll_lp")


def build(cfg=None):
    global SYNC_OFF, KVS_OFF
    cfg = cfg or Cfg()
    SYNC_OFF = CST_OFF + 4 * CST_WAVE
    KVS_OFF = SYNC_OFF + 128 + 256
    lds = (KVS_OFF + 4 * KVT_HEAD + 1279) // 1280 * 1280
    assert lds <= 163840
    a = Asm()
    kn = NAME + "_kernel"
    a.raw(f".globl {kn}\n.p2align 8\n.type {kn},@function\n{kn}:\nCODE_BEGIN:")
    prologue(a, cfg)
    loader(a, cfg)
    a.raw(".p2align 6")
    p_prologue(a, cfg)
    a.i("s_cmp_eq_u32 s3, 2")
    a.i("s_cbranch_scc1 P_kv")
    st = p_first_pass(a, cfg, False)
    snap = (list(a.vm), a.vm_done, list(a.ds), a.ds_done, dict(a.mfma_w), a.n)
    a.i("s_cmp_eq_u32 s3, 1")
    a.i("s_cbranch_scc1 P_q")
    st.store_pos = {}
    p_later(a, cfg, st, "mlp")
    a.raw(".p2align 6")
    a.label("P_q")
    a.vm, a.vm_done, a.ds, a.ds_done = list(snap[0]), snap[1], list(snap[2]), snap[3]
    a.mfma_w = {k: a.n - (snap[5] - v) for k, v in snap[4].items()}
    st.store_pos = {}
    p_later(a, cfg, st, "q")
    a.raw(".p2align 6")
    a.label("P_kv")
    st = p_first_pass(a, cfg, True)
    st.store_pos = {}
    p_later(a, cfg, st, "kv")
    a.raw(".p2align 6")
    consumer(a, cfg)
    a.label("L_done")
    a.i("s_endpgm")
    tab = []
    for rb in range(32):
        o = order_row(rb) + [0] * 27
        tab.append(".byte " + ", ".join(map(str, o)))
    hdr = f"""; gated_mix: linear attention block + SwiGLU block, gated mix.  Generated by gen/gen6.py
; one launch: waves 0-3 produce h / phi(q) / kv (x @ [wq|wk|wv|w1|w3]); waves 4-7 consume them into out
; @launch grid=(256,1,1) block=(512,1,1) lds={lds}
.amdgcn_target "amdgcn-amd-amdhsa--gfx950"
.text
"""
    tail = """
.p2align 6
.type ORDER_TAB,@object
ORDER_TAB:
""" + "\n".join(tab) + """
.size ORDER_TAB, 2048
CODE_END:
.section .rodata,"a"
"""
    return hdr + a.text() + tail + G0.kd(kn, 256, 128) + "\n"


if __name__ == "__main__":
    if "--diag" in sys.argv:
        DIAG = True
        sys.argv.remove("--diag")
    cfg = Cfg()
    for arg in list(sys.argv[1:]):
        if "=" in arg:
            k, v = arg.split("=")
            setattr(cfg, k, v if k.endswith("_aux") else int(v))
            sys.argv.remove(arg)
    XNOEPI, XNOPUB, FPST = cfg.x_noepi, cfg.x_nopub, cfg.fp_stamps
    XNOW, XNOX = cfg.x_now, cfg.x_nox
    out = sys.argv[1] if len(sys.argv) > 1 else f"cdna_kernels/{NAME}.s"
    open(out, "w").write(build(cfg))
    print("wrote", out)
```

```python
import sys

NAME = "gated_mix__linear_attn_block__glu_gated_swiglu__prompt"

AF_OFF = 0
AF_TT = 144 * 1024
AF_SIZE = 64 * AF_TT
KVT_OFF = AF_SIZE
KVT_HEAD = 1152
KVT_SIZE = 32 * KVT_HEAD
G_OFF = KVT_OFF + KVT_SIZE
G_SIZE = 2048 * 8
WS_USED = G_OFF + G_SIZE

STAMP_OFF = 16 << 20
DIAG = False

LOG2E = 0x3FB8AA3B
NLOG2E = 0xBFB8AA3B
EPS = 0x358637BD


class Asm:
    def __init__(self):
        self.L = []
        self.n = 0
        self.vm = []
        self.vm_done = 0
        self.ds = []
        self.ds_done = 0
        self.mfma_w = {}

    def raw(self, s):
        self.L.append(s)

    def i(self, s):
        self.L.append("    " + s)
        self.n += 1

    def label(self, s):
        self.L.append(s + ":")

    def vmem(self, tag, s):
        self.i(s)
        self.vm.append(tag)

    def dsop(self, tag, s):
        self.i(s)
        self.ds.append(tag)

    def _need(self, lst, tags):
        last = -1
        for k, t in enumerate(lst):
            if t in tags:
                last = k
        return last

    def wait(self, vm=(), ds=(), vm_all=False, ds_all=False):
        parts = []
        if vm_all:
            lv = len(self.vm) - 1
        else:
            lv = self._need(self.vm, set(vm)) if vm else -1
        if lv >= self.vm_done:
            n = len(self.vm) - 1 - lv
            assert n <= 63, n
            parts.append(f"vmcnt({n})")
            self.vm_done = lv + 1
        if ds_all:
            ld = len(self.ds) - 1
        else:
            ld = self._need(self.ds, set(ds)) if ds else -1
        if ld >= self.ds_done:
            n = len(self.ds) - 1 - ld
            if n > 15:
                n = 15
                ld = len(self.ds) - 1 - 15
            parts.append(f"lgkmcnt({n})")
            self.ds_done = ld + 1
        if parts:
            self.i("s_waitcnt " + " ".join(parts))

    def nop(self, k):
        while k > 0:
            c = min(k, 16)
            self.L.append(f"    s_nop {c-1}")
            self.n += c
            k -= c

    def mfma(self, d, a, b, c):
        cs = "0" if c is None else f"v[{c}:{c+15}]"
        self.i(f"v_mfma_f32_32x32x16_bf16 v[{d}:{d+15}], {a}, {b}, {cs}")
        self.mfma_w[d] = self.n

    def need_acc(self, d, dist=13):
        if d in self.mfma_w:
            gap = self.n - self.mfma_w[d]
            if gap < dist:
                self.nop(dist - gap)

    def text(self):
        return "\n".join(self.L)


def stamp(a, k, base=16):
    if DIAG:
        a.i(f"s_memrealtime s[{base+2*k}:{base+2*k+1}]")


def stamp_flush(a, kern, nst, ws_ptr_srd, base=16, t0=38):
    if not DIAG:
        return
    a.i("s_waitcnt vmcnt(0)")
    stamp(a, nst - 1, base)
    a.i("s_waitcnt lgkmcnt(0)")
    a.i("v_cmp_eq_u32 vcc, 0, v0")
    a.i("s_and_saveexec_b64 s[94:95], vcc")
    a.i(f"s_cbranch_execz STAMP_skip_{a.n}")
    lbl = f"STAMP_skip_{a.n-1}"
    a.L[-1] = f"    s_cbranch_execz {lbl}"
    a.i(f"s_mov_b32 s{ws_ptr_srd+2}, {STAMP_OFF + 65536}")
    a.i(f"s_lshl_b32 s3, s2, 6")
    a.i(f"s_add_u32 s3, s3, {STAMP_OFF + kern*16384}")
    a.i("v_mov_b32 v2, 0")
    for k in range(nst):
        src = t0 if k == 0 else base + 2 * k
        a.i(f"v_mov_b32 v4, s{src}")
        a.i(f"v_mov_b32 v5, s{src+1}")
        a.i(f"buffer_store_dwordx2 v[4:5], v2, s[{ws_ptr_srd}:{ws_ptr_srd+3}], s3 offen offset:{8*k}")
        a.i("s_nop 1")
    a.label(lbl)


def srd(a, s, ptr, size):
    a.i(f"s_mov_b32 s{s}, s{ptr}")
    a.i(f"s_and_b32 s{s+1}, s{ptr+1}, 0xffff")
    a.i(f"s_mov_b32 s{s+2}, {size}")
    a.i(f"s_mov_b32 s{s+3}, 0x20000")


class K1Cfg:
    store_aux = "sc1"
    fill_per_gap = 40
    ahead = 5
    pf_w2 = True
    krot = 1
    nm = 3
    pf_mode = 1
    pf_round = 1


S_X, S_A, S_B, S_WS, S_GW, S_DBG, S_W2, S_WO = 40, 44, 48, 52, 56, 60, 64, 68
S_XCD, S_IDX, S_WAVE, S_TILE0, S_PITCH, S_COLA, S_COLB, S_UNIT = 4, 5, 6, 7, 8, 9, 10, 11
S_T0, S_T1, S_T2, S_T3 = 12, 13, 14, 15
S_XKF = 72
S_WK = 80
S_M0X = 88
S_M0W = 89
S_ST = 90
S_C1, S_C2, S_C3 = 91, 92, 93
S_MASK = 94
S_TMP = 96
S_P = 97
S_SAVE = 98
S_PR, S_CT = 100, 101
S_XKP = 30
S_LB = 34

V_LANE = 1
V_WA, V_WB, V_XD = 2, 3, 4
V_WT = 5
V_STO = 6
V_ZS = 7
V_XF = 8
V_T = 12
V_XFR = 20
V_E = 44
V_KV = 48
V_ACC = 64

SLOT = 40960
BUF = [0, SLOT, 2 * SLOT, 3 * SLOT]
K1_LDS = 3 * SLOT + 32768


def dma_stage_ops(i, nm):
    slot = BUF[i % 3]
    ops = []
    for seg, (va, sr) in enumerate(((V_WA, S_A), (V_WB, S_B))):
        ops.append([("s", None, f"s_add_u32 m0, s{S_M0W}, {slot + seg*8192}"),
                    ("s", None, "s_nop 0"),
                    ("v", f"S{i}", f"buffer_load_dwordx4 v{va}, s[{sr}:{sr+3}], s{S_WK+i} offen lds")])
    for m in range(nm):
        ops.append([("s", None, f"s_add_u32 m0, s{S_M0X}, {slot + 16384 + m*8192}"),
                    ("s", None, f"s_add_u32 s{S_TMP}, s{S_XKF+i}, {m*65536}"),
                    ("v", f"S{i}", f"buffer_load_dwordx4 v{V_XD}, s[{S_X}:{S_X+3}], s{S_TMP} offen lds")])
    return ops


def dma_tile_ops(lj, tile, buf):
    ops = []
    for m in range(4):
        ops.append([("s", None, f"s_add_u32 m0, s{S_M0X}, {buf + m*8192}"),
                    ("s", None, f"s_add_u32 s{S_TMP}, s{S_XKP+m}, {tile*32768}"),
                    ("v", f"L{lj}", f"buffer_load_dwordx4 v{V_XD}, s[{S_X}:{S_X+3}], s{S_TMP} offen lds")])
    return ops


def emit_group(a, grp):
    for kind, tag, text in grp:
        if kind == "v":
            a.vmem(tag, text)
        else:
            a.i(text)


KROT = 1
NM = 3
S_KR = 39


def k1_prologue(a):
    a.i("s_cmp_ge_u32 s2, 256")
    a.i("s_cbranch_scc1 K1_done")
    if DIAG:
        a.i("s_memrealtime s[38:39]")
    a.i("s_load_dwordx16 s[16:31], s[0:1], 0")
    a.i("s_load_dwordx4 s[32:35], s[0:1], 64")
    a.i("s_load_dwordx2 s[36:37], s[0:1], 80")
    a.i("s_getpc_b64 s[98:99]")
    a.label("K1_pc")
    a.i(f"s_and_b32 s{S_XCD}, s2, 7")
    a.i(f"s_lshr_b32 s{S_IDX}, s2, 3")
    a.i(f"v_and_b32 v{V_LANE}, 63, v0")
    a.i(f"v_lshrrev_b32 v{V_T}, 6, v0")
    a.i(f"s_lshl_b32 s{S_T0}, s{S_IDX}, 11")
    a.i(f"v_readfirstlane_b32 s{S_WAVE}, v{V_T}")
    a.i(f"v_lshlrev_b32 v{V_T+1}, 7, v0")
    a.i(f"v_add_u32 v{V_T+1}, s{S_T0}, v{V_T+1}")
    a.i(f"v_min_u32 v{V_T+1}, CODE_END-K1_pc-4, v{V_T+1}")
    a.i("v_cmp_gt_u32 vcc, 16, v0")
    a.i("s_and_saveexec_b64 s[94:95], vcc")
    a.i("s_cbranch_execz K1_nopf")
    a.i(f"global_load_dword v{V_E}, v{V_T+1}, s[98:99]")
    a.label("K1_nopf")
    a.i("s_mov_b64 exec, s[94:95]")
    a.i(f"s_lshr_b32 s{S_PR}, s{S_WAVE}, 2")
    a.i(f"s_and_b32 s{S_CT}, s{S_WAVE}, 3")
    a.i(f"s_mul_i32 s{S_T0}, s{S_IDX}, 43")
    a.i(f"s_lshr_b32 s{S_T0}, s{S_T0}, 8")
    a.i(f"s_mul_i32 s{S_T1}, s{S_T0}, 6")
    a.i(f"s_sub_u32 s{S_P}, s{S_IDX}, s{S_T1}")
    a.i(f"s_lshl_b32 s{S_T0}, s{S_T0}, 3")
    a.i(f"s_add_u32 s{S_UNIT}, s{S_T0}, s{S_XCD}")
    a.i(f"s_mul_i32 s{S_TILE0}, s{S_P}, 11")
    a.i(f"s_max_u32 s{S_T0}, s{S_P}, 3")
    a.i(f"s_sub_u32 s{S_T0}, s{S_T0}, 3")
    a.i(f"s_sub_u32 s{S_TILE0}, s{S_TILE0}, s{S_T0}")
    a.i(f"s_lshl_b32 s{S_COLA}, s{S_UNIT}, 7")
    a.i(f"s_mov_b32 s{S_COLB}, s{S_COLA}")
    a.i(f"s_sub_u32 s{S_T0}, s{S_UNIT}, 28")
    a.i(f"s_lshl_b32 s{S_T0}, s{S_T0}, 8")
    a.i(f"s_add_u32 s{S_T1}, s{S_T0}, 128")
    a.i(f"s_cmp_ge_u32 s{S_UNIT}, 28")
    a.i(f"s_cselect_b32 s{S_COLA}, s{S_T0}, s{S_COLA}")
    a.i(f"s_cselect_b32 s{S_COLB}, s{S_T1}, s{S_COLB}")
    a.i("s_cselect_b32 s3, 1, 0")
    a.i(f"s_lshl_b32 s{S_T0}, s{S_XCD}, 7")
    a.i(f"s_add_u32 s{S_T1}, s{S_T0}, 2048")
    a.i(f"s_add_u32 s{S_T0}, s{S_T0}, 1024")
    a.i(f"s_sub_u32 s{S_T2}, s{S_IDX}, 24")
    a.i(f"s_lshl_b32 s{S_T3}, s{S_T2}, 3")
    a.i(f"s_cmp_ge_u32 s{S_IDX}, 24")
    a.i(f"s_cselect_b32 s{S_COLA}, s{S_T0}, s{S_COLA}")
    a.i(f"s_cselect_b32 s{S_COLB}, s{S_T1}, s{S_COLB}")
    a.i(f"s_cselect_b32 s{S_P}, s{S_T2}, s{S_P}")
    a.i(f"s_cselect_b32 s{S_TILE0}, s{S_T3}, s{S_TILE0}")
    a.i("s_cselect_b32 s3, 2, s3")
    a.i("s_cmp_eq_u32 s3, 0")
    a.i(f"s_movk_i32 s{S_T0}, 3584")
    a.i(f"s_movk_i32 s{S_T1}, 3072")
    a.i(f"s_cselect_b32 s{S_PITCH}, s{S_T0}, s{S_T1}")
    a.i(f"s_add_u32 s{S_T2}, s{S_TILE0}, s{S_PR}")
    a.i(f"s_lshl_b32 s{S_T2}, s{S_T2}, 15")
    a.i(f"s_lshl_b32 s{S_T3}, s{S_PITCH}, 6")
    if KROT:
        a.i(f"s_add_u32 s{S_C1}, s{S_XCD}, s{S_IDX}")
    else:
        a.i(f"s_mov_b32 s{S_C1}, s{S_XCD}")
    for i in range(8):
        a.i(f"s_add_u32 s{S_T0}, s{S_C1}, {i}")
        a.i(f"s_and_b32 s{S_T0}, s{S_T0}, 7")
        a.i(f"s_lshl_b32 s{S_T1}, s{S_T0}, 7")
        a.i(f"s_add_u32 s{S_XKF+i}, s{S_T1}, s{S_T2}")
        a.i(f"s_mul_i32 s{S_WK+i}, s{S_T0}, s{S_T3}")
    a.i(f"s_lshl_b32 s{S_M0W}, s{S_WAVE}, 10")
    a.i(f"s_lshl_b32 s{S_M0X}, s{S_PR}, 12")
    a.i(f"s_lshl_b32 s{S_T0}, s{S_CT}, 10")
    a.i(f"s_add_u32 s{S_M0X}, s{S_M0X}, s{S_T0}")
    t = V_T
    a.i(f"v_lshrrev_b32 v{t}, 3, v{V_LANE}")
    a.i(f"v_and_b32 v{t+1}, 7, v{V_LANE}")
    a.i(f"v_bfe_u32 v{t+2}, v{V_LANE}, 4, 1")
    a.i(f"v_lshlrev_b32 v{t+2}, 1, v{t+2}")
    a.i(f"v_xor_b32 v{t+3}, v{t+1}, v{t+2}")
    a.i(f"v_xor_b32 v{t+4}, 4, v{t+3}")
    a.i(f"s_lshl_b32 s{S_T0}, s{S_WAVE}, 3")
    a.i(f"v_add_u32 v{t+5}, s{S_T0}, v{t}")
    a.i(f"v_mul_lo_u32 v{t+5}, v{t+5}, s{S_PITCH}")
    a.i(f"v_lshl_add_u32 v{V_WA}, v{t+3}, 4, v{t+5}")
    a.i(f"v_add_u32 v{V_WA}, s{S_COLA}, v{V_WA}")
    a.i(f"v_lshl_add_u32 v{V_WB}, v{t+4}, 4, v{t+5}")
    a.i(f"v_add_u32 v{V_WB}, s{S_COLB}, v{V_WB}")
    a.i(f"s_lshl_b32 s{S_T0}, s{S_CT}, 3")
    a.i(f"v_add_u32 v{t+5}, s{S_T0}, v{t}")
    a.i(f"v_bfe_u32 v{t+6}, v{t+5}, 1, 3")
    a.i(f"v_xor_b32 v{t+6}, v{t+6}, v{t+1}")
    a.i(f"v_lshlrev_b32 v{t+5}, 10, v{t+5}")
    a.i(f"v_lshl_add_u32 v{V_XD}, v{t+6}, 4, v{t+5}")
    a.i("s_waitcnt lgkmcnt(0)")
    a.i("s_cmp_eq_u32 s3, 0")
    a.i(f"s_cselect_b32 s{S_A}, s24, s18")
    a.i(f"s_cselect_b32 s{S_A+1}, s25, s19")
    a.i(f"s_cselect_b32 s{S_B}, s26, s18")
    a.i(f"s_cselect_b32 s{S_B+1}, s27, s19")
    a.i(f"s_lshl_b32 s{S_A+2}, s{S_PITCH}, 9")
    a.i(f"s_and_b32 s{S_A+1}, s{S_A+1}, 0xffff")
    a.i(f"s_and_b32 s{S_B+1}, s{S_B+1}, 0xffff")
    a.i(f"s_mov_b32 s{S_B+2}, s{S_A+2}")
    a.i(f"s_mov_b32 s{S_A+3}, 0x20000")
    a.i(f"s_mov_b32 s{S_B+3}, 0x20000")
    srd(a, S_X, 16, 2048 * 1024)
    for i in range(3):
        ops = dma_stage_ops(i, 3)
        for grp in ops[:-1]:
            emit_group(a, grp)
        if NM == 3:
            a.i("s_cmp_eq_u32 s3, 2")
            a.i(f"s_cbranch_scc1 K1_skip{i}")
            emit_group(a, ops[-1])
            a.label(f"K1_skip{i}")
    srd(a, S_WS, 36, WS_USED)
    srd(a, S_GW, 30, 1024)
    srd(a, S_DBG, 34, 256)
    srd(a, S_W2, 28, 1792 * 1024)
    srd(a, S_WO, 20, 512 * 1024)
    a.i(f"s_lshl_b32 s{S_T2}, s{S_TILE0}, 15")
    for m in range(4):
        a.i(f"s_add_u32 s{S_T0}, s{S_C1}, s{S_PR}")
        a.i(f"s_add_u32 s{S_T0}, s{S_T0}, {2*m}")
        a.i(f"s_and_b32 s{S_T0}, s{S_T0}, 7")
        a.i(f"s_lshl_b32 s{S_T0}, s{S_T0}, 7")
        a.i(f"s_add_u32 s{S_XKP+m}, s{S_T0}, s{S_T2}")
    a.i(f"s_mov_b32 s{S_C1}, {LOG2E:#x}")
    a.i(f"s_mov_b32 s{S_C2}, {NLOG2E:#x}")
    a.i(f"s_mov_b32 s{S_C3}, {EPS:#x}")
    a.i(f"v_lshlrev_b32 v{V_STO}, 4, v{V_LANE}")
    a.i(f"v_and_b32 v{t}, 31, v{V_LANE}")
    a.i(f"v_lshrrev_b32 v{t+1}, 5, v{V_LANE}")
    a.i(f"v_bfe_u32 v{t+2}, v{t}, 1, 3")
    a.i(f"v_xor_b32 v{t+2}, v{t+2}, v{t+1}")
    a.i(f"v_lshlrev_b32 v{t}, 7, v{t}")
    a.i(f"s_lshl_b32 s{S_T0}, s{S_PR}, 12")
    a.i(f"v_add_u32 v{t}, s{S_T0}, v{t}")
    for s in range(4):
        a.i(f"v_xor_b32 v{t+3}, {2*s}, v{t+2}")
        a.i(f"v_lshl_add_u32 v{V_XF+s}, v{t+3}, 4, v{t}")
    a.i(f"v_bfe_u32 v{t}, v{V_LANE}, 4, 1")
    a.i(f"v_lshrrev_b32 v{t+1}, 5, v{V_LANE}")
    a.i(f"v_bfe_u32 v{t+2}, v{V_LANE}, 2, 2")
    a.i(f"v_bfe_u32 v{t+3}, v{V_LANE}, 1, 1")
    a.i(f"s_lshl_b32 s{S_T0}, s{S_CT}, 1")
    a.i(f"v_add_u32 v{t+3}, s{S_T0}, v{t+3}")
    a.i(f"v_bfe_u32 v{t+4}, v{V_LANE}, 3, 1")
    a.i(f"v_lshlrev_b32 v{t+4}, 1, v{t+4}")
    a.i(f"v_lshl_add_u32 v{t+4}, v{t}, 2, v{t+4}")
    a.i(f"v_xor_b32 v{t+3}, v{t+3}, v{t+4}")
    a.i(f"v_lshlrev_b32 v{t+5}, 13, v{t}")
    a.i(f"v_lshl_add_u32 v{t+5}, v{t+1}, 10, v{t+5}")
    a.i(f"v_lshl_add_u32 v{t+5}, v{t+2}, 7, v{t+5}")
    a.i(f"v_lshl_add_u32 v{t+5}, v{t+3}, 4, v{t+5}")
    a.i(f"v_and_b32 v{t+6}, 1, v{V_LANE}")
    a.i(f"v_lshl_add_u32 v{V_WT}, v{t+6}, 3, v{t+5}")
    cur0, cur1 = BUF[1], BUF[1] + 4096
    b0 = [BUF[3], BUF[0], BUF[3], BUF[0]]
    b1 = [BUF[2], BUF[1], BUF[2], BUF[1]]
    a.i(f"s_cmp_eq_u32 s{S_PR}, 0")
    for r in range(4):
        d0 = (b0[r] - cur0) & 0xffffffff
        d1 = (b1[r] - cur1) & 0xffffffff
        cur0, cur1 = b0[r], b1[r]
        a.i(f"s_mov_b32 s{S_T0}, {d0:#x}")
        a.i(f"s_mov_b32 s{S_T1}, {d1:#x}")
        a.i(f"s_cselect_b32 s{S_LB+r}, s{S_T0}, s{S_T1}")


def mk_ops(chk_blks):
    ops = []

    def V(cost, s, chk=False):
        def f(a, s=s, chk=chk):
            if chk:
                for b in chk_blks:
                    a.need_acc(b)
            a.i(s)
        ops.append((cost, f))
    return ops, V


def epi_mlp(cfg, acc, m):
    ops, V = mk_ops([acc])
    for r in range(8):
        V(4, f"v_mul_f32 v{acc+8+r}, v{acc+r}, v{acc+8+r}", chk=True)
    for r in range(8):
        V(4, f"v_mul_f32 v{acc+r}, s{S_C2}, v{acc+r}")
    for r in range(8):
        V(8, f"v_exp_f32 v{acc+r}, v{acc+r}")
    for r in range(8):
        V(4, f"v_add_f32 v{acc+r}, 1.0, v{acc+r}")
    for r in range(8):
        V(8, f"v_rcp_f32 v{acc+r}, v{acc+r}")
    for r in range(8):
        V(4, f"v_mul_f32 v{acc+8+r}, v{acc+r}, v{acc+8+r}")
    for j in range(4):
        V(4, f"v_cvt_pk_bf16_f32 v{acc+j}, v{acc+8+2*j}, v{acc+9+2*j}")

    def st(a):
        a.i(f"s_add_u32 s{S_TMP}, s{S_ST}, {2*m*AF_TT}")
        a.vmem("st", f"buffer_store_dwordx4 v[{acc}:{acc+3}], v{V_STO}, s[{S_WS}:{S_WS+3}], s{S_TMP} offen {cfg.store_aux}")
        a.nop(1)
    ops.append((12, st))
    return ops


def phi_ops(V, regs, tmp):
    for k, r in enumerate(regs):
        V(4, f"v_mul_f32 v{tmp+k}, s{S_C1}, v{r}", chk=True)
    for k, r in enumerate(regs):
        V(8, f"v_exp_f32_e64 v{tmp+k}, v{tmp+k} clamp")
    for k, r in enumerate(regs):
        V(4, f"v_max_f32 v{r}, 0, v{r}")
    for k, r in enumerate(regs):
        V(4, f"v_add_f32 v{r}, v{r}, v{tmp+k}")
    for k, r in enumerate(regs):
        V(4, f"v_add_f32 v{r}, s{S_C3}, v{r}")


def epi_q(cfg, acc, m):
    ops, V = mk_ops([acc])
    for half in range(2):
        regs = [acc + 8 * half + r for r in range(8)]
        phi_ops(V, regs, V_T)
        o = acc + 8 * half
        for j in range(4):
            V(4, f"v_cvt_pk_bf16_f32 v{o+j}, v{regs[2*j]}, v{regs[2*j+1]}")

        def st(a, o=o, half=half):
            a.i(f"s_add_u32 s{S_TMP}, s{S_ST}, {2*m*AF_TT + half*4096}")
            a.vmem("st", f"buffer_store_dwordx4 v[{o}:{o+3}], v{V_STO}, s[{S_WS}:{S_WS+3}], s{S_TMP} offen {cfg.store_aux}")
            a.nop(1)
        ops.append((12, st))
    return ops


def epi_kv(cfg, acc0, acc1, first):
    ops, V = mk_ops([acc0, acc1])
    for r in range(16):
        V(4, f"v_permlane16_swap_b32 v{acc0+r}, v{acc1+r}", chk=True)
    for half in range(2):
        phi_ops(V, [acc0 + 8 * half + r for r in range(8)], V_T)
    for j in range(8):
        V(4, f"v_cvt_pk_bf16_f32 v{acc1+j}, v{acc1+2*j}, v{acc1+2*j+1}")
    for r in range(16):
        if first and r == 0:
            V(4, f"v_mov_b32 v{V_ZS}, v{acc0}")
        else:
            V(4, f"v_add_f32 v{V_ZS}, v{V_ZS}, v{acc0+r}")
    for j in range(8):
        V(4, f"v_cvt_pk_bf16_f32 v{acc0+j}, v{acc0+2*j}, v{acc0+2*j+1}")

    def mm(a):
        a.nop(2)
        a.mfma(V_KV, f"v[{acc0}:{acc0+3}]", f"v[{acc1}:{acc1+3}]", None if first else V_KV)
        a.mfma(V_KV, f"v[{acc0+4}:{acc0+7}]", f"v[{acc1+4}:{acc1+7}]", V_KV)
    ops.append((24, mm))
    return ops


class K1State:
    pass


def k1_first_pass(a, cfg, kv):
    nm = 2 if kv else NM
    nl = 4 if kv else 11 - 2 * NM
    n1 = 2 * nm
    acc_blk = [V_ACC + 16 * k for k in range(4)]
    lbuf = [BUF[3], BUF[2], BUF[0], BUF[1], BUF[3], BUF[2], BUF[0]]
    a.vm, a.vm_done, a.ds, a.ds_done, a.mfma_w = ["pf"], 0, [], 0, {}
    for i in range(3):
        for grp in dma_stage_ops(i, nm):
            a.vm.append(f"S{i}")

    def opnds(q, xf):
        w = f"a[{4*q}:{4*q+3}]"
        x = f"v[{xf}:{xf+3}]"
        return (x, w) if kv else (w, x)

    def fp_reads(n):
        i, s = divmod(n, 4)
        L = []
        for rd in range(2):
            L.append((f"w{n}", f"ds_read_b64_tr_b16 a[{4*n+2*rd}:{4*n+2*rd+1}], v{V_WT} offset:{s*2048 + rd*512}"))
        for m in range(nm):
            xf = V_XFR + (n % 2) * 12 + 4 * m
            L.append((f"x{n}_{m}", f"ds_read_b128 v[{xf}:{xf+3}], v{V_XF+s} offset:{16384 + m*8192}"))
        return L

    st = K1State()
    st.nm, st.nl, st.n1, st.acc_blk, st.lbuf, st.opnds, st.kv = nm, nl, n1, acc_blk, lbuf, opnds, kv
    stamp(a, 1)
    a.wait(vm=["S0"])
    a.i("s_barrier")
    stamp(a, 2)
    for tag, text in fp_reads(0):
        a.dsop(tag, text)
    dma_q = []
    for n in range(32):
        i, s = divmod(n, 4)
        pre = []
        if s == 3:
            a.wait(ds_all=True)
            tgs = [f"S{i+1}"] if i < 7 else ["L0", "L1"]
            for tg in tgs:
                assert not any(op[1] == tg for g in dma_q for op in g), tg
                assert tg in a.vm
            a.wait(vm=tgs)
            a.i("s_barrier")
            if kv and i == 2:
                a.i(f"s_or_b32 s{S_T0}, s{S_P}, s{S_PR}")
                a.i(f"s_cmp_lg_u32 s{S_T0}, 0")
                a.i("s_cbranch_scc1 K1_kv_noflag")
                a.i("s_mov_b64 exec, 1")
                a.i(f"v_mov_b32 v{V_T}, 1")
                a.i(f"v_mov_b32 v{V_T+1}, 0")
                a.i(f"buffer_store_dword v{V_T}, v{V_T+1}, s[{S_DBG}:{S_DBG+3}], s{S_UNIT} offen sc1")
                a.i("s_mov_b64 exec, -1")
                a.label("K1_kv_noflag")
            if i + 3 <= 7:
                dma_q += dma_stage_ops(i + 3, nm)
            if i == 4:
                dma_q += dma_tile_ops(0, n1, lbuf[0])
            if i >= 5:
                dma_q += dma_tile_ops(i - 4, n1 + i - 4, lbuf[i - 4])
            if i < 7:
                d = (BUF[(i + 1) % 3] - BUF[i % 3]) & 0xffffffff
                pre = [f"v_add_u32 v{r}, {d:#x}, v{r}" for r in (V_WT, V_XF, V_XF + 1, V_XF + 2, V_XF + 3)]
            else:
                pre = [f"v_add_u32 v{r}, s{S_LB}, v{r}" for r in (V_XF, V_XF + 1, V_XF + 2, V_XF + 3)]
        for p in pre:
            a.i(p)
        if n < 31:
            fill = fp_reads(n + 1)
        else:
            fill = [lp_read(0, q) for q in range(3)]
        for m in range(nm):
            a.wait(ds=[f"w{n}", f"x{n}_{m}"])
            A, B = opnds(n, V_XFR + (n % 2) * 12 + 4 * m)
            a.mfma(acc_blk[m], A, B, None if n == 0 else acc_blk[m])
            k = 0
            while fill and k < 2:
                tag, text = fill.pop(0)
                a.dsop(tag, text)
                k += 1
            if dma_q:
                emit_group(a, dma_q.pop(0))
        while fill:
            tag, text = fill.pop(0)
            a.dsop(tag, text)
    st.dma_q = dma_q
    stamp(a, 3)
    return st


RING = 6


def lp_read(rd, q):
    i, s = divmod(q, 4)
    xf = V_XFR + 4 * ((rd * 32 + q) % RING)
    return (f"l{rd}_{q}", f"ds_read_b128 v[{xf}:{xf+3}], v{V_XF+s} offset:{i*4096}")


def k1_later(a, cfg, st, typ):
    nm, nl, n1, acc_blk, lbuf, opnds = st.nm, st.nl, st.n1, st.acc_blk, st.lbuf, st.opnds
    dma_q = list(st.dma_q)
    AH = cfg.ahead
    if typ == "mlp":
        a.i(f"s_lshl_b32 s{S_T0}, s{S_UNIT}, 2")
        a.i(f"s_add_u32 s{S_T0}, s{S_T0}, s{S_CT}")
    elif typ == "q":
        a.i(f"s_lshl_b32 s{S_T0}, s{S_UNIT}, 3")
        a.i(f"s_add_u32 s{S_T0}, s{S_T0}, s{S_CT}")
        a.i(f"s_sub_u32 s{S_T0}, s{S_T0}, {28*8-112}")
    if typ != "kv":
        a.i(f"s_lshl_b32 s{S_T0}, s{S_T0}, 10")
        a.i(f"s_add_u32 s{S_T1}, s{S_TILE0}, s{S_PR}")
        a.i(f"s_mul_i32 s{S_T1}, s{S_T1}, {AF_TT}")
        a.i(f"s_add_u32 s{S_ST}, s{S_T0}, s{S_T1}")
        if AF_OFF:
            a.i(f"s_add_u32 s{S_ST}, s{S_ST}, {AF_OFF}")
    for q in range(3, AH):
        tag, text = lp_read(0, q)
        a.dsop(tag, text)
    epi = []
    free_blk = acc_blk[nm:]

    def push_epi(blks, m, first=False):
        if typ == "mlp":
            ops = epi_mlp(cfg, blks[0], m)
        elif typ == "q":
            ops = epi_q(cfg, blks[0], m)
        else:
            ops = epi_kv(cfg, blks[0], blks[1], first)

        def rel(a, blks=blks):
            free_blk.extend(blks)
        ops.append((0, rel))
        epi.extend(ops)

    if typ == "kv":
        push_epi([acc_blk[0], acc_blk[1]], 0, first=True)
    else:
        for m in range(nm):
            push_epi([acc_blk[m]], m)
    extra = []
    if cfg.pf_w2 and typ != "kv":
        extra = pf_w2_ops(cfg)
    nrounds = (nl + 1) // 2
    pend = []

    def drain():
        while epi:
            c, f = epi.pop(0)
            f(a)

    for rd in range(nrounds):
        last_odd = (2 * rd + 1 >= nl)
        if last_odd:
            snap = (list(a.vm), a.vm_done, list(a.ds), a.ds_done, dict(a.mfma_w), list(epi), list(free_blk), a.n)
            a.i(f"s_cmp_eq_u32 s{S_PR}, 0")
            a.i(f"s_cbranch_scc1 K1_{typ}_last")
            stamp(a, 4)
            drain()
            stamp(a, 5)
            stamp_flush(a, 0, 7, S_WS)
            a.i("s_endpgm")
            a.label(f"K1_{typ}_last")
            a.vm, a.vm_done, a.ds, a.ds_done, a.mfma_w = snap[0], snap[1], snap[2], snap[3], snap[4]
            epi[:] = snap[5]
            free_blk[:] = snap[6]
            a.mfma_w = {k: a.n - (snap[7] - v) for k, v in snap[4].items()}
        while not free_blk:
            c, f = epi.pop(0)
            f(a)
        blk = free_blk.pop(0)
        has_next = rd + 1 < nrounds
        for q in range(32):
            if q == 32 - AH and has_next:
                tgs = [f"L{j}" for j in (2 * rd + 2, 2 * rd + 3) if j < nl]
                for tg in tgs:
                    assert not any(op[1] == tg for g in dma_q for op in g), tg
                    assert tg in a.vm
                a.wait(vm=tgs, ds_all=True)
                a.i("s_barrier")
                for nxt in (2 * rd + 4, 2 * rd + 5):
                    if nxt < nl:
                        dma_q += dma_tile_ops(nxt, n1 + nxt, lbuf[nxt])
                for r in range(4):
                    a.i(f"v_add_u32 v{V_XF+r}, s{S_LB+rd+1}, v{V_XF+r}")
            a.wait(ds=[f"l{rd}_{q}"])
            A, B = opnds(q, V_XFR + 4 * ((rd * 32 + q) % RING))
            a.mfma(blk, A, B, None if q == 0 else blk)
            if q + AH < 32:
                tag, text = lp_read(rd, q + AH)
                a.dsop(tag, text)
            elif has_next:
                tag, text = lp_read(rd + 1, q + AH - 32)
                a.dsop(tag, text)
            budget = cfg.fill_per_gap
            if dma_q:
                emit_group(a, dma_q.pop(0))
                budget -= 16
            elif extra and rd == cfg.pf_round and q % 2 == 0:
                emit_group(a, extra.pop(0))
                budget -= 16
            while epi and budget > 0:
                c, f = epi[0]
                if c > budget and budget < cfg.fill_per_gap and c <= cfg.fill_per_gap:
                    break
                epi.pop(0)
                f(a)
                budget -= c
        pend.append(blk)
        if typ == "kv":
            if len(pend) == 2:
                push_epi(pend, 0)
                pend = []
        else:
            push_epi(pend, nm + rd)
            pend = []
    assert not dma_q and not extra
    stamp(a, 4)
    if typ == "kv":
        k1_g_loads(a)
    drain()
    if typ == "kv":
        k1_kv_tail(a)
        k1_g_compute(a)
    stamp(a, 5)
    stamp_flush(a, 0, 7, S_WS)
    a.i("s_endpgm")


def pf_w2_ops(cfg):
    ops = []
    if cfg.pf_mode == 0:
        ops.append([("s", None, f"s_lshl_b32 s{S_T0}, s2, 3"),
                    ("s", None, f"s_add_u32 s{S_T0}, s{S_T0}, s{S_WAVE}"),
                    ("s", None, f"s_lshl_b32 s{S_T0}, s{S_T0}, 11"),
                    ("s", None, f"v_lshlrev_b32 v{V_E+1}, 7, v{V_LANE}"),
                    ("s", None, f"s_sub_u32 s{S_T1}, s{S_T0}, {1792*1024}"),
                    ("s", None, "s_mov_b64 exec, 0xffff"),
                    ("v", "pf", f"buffer_load_dword v{V_E}, v{V_E+1}, s[{S_W2}:{S_W2+3}], s{S_T0} offen"),
                    ("v", "pf", f"buffer_load_dword v{V_E}, v{V_E+1}, s[{S_WO}:{S_WO+3}], s{S_T1} offen"),
                    ("s", None, "s_mov_b64 exec, -1")])
    else:
        ops.append([("s", None, f"s_lshl_b32 s{S_T0}, s{S_IDX}, 3"),
                    ("s", None, f"s_add_u32 s{S_T0}, s{S_T0}, s{S_WAVE}"),
                    ("s", None, f"s_mul_i32 s{S_T0}, s{S_T0}, {12*1024}"),
                    ("s", None, f"s_and_b32 s{S_T1}, s{S_XCD}, 1"),
                    ("s", None, f"s_lshl_b32 s{S_T1}, s{S_T1}, 9"),
                    ("s", None, f"s_add_u32 s{S_T0}, s{S_T0}, s{S_T1}"),
                    ("s", None, f"v_lshrrev_b32 v{V_E+1}, 2, v{V_LANE}"),
                    ("s", None, f"v_lshlrev_b32 v{V_E+1}, 10, v{V_E+1}"),
                    ("s", None, f"v_and_b32 v{V_E+2}, 3, v{V_LANE}"),
                    ("s", None, f"v_lshl_add_u32 v{V_E+1}, v{V_E+2}, 7, v{V_E+1}"),
                    ("s", None, f"v_add_u32 v{V_E+1}, s{S_T0}, v{V_E+1}"),
                    ("s", None, f"v_subrev_u32 v{V_E+2}, {1792*1024}, v{V_E+1}"),
                    ("s", None, "s_mov_b32 exec_hi, 0xffff"),
                    ("v", "pf", f"buffer_load_dword v{V_E}, v{V_E+1}, s[{S_W2}:{S_W2+3}], 0 offen"),
                    ("v", "pf", f"buffer_load_dword v{V_E}, v{V_E+2}, s[{S_WO}:{S_WO+3}], 0 offen"),
                    ("s", None, "s_mov_b64 exec, -1")])
    return ops


def k1_kv_head(a):
    a.i(f"s_lshl_b32 s{S_T0}, s{S_XCD}, 2")
    a.i(f"s_add_u32 s{S_T0}, s{S_T0}, s{S_CT}")
    a.i(f"s_lshl_b32 s{S_UNIT}, s{S_T0}, 2")
    a.i(f"s_mul_i32 s{S_ST}, s{S_T0}, {KVT_HEAD}")
    a.i(f"s_add_u32 s{S_ST}, s{S_ST}, {KVT_OFF}")
    a.i(f"s_or_b32 s{S_T0}, s{S_P}, s{S_PR}")
    a.i(f"s_cmp_lg_u32 s{S_T0}, 0")
    a.i("s_cbranch_scc1 K1_kv_nozero")
    a.i(f"v_lshlrev_b32 v{V_T}, 3, v{V_LANE}")
    for k in range(6):
        a.i(f"v_mov_b32 v{V_KV+k}, 0")
    a.i(f"buffer_atomic_swap_x2 v[{V_KV}:{V_KV+1}], v{V_T}, s[{S_WS}:{S_WS+3}], s{S_ST} offen sc0")
    a.i(f"buffer_atomic_swap_x2 v[{V_KV+2}:{V_KV+3}], v{V_T}, s[{S_WS}:{S_WS+3}], s{S_ST} offen offset:512 sc0")
    a.i("s_mov_b64 exec, 0xffff")
    a.i(f"buffer_atomic_swap_x2 v[{V_KV+4}:{V_KV+5}], v{V_T}, s[{S_WS}:{S_WS+3}], s{S_ST} offen offset:1024 sc0")
    a.i("s_mov_b64 exec, -1")
    a.label("K1_kv_nozero")


def k1_kv_tail(a):
    t = V_T
    B = V_ACC
    a.need_acc(V_KV, 16)
    for r in range(8):
        a.i(f"v_permlane16_swap_b32 v{V_KV+8+r}, v{t+r}")
    a.i(f"v_mov_b32 v{B}, v{V_ZS}")
    a.nop(2)
    a.i(f"v_permlane16_swap_b32 v{B}, v{V_ZS}")
    a.nop(1)
    a.i(f"v_add_f32 v{V_ZS}, v{V_ZS}, v{B}")
    a.i(f"v_mov_b32 v{B}, v{V_ZS}")
    a.nop(2)
    a.i(f"v_permlane32_swap_b32 v{B}, v{V_ZS}")
    a.nop(1)
    a.i(f"v_add_f32 v{V_ZS}, v{V_ZS}, v{B}")
    for r in range(8):
        a.i(f"v_add_f32 v{V_KV+r}, v{V_KV+r}, v{t+r}")
    a.i(f"s_mul_i32 s{S_T1}, s{S_WAVE}, {KVT_HEAD}")
    a.i(f"s_add_u32 s{S_T1}, s{S_T1}, {BUF[3]}")
    a.i(f"v_and_b32 v{B}, 15, v{V_LANE}")
    a.i(f"v_lshrrev_b32 v{B+1}, 5, v{V_LANE}")
    a.i(f"v_lshl_add_u32 v{B+1}, v{B+1}, 4, v{B}")
    a.i(f"v_lshlrev_b32 v{B+1}, 5, v{B+1}")
    a.i(f"v_add_u32 v{B+1}, s{S_T1}, v{B+1}")
    a.i(f"v_and_b32 v{B+2}, 3, v{B}")
    a.i(f"v_lshrrev_b32 v{B+3}, 3, v{B}")
    a.i(f"v_lshl_add_u32 v{B+2}, v{B+3}, 2, v{B+2}")
    a.i(f"v_bfe_u32 v{B+3}, v{B}, 2, 1")
    a.i(f"v_lshl_add_u32 v{B+2}, v{B+3}, 3, v{B+2}")
    a.i(f"v_lshlrev_b32 v{B+2}, 2, v{B+2}")
    a.i(f"v_add_u32 v{B+2}, s{S_T1}, v{B+2}")
    a.i(f"v_lshlrev_b32 v{B+4}, 2, v{V_LANE}")
    a.i(f"v_add_u32 v{B+3}, s{S_T1}, v{B+4}")
    a.i(f"s_mov_b32 s{S_MASK}, 0xffff")
    a.i(f"s_mov_b32 s{S_MASK+1}, 0xffff")
    a.i(f"s_mov_b64 exec, s[{S_MASK}:{S_MASK+1}]")
    a.i(f"ds_write_b128 v{B+1}, v[{V_KV}:{V_KV+3}]")
    a.i(f"ds_write_b128 v{B+1}, v[{V_KV+4}:{V_KV+7}] offset:16")
    a.i("s_mov_b64 exec, 0xffff")
    a.i(f"ds_write_b32 v{B+2}, v{V_ZS} offset:1024")
    a.i("s_mov_b64 exec, -1")
    a.i("s_waitcnt lgkmcnt(0)")
    for k in range(5):
        a.i(f"ds_read_b32 v{B+8+k}, v{B+3} offset:{256*k}")
    a.label("K1_kv_poll")
    a.i("s_mov_b64 exec, 1")
    a.i(f"v_mov_b32 v{t+1}, 0")
    a.i(f"buffer_load_dword v{t}, v{t+1}, s[{S_DBG}:{S_DBG+3}], s{S_UNIT} offen sc1")
    a.i("s_waitcnt vmcnt(0)")
    a.i(f"v_readfirstlane_b32 s{S_T0}, v{t}")
    a.i("s_mov_b64 exec, -1")
    a.i(f"s_cmp_lg_u32 s{S_T0}, 0")
    a.i("s_cbranch_scc1 K1_kv_go")
    a.i("s_sleep 8")
    a.i("s_branch K1_kv_poll")
    a.label("K1_kv_go")
    a.vm_done = len(a.vm)
    a.i("s_waitcnt lgkmcnt(0)")
    for k in range(5):
        if k == 4:
            a.i("s_mov_b64 exec, 0xffff")
        a.vmem("at", f"buffer_atomic_add_f32 v{B+8+k}, v{B+4}, s[{S_WS}:{S_WS+3}], s{S_ST} offen offset:{256*k}")
    a.i("s_mov_b64 exec, -1")


def k1_g_loads(a):
    a.i(f"s_lshl_b32 s{S_T0}, s{S_P}, 8")
    a.i(f"s_lshl_b32 s{S_T1}, s{S_XCD}, 5")
    a.i(f"s_add_u32 s{S_T0}, s{S_T0}, s{S_T1}")
    a.i(f"s_lshl_b32 s{S_T1}, s{S_WAVE}, 2")
    a.i(f"s_add_u32 s{S_T2}, s{S_T0}, s{S_T1}")
    a.i(f"s_lshl_b32 s{S_T0}, s{S_T2}, 10")
    e = V_XFR
    a.nop(4)
    a.vmem("g", f"buffer_load_dwordx4 v[{e}:{e+3}], v{V_STO}, s[{S_GW}:{S_GW+3}], 0 offen")
    for k in range(4):
        a.vmem("g", f"buffer_load_dwordx4 v[{e+4+4*k}:{e+7+4*k}], v{V_STO}, s[{S_X}:{S_X+3}], s{S_T0} offen offset:{1024*k}")


def k1_g_compute(a):
    e = V_XFR
    a.wait(vm=["g"])
    t = V_ACC + 16
    R = [V_ACC + 24 + k for k in range(4)]
    for j in range(4):
        for k in range(4):
            a.i(f"v_dot2_f32_bf16 v{R[k]}, v{e+4+4*k+j}, v{e+j}, " + ("0" if j == 0 else f"v{R[k]}"))
    a.nop(4)
    for mod in ("row_shr:1", "row_shr:2", "row_shr:4", "row_shr:8"):
        for r in R:
            a.i(f"v_add_f32_dpp v{r}, v{r}, v{r} {mod} row_mask:0xf bank_mask:0xf bound_ctrl:0")
    for r in R:
        a.i(f"v_add_f32_dpp v{r}, v{r}, v{r} row_bcast:15 row_mask:0xa bank_mask:0xf")
    for r in R:
        a.i(f"v_add_f32_dpp v{r}, v{r}, v{r} row_bcast:31 row_mask:0xc bank_mask:0xf")

    def rnd(regs):
        for r in regs:
            a.i(f"v_cvt_pk_bf16_f32 v{r}, v{r}, v{r}")
        for r in regs:
            a.i(f"v_and_b32 v{r}, 0xffff0000, v{r}")
    rnd(R)
    for r in R:
        a.i(f"v_mul_f32 v{r}, s{S_C2}, v{r}")
    for r in R:
        a.i(f"v_exp_f32 v{r}, v{r}")
    for r in R:
        a.i(f"v_add_f32 v{r}, 1.0, v{r}")
    for r in R:
        a.i(f"v_rcp_f32 v{r}, v{r}")
    a.nop(1)
    rnd(R)
    o = V_ACC + 32
    O = [o + 2 * k + 1 for k in range(4)]
    for k in range(4):
        a.i(f"v_sub_f32 v{O[k]}, 1.0, v{R[k]}")
    rnd(O)
    for k in range(4):
        a.i(f"v_max_f32 v{O[k]}, 0x30800000, v{O[k]}")
    for k in range(4):
        a.i(f"v_rcp_f32 v{t+k}, v{O[k]}")
    a.nop(1)
    for k in range(4):
        a.i(f"v_fma_f32 v{t+4+k}, -v{O[k]}, v{t+k}, 1.0")
    for k in range(4):
        a.i(f"v_fma_f32 v{t+k}, v{t+4+k}, v{t+k}, v{t+k}")
    for k in range(4):
        a.i(f"v_mul_f32 v{o+2*k}, v{R[k]}, v{t+k}")
    a.i(f"s_lshl_b32 s{S_T0}, s{S_T2}, 3")
    a.i(f"s_add_u32 s{S_T0}, s{S_T0}, {G_OFF}")
    a.i(f"v_mov_b32 v{t}, 0")
    a.i(f"s_mov_b32 s{S_SAVE}, 0")
    a.i(f"s_mov_b32 s{S_SAVE+1}, 0x80000000")
    a.i(f"s_mov_b64 exec, s[{S_SAVE}:{S_SAVE+1}]")
    a.vmem("gst", f"buffer_store_dwordx4 v[{o}:{o+3}], v{t}, s[{S_WS}:{S_WS+3}], s{S_T0} offen")
    a.vmem("gst", f"buffer_store_dwordx4 v[{o+4}:{o+7}], v{t}, s[{S_WS}:{S_WS+3}], s{S_T0} offen offset:16")
    a.i("s_mov_b64 exec, -1")


def gen_k1(cfg):
    import copy
    a = Asm()
    a.raw(".globl k1_kernel\n.p2align 8\n.type k1_kernel,@function\nk1_kernel:")
    k1_prologue(a)
    a.i("s_cmp_eq_u32 s3, 2")
    a.i("s_cbranch_scc1 K1_kv")
    st = k1_first_pass(a, cfg, False)
    snap = (list(a.vm), a.vm_done, list(a.ds), a.ds_done, dict(a.mfma_w), a.n)
    a.i("s_cmp_eq_u32 s3, 1")
    a.i("s_cbranch_scc1 K1_q")
    k1_later(a, cfg, st, "mlp")
    a.raw(".p2align 6")
    a.label("K1_q")
    a.vm, a.vm_done, a.ds, a.ds_done = list(snap[0]), snap[1], list(snap[2]), snap[3]
    a.mfma_w = {k: a.n - (snap[5] - v) for k, v in snap[4].items()}
    k1_later(a, cfg, st, "q")
    a.raw(".p2align 6")
    a.label("K1_kv")
    k1_kv_head(a)
    st = k1_first_pass(a, cfg, True)
    k1_later(a, cfg, st, "kv")
    a.label("K1_done")
    a.i("s_endpgm")
    return a.text()


class K2Cfg:
    depth = 6
    wdepth = 8
    mode = 1
    nw = 4


def gen_k2(cfg):
    a = Asm()
    D, DW, NW = cfg.depth, cfg.wdepth, cfg.nw
    NH, NA = 112 // NW, 32 // NW
    C_WS, C_W2, C_WO, C_OUT = 40, 44, 48, 52
    C_W, C_RB, C_CB, C_M0, T0, T1, T2, T3 = 4, 5, 6, 7, 8, 9, 10, 11
    S_HB, S_WB, S_QB, S_OB, S_KVB, C_EPS = 12, 13, 14, 15, 56, 57
    V_L = 1
    V_A0, V_A1, V_WD, V_TR0, V_TR1, V_KVA = 2, 3, 4, 5, 6, 7
    VT = 8
    V_G = 16
    V_RC = 20
    V_KVF = 24
    V_WF = 32
    V_OF = 48
    P = 56
    ACC = 64
    A_ND = 64
    assert 8 * D <= 64
    a.raw(".globl k2_kernel\n.p2align 8\n.type k2_kernel,@function\nk2_kernel:")
    a.i("s_cmp_ge_u32 s2, 256")
    a.i("s_cbranch_scc1 K2_done")
    if DIAG:
        a.i("s_memrealtime s[38:39]")
    a.i("s_load_dwordx2 s[16:17], s[0:1], 16")
    a.i("s_load_dwordx2 s[18:19], s[0:1], 48")
    a.i("s_load_dwordx2 s[20:21], s[0:1], 64")
    a.i("s_load_dwordx2 s[22:23], s[0:1], 80")
    a.i("s_getpc_b64 s[24:25]")
    a.label("K2_pc")
    a.i(f"s_and_b32 s{T0}, s2, 7")
    a.i(f"s_lshr_b32 s{T1}, s2, 3")
    a.i(f"v_and_b32 v{V_L}, 63, v0")
    a.i(f"v_lshrrev_b32 v{VT}, 6, v0")
    a.i(f"s_lshl_b32 s{T2}, s{T1}, 9")
    a.i(f"v_readfirstlane_b32 s{C_W}, v{VT}")
    a.i(f"v_lshlrev_b32 v{VT+1}, 7, v0")
    a.i(f"v_add_u32 v{VT+1}, s{T2}, v{VT+1}")
    a.i(f"v_min_u32 v{VT+1}, CODE_END-K2_pc-4, v{VT+1}")
    a.i("v_cmp_gt_u32 vcc, 4, v0")
    a.i("s_and_saveexec_b64 s[26:27], vcc")
    a.i("s_cbranch_execz K2_nopf")
    a.i(f"global_load_dword v{P+7}, v{VT+1}, s[24:25]")
    a.label("K2_nopf")
    a.i("s_mov_b64 exec, s[26:27]")
    a.vm.append("pf")
    if cfg.mode == 0:
        a.i(f"s_lshr_b32 s{C_RB}, s{T1}, 3")
        a.i(f"s_lshl_b32 s{T2}, s{T0}, 2")
        a.i(f"s_add_u32 s{C_RB}, s{C_RB}, s{T2}")
        a.i(f"s_and_b32 s{C_CB}, s{T1}, 7")
    else:
        a.i(f"s_lshr_b32 s{C_RB}, s{T0}, 1")
        a.i(f"s_lshl_b32 s{C_RB}, s{C_RB}, 3")
        a.i(f"s_lshr_b32 s{T2}, s{T1}, 2")
        a.i(f"s_add_u32 s{C_RB}, s{C_RB}, s{T2}")
        a.i(f"s_and_b32 s{C_CB}, s{T0}, 1")
        a.i(f"s_lshl_b32 s{C_CB}, s{C_CB}, 2")
        a.i(f"s_and_b32 s{T2}, s{T1}, 3")
        a.i(f"s_add_u32 s{C_CB}, s{C_CB}, s{T2}")
    t = VT
    a.i(f"s_mul_i32 s{T0}, s{C_RB}, {2*AF_TT}")
    a.i(f"v_lshlrev_b32 v{V_A0}, 4, v{V_L}")
    a.i(f"v_add_u32 v{V_A0}, s{T0}, v{V_A0}")
    a.i(f"v_add_u32 v{V_A1}, {AF_TT}, v{V_A0}")
    a.i(f"s_mul_i32 s{S_HB}, s{C_W}, {NH*1024}")
    a.i(f"s_mul_i32 s{S_WB}, s{C_W}, {NH*16384}")
    a.i(f"s_mul_i32 s{S_QB}, s{C_W}, {NA*1024}")
    a.i(f"s_add_u32 s{S_QB}, s{S_QB}, {112*1024}")
    a.i(f"s_mul_i32 s{S_OB}, s{C_W}, {NA*16384}")
    a.i(f"s_mul_i32 s{S_KVB}, s{C_W}, {NA*KVT_HEAD}")
    a.i(f"s_add_u32 s{S_KVB}, s{S_KVB}, {KVT_OFF}")
    a.i(f"s_mul_i32 s{C_M0}, s{C_W}, {DW*2048}")
    a.i(f"s_mov_b32 s{C_EPS}, {EPS:#x}")
    a.i(f"v_lshrrev_b32 v{t}, 3, v{V_L}")
    a.i(f"v_and_b32 v{t+1}, 7, v{V_L}")
    a.i(f"v_bfe_u32 v{t+2}, v{V_L}, 4, 1")
    a.i(f"v_lshlrev_b32 v{t+2}, 2, v{t+2}")
    a.i(f"v_xor_b32 v{t+1}, v{t+1}, v{t+2}")
    a.i(f"v_lshlrev_b32 v{t}, 10, v{t}")
    a.i(f"v_lshl_add_u32 v{V_WD}, v{t+1}, 4, v{t}")
    a.i(f"s_lshl_b32 s{T0}, s{C_CB}, 7")
    a.i(f"v_add_u32 v{V_WD}, s{T0}, v{V_WD}")
    a.i("s_waitcnt lgkmcnt(0)")
    srd(a, C_WS, 22, WS_USED)
    srd(a, C_W2, 18, 1792 * 1024)
    srd(a, C_WO, 16, 512 * 1024)

    seq = []
    hq, aq = list(range(NH)), list(range(NA))
    NS = NH + NA
    gap = max((NS - 3) // NA, 2)
    for n in range(NS):
        if aq and n % gap == gap - 1 and n < NS - 2:
            seq.append(("a", aq.pop(0)))
        elif hq:
            seq.append(("h", hq.pop(0)))
        else:
            seq.append(("a", aq.pop(0)))
    assert not hq and not aq

    def issue_w(n):
        kind, k = seq[n]
        d = n % DW
        wb, w = (S_WB, C_W2) if kind == "h" else (S_OB, C_WO)
        for b in range(2):
            a.i(f"s_add_u32 m0, s{C_M0}, {d*2048 + b*1024}")
            a.i(f"s_add_u32 s{T2}, s{wb}, {k*16384 + b*8192}")
            a.vmem(f"s{n}", f"buffer_load_dwordx4 v{V_WD}, s[{w}:{w+3}], s{T2} offen lds")

    def issue(n):
        kind, k = seq[n]
        d = n % D
        ab = S_HB if kind == "h" else S_QB
        a.i(f"s_add_u32 s{T1}, s{ab}, {k*1024}")
        a.vmem(f"s{n}", f"buffer_load_dwordx4 a[{8*d}:{8*d+3}], v{V_A0}, s[{C_WS}:{C_WS+3}], s{T1} offen")
        a.vmem(f"s{n}", f"buffer_load_dwordx4 a[{8*d+4}:{8*d+7}], v{V_A1}, s[{C_WS}:{C_WS+3}], s{T1} offen")

    def kv_issue(k):
        a.i(f"s_add_u32 s{T3}, s{S_KVB}, {k*KVT_HEAD}")
        a.vmem(f"kv{k}", f"buffer_load_dwordx4 v[{VT}:{VT+3}], v{V_KVA}, s[{C_WS}:{C_WS+3}], s{T3} offen")
        a.vmem(f"kv{k}", f"buffer_load_dwordx4 v[{VT+4}:{VT+7}], v{V_KVA}, s[{C_WS}:{C_WS+3}], s{T3} offen offset:16")

    def tr_reads(n):
        d = n % DW
        wf = V_WF + 8 * (n % 2)
        for ct, va in enumerate((V_TR0, V_TR1)):
            for rd in range(2):
                r = wf + 4 * ct + 2 * rd
                a.dsop(f"t{n}", f"ds_read_b64_tr_b16 v[{r}:{r+1}], v{va} offset:{d*2048 + rd*1024}")

    for n in range(max(D, DW)):
        if n < DW:
            issue_w(n)
        if n < D:
            issue(n)
    srd(a, C_OUT, 20, 2048 * 1024)
    u = P
    a.i(f"v_lshrrev_b32 v{u}, 5, v{V_L}")
    a.i(f"v_bfe_u32 v{u+1}, v{V_L}, 2, 2")
    a.i(f"v_lshl_add_u32 v{u}, v{u}, 2, v{u+1}")
    a.i(f"v_bfe_u32 v{u+1}, v{V_L}, 4, 1")
    a.i(f"v_bfe_u32 v{u+2}, v{V_L}, 1, 1")
    a.i(f"v_lshl_add_u32 v{u+1}, v{u+1}, 1, v{u+2}")
    a.i(f"v_bfe_u32 v{u+2}, v{V_L}, 3, 1")
    a.i(f"v_lshlrev_b32 v{u+2}, 2, v{u+2}")
    a.i(f"v_xor_b32 v{u+1}, v{u+1}, v{u+2}")
    a.i(f"v_lshlrev_b32 v{u}, 7, v{u}")
    a.i(f"v_lshl_add_u32 v{u}, v{u+1}, 4, v{u}")
    a.i(f"v_and_b32 v{u+1}, 1, v{V_L}")
    a.i(f"v_lshl_add_u32 v{u}, v{u+1}, 3, v{u}")
    a.i(f"v_add_u32 v{V_TR0}, s{C_M0}, v{u}")
    a.i(f"v_xor_b32 v{u}, 64, v{u}")
    a.i(f"v_add_u32 v{V_TR1}, s{C_M0}, v{u}")
    a.i(f"v_and_b32 v{u}, 31, v{V_L}")
    a.i(f"v_lshrrev_b32 v{u+1}, 5, v{V_L}")
    a.i(f"v_lshl_add_u32 v{u+2}, v{u+1}, 4, v{u}")
    a.i(f"v_add_u32 v{u+1}, 32, v{u+1}")
    a.i(f"v_cmp_gt_u32 vcc, 16, v{u}")
    a.i(f"v_lshlrev_b32 v{V_G+2}, 3, v{u}")
    a.i(f"s_lshl_b32 s{T0}, s{C_RB}, 9")
    a.i(f"s_add_u32 s{T0}, s{T0}, {G_OFF}")
    a.i(f"v_cndmask_b32 v{u+2}, v{u+1}, v{u+2}, vcc")
    a.i(f"v_lshlrev_b32 v{V_KVA}, 5, v{u+2}")
    a.vmem("kv0", f"buffer_load_dword v{V_G}, v{V_G+2}, s[{C_WS}:{C_WS+3}], s{T0} offen")
    a.vmem("kv0", f"buffer_load_dword v{V_G+1}, v{V_G+2}, s[{C_WS}:{C_WS+3}], s{T0} offen offset:256")
    kv_issue(0)
    stamp(a, 1, 60)
    a.wait(vm=["s0"])
    stamp(a, 2, 60)
    tr_reads(0)
    nd_w = {}
    for n in range(NS):
        kind, k = seq[n]
        d = n % D
        if kind == "a":
            a.wait(vm=[f"kv{k}"])
            for j in range(4):
                a.i(f"v_cvt_pk_bf16_f32 v{V_KVF+j}, v{VT+2*j}, v{VT+2*j+1}")
            a.nop(2)
            for tt in range(2):
                b = A_ND + 16 * tt
                a.i(f"v_mfma_f32_32x32x16_bf16 a[{b}:{b+15}], v[{V_KVF}:{V_KVF+3}], a[{8*d+4*tt}:{8*d+4*tt+3}], 0")
                nd_w[tt] = a.n
            if k + 1 < NA:
                kv_issue(k + 1)
        if n + 1 < NS:
            a.wait(vm=[f"s{n+1}"])
            tr_reads(n + 1)
        if kind == "a":
            for tt in range(2):
                g_ = a.n - nd_w[tt]
                if g_ < 13:
                    a.nop(13 - g_)
                a.i(f"v_accvgpr_read_b32 v{V_RC+tt}, a{A_ND+16*tt+8}")
            for tt in range(2):
                a.i(f"v_add_f32 v{V_RC+tt}, s{C_EPS}, v{V_RC+tt}")
            for tt in range(2):
                a.i(f"v_rcp_f32 v{V_RC+tt}, v{V_RC+tt}")
            a.nop(1)
            for tt in range(2):
                a.i(f"v_mul_f32 v{V_RC+tt}, v{V_RC+tt}, v{V_G+tt}")
            for tt in range(2):
                for j in range(8):
                    a.i(f"v_accvgpr_read_b32 v{P+j}, a{A_ND+16*tt+j}")
                for j in range(8):
                    a.i(f"v_mul_f32 v{P+j}, v{P+j}, v{V_RC+tt}")
                for j in range(4):
                    a.i(f"v_cvt_pk_bf16_f32 v{V_OF+4*tt+j}, v{P+2*j}, v{P+2*j+1}")
            a.nop(2)
        a.wait(ds=[f"t{n}"])
        wf = V_WF + 8 * (n % 2)
        for ct in range(2):
            for tt in range(2):
                blk = ACC + 16 * (ct * 2 + tt)
                B = f"v[{V_OF+4*tt}:{V_OF+4*tt+3}]" if kind == "a" else f"a[{8*d+4*tt}:{8*d+4*tt+3}]"
                a.mfma(blk, f"v[{wf+4*ct}:{wf+4*ct+3}]", B, blk if n else None)
        if n + DW < NS:
            issue_w(n + DW)
        if n + D < NS:
            issue(n + D)
    stamp(a, 3, 60)
    PITCH = 272
    WSZ = 64 * PITCH
    TPW = 64 // NW
    a.i(f"v_lshrrev_b32 v{t+1}, 3, v{V_L}")
    a.i(f"s_mul_i32 s{T0}, s{C_W}, {TPW}")
    a.i(f"v_add_u32 v{t+1}, s{T0}, v{t+1}")
    a.i(f"v_lshlrev_b32 v{t+5}, 3, v{t+1}")
    a.i(f"s_lshl_b32 s{T0}, s{C_RB}, 9")
    a.i(f"s_add_u32 s{T0}, s{T0}, {G_OFF + 4}")
    for hf in range(TPW // 8):
        a.i(f"buffer_load_dword v{V_RC+hf}, v{t+5}, s[{C_WS}:{C_WS+3}], s{T0} offen offset:{64*hf}")
    a.i(f"v_and_b32 v{t}, 31, v{V_L}")
    a.i(f"v_lshrrev_b32 v{t+2}, 5, v{V_L}")
    a.i(f"v_mul_u32_u24 v{t}, {PITCH}, v{t}")
    a.i(f"v_lshl_add_u32 v{t}, v{t+2}, 4, v{t}")
    a.i(f"s_mul_i32 s{T0}, s{C_W}, {WSZ}")
    a.i(f"v_add_u32 v{t}, s{T0}, v{t}")
    a.i(f"v_and_b32 v{t+2}, 7, v{V_L}")
    a.i(f"v_mul_u32_u24 v{t+3}, {PITCH}, v{t+1}")
    a.i(f"v_lshl_add_u32 v{t+3}, v{t+2}, 5, v{t+3}")
    a.i(f"v_add_u32 v{t+6}, {3*WSZ}, v{t+3}")
    a.i(f"v_add_u32 v{t+7}, {6*WSZ}, v{t+3}")
    a.i(f"v_lshlrev_b32 v{t+4}, 10, v{t+1}")
    a.i(f"v_lshl_add_u32 v{t+4}, v{t+2}, 4, v{t+4}")
    a.i(f"s_lshl_b32 s{T0}, s{C_RB}, 16")
    a.i(f"s_lshl_b32 s{T1}, s{C_CB}, 7")
    a.i(f"s_add_u32 s{T0}, s{T0}, s{T1}")
    a.i("s_waitcnt lgkmcnt(0)")
    a.i("s_barrier")
    for blk in range(4):
        a.need_acc(ACC + 16 * blk, 16)
    for blk in range(4):
        ct, tt = blk >> 1, blk & 1
        for q in range(4):
            r = ACC + 16 * blk + 4 * q
            off = tt * 32 * PITCH + (ct * 32 + 8 * q) * 4
            a.i(f"ds_write_b128 v{t}, v[{r}:{r+3}] offset:{off}")
    a.i("s_waitcnt lgkmcnt(0)")
    a.i("s_barrier")
    R = ACC
    for hf in range(TPW // 8):
        for w in range(NW):
            for p in range(2):
                r = R + hf * 32 + w * 8 + p * 4
                va = (t + 3, t + 6, t + 7)[w // 3]
                a.i(f"ds_read_b128 v[{r}:{r+3}], v{va} offset:{(w % 3) * WSZ + hf * 8 * PITCH + p * 16}")
    a.i("s_waitcnt lgkmcnt(0) vmcnt(0)")
    for hf in range(TPW // 8):
        b = R + hf * 32
        step = 8
        while step < NW * 8:
            for w in range(0, NW * 8, 2 * step):
                for j in range(8):
                    a.i(f"v_add_f32 v{b+w+j}, v{b+w+j}, v{b+w+step+j}")
            step *= 2
        for j in range(8):
            a.i(f"v_mul_f32 v{b+j}, v{b+j}, v{V_RC+hf}")
        for j in range(4):
            a.i(f"v_cvt_pk_bf16_f32 v{b+8+j}, v{b+2*j}, v{b+2*j+1}")
        if hf:
            a.i(f"s_add_u32 s{T0}, s{T0}, 8192")
        a.i(f"buffer_store_dwordx4 v[{b+8}:{b+11}], v{t+4}, s[{C_OUT}:{C_OUT+3}], s{T0} offen")
    stamp(a, 4, 60)
    stamp_flush(a, 1, 6, C_WS, 60)
    a.label("K2_done")
    a.i("s_endpgm")
    lds = max(NW * DW * 2048, NW * WSZ)
    return a.text(), lds, NW


def kd(name, nv, accum, nsgpr=102):
    return f""".p2align 6
.amdhsa_kernel {name}
  .amdhsa_next_free_vgpr {nv}
  .amdhsa_next_free_sgpr {nsgpr}
  .amdhsa_accum_offset {accum}
  .amdhsa_group_segment_fixed_size 0
  .amdhsa_kernarg_size 88
  .amdhsa_user_sgpr_count 2
  .amdhsa_user_sgpr_kernarg_segment_ptr 1
  .amdhsa_system_sgpr_workgroup_id_x 1
  .amdhsa_float_denorm_mode_32 3
.end_amdhsa_kernel"""


def build(c1=None, c2=None):
    c1 = c1 or K1Cfg()
    c2 = c2 or K2Cfg()
    k1 = gen_k1(c1)
    k2, lds2, nw2 = gen_k2(c2)
    hdr = f"""; gated_mix: linear attention block + SwiGLU block, gated mix.  Generated by gen/gen8.py
; @launch kernel=k1_kernel grid=(256,1,1) block=(512,1,1) lds={K1_LDS}
; @launch kernel=k2_kernel grid=(256,1,1) block=({nw2*64},1,1) lds={lds2}
.amdgcn_target "amdgcn-amd-amdhsa--gfx950"
.text
"""
    tail = """
.p2align 8
CODE_END:
    s_endpgm
.section .rodata,"a"
"""
    return hdr + k1 + "\n" + k2 + tail + kd("k1_kernel", 256, 128) + "\n" + kd("k2_kernel", 224, 128) + "\n"


if __name__ == "__main__":
    if "--diag" in sys.argv:
        DIAG = True
        sys.argv.remove("--diag")
    c1, c2 = K1Cfg(), K2Cfg()
    for arg in list(sys.argv[1:]):
        if "=" in arg:
            k, v = arg.split("=")
            c = c2 if k.startswith("k2_") else c1
            k = k[3:] if k.startswith("k2_") else k
            setattr(c, k, v if k.endswith("_aux") else int(v))
            sys.argv.remove(arg)
    KROT, NM = c1.krot, c1.nm
    out = sys.argv[1] if len(sys.argv) > 1 else f"cdna_kernels/{NAME}.s"
    open(out, "w").write(build(c1, c2))
    print("wrote", out)
```

```python
import sys

NAME = "gated_mix__linear_attn_block__glu_gated_swiglu__prompt"

AF_OFF = 0
AF_TT = 144 * 1024
AF_SIZE = 64 * AF_TT
KVT_OFF = AF_SIZE
KVT_HEAD = 1152
KVT_SIZE = 32 * KVT_HEAD
G_OFF = KVT_OFF + KVT_SIZE
G_SIZE = 2048 * 8
WS_USED = G_OFF + G_SIZE

STAMP_OFF = 16 << 20
DIAG = False

LOG2E = 0x3FB8AA3B
NLOG2E = 0xBFB8AA3B
EPS = 0x358637BD


class Asm:
    def __init__(self):
        self.L = []
        self.n = 0
        self.vm = []
        self.vm_done = 0
        self.ds = []
        self.ds_done = 0
        self.mfma_w = {}

    def raw(self, s):
        self.L.append(s)

    def i(self, s):
        self.L.append("    " + s)
        self.n += 1

    def label(self, s):
        self.L.append(s + ":")

    def vmem(self, tag, s):
        self.i(s)
        self.vm.append(tag)

    def dsop(self, tag, s):
        self.i(s)
        self.ds.append(tag)

    def _need(self, lst, tags):
        last = -1
        for k, t in enumerate(lst):
            if t in tags:
                last = k
        return last

    def wait(self, vm=(), ds=(), vm_all=False, ds_all=False):
        parts = []
        if vm_all:
            lv = len(self.vm) - 1
        else:
            lv = self._need(self.vm, set(vm)) if vm else -1
        if lv >= self.vm_done:
            n = len(self.vm) - 1 - lv
            assert n <= 63, n
            parts.append(f"vmcnt({n})")
            self.vm_done = lv + 1
        if ds_all:
            ld = len(self.ds) - 1
        else:
            ld = self._need(self.ds, set(ds)) if ds else -1
        if ld >= self.ds_done:
            n = len(self.ds) - 1 - ld
            if n > 15:
                n = 15
                ld = len(self.ds) - 1 - 15
            parts.append(f"lgkmcnt({n})")
            self.ds_done = ld + 1
        if parts:
            self.i("s_waitcnt " + " ".join(parts))

    def nop(self, k):
        while k > 0:
            c = min(k, 16)
            self.L.append(f"    s_nop {c-1}")
            self.n += c
            k -= c

    def mfma(self, d, a, b, c):
        cs = "0" if c is None else f"v[{c}:{c+15}]"
        self.i(f"v_mfma_f32_32x32x16_bf16 v[{d}:{d+15}], {a}, {b}, {cs}")
        self.mfma_w[d] = self.n

    def need_acc(self, d, dist=13):
        if d in self.mfma_w:
            gap = self.n - self.mfma_w[d]
            if gap < dist:
                self.nop(dist - gap)

    def text(self):
        return "\n".join(self.L)


def stamp(a, k, base=16):
    if DIAG:
        a.i(f"s_memrealtime s[{base+2*k}:{base+2*k+1}]")


def stamp_flush(a, kern, nst, ws_ptr_srd, base=16, t0=38):
    if not DIAG:
        return
    a.i("s_waitcnt vmcnt(0)")
    stamp(a, nst - 1, base)
    a.i("s_waitcnt lgkmcnt(0)")
    a.i("v_cmp_eq_u32 vcc, 0, v0")
    a.i("s_and_saveexec_b64 s[94:95], vcc")
    a.i(f"s_cbranch_execz STAMP_skip_{a.n}")
    lbl = f"STAMP_skip_{a.n-1}"
    a.L[-1] = f"    s_cbranch_execz {lbl}"
    a.i(f"s_mov_b32 s{ws_ptr_srd+2}, {STAMP_OFF + 65536}")
    a.i(f"s_lshl_b32 s3, s2, 6")
    a.i(f"s_add_u32 s3, s3, {STAMP_OFF + kern*16384}")
    a.i("v_mov_b32 v2, 0")
    for k in range(nst):
        src = t0 if k == 0 else base + 2 * k
        a.i(f"v_mov_b32 v4, s{src}")
        a.i(f"v_mov_b32 v5, s{src+1}")
        a.i(f"buffer_store_dwordx2 v[4:5], v2, s[{ws_ptr_srd}:{ws_ptr_srd+3}], s3 offen offset:{8*k}")
        a.i("s_nop 1")
    a.label(lbl)


def srd(a, s, ptr, size):
    a.i(f"s_mov_b32 s{s}, s{ptr}")
    a.i(f"s_and_b32 s{s+1}, s{ptr+1}, 0xffff")
    a.i(f"s_mov_b32 s{s+2}, {size}")
    a.i(f"s_mov_b32 s{s+3}, 0x20000")


class K1Cfg:
    store_aux = "sc1"
    fill_per_gap = 40
    ahead = 5
    pf_w2 = True
    krot = 1
    nm = 2
    fill_last = 40
    pf_mode = 1
    pf_round = 1


S_X, S_A, S_B, S_WS, S_GW, S_DBG, S_W2, S_WO = 40, 44, 48, 52, 56, 60, 64, 68
S_XCD, S_IDX, S_WAVE, S_TILE0, S_PITCH, S_COLA, S_COLB, S_UNIT = 4, 5, 6, 7, 8, 9, 10, 11
S_T0, S_T1, S_T2, S_T3 = 12, 13, 14, 15
S_XKF = 72
S_WK = 80
S_M0X = 88
S_M0W = 89
S_ST = 90
S_C1, S_C2, S_C3 = 91, 92, 93
S_MASK = 94
S_TMP = 96
S_P = 97
S_SAVE = 98
S_PR, S_CT = 100, 101
S_XKP = 30
S_LB = 34

V_LANE = 1
V_WA, V_WB, V_XD = 2, 3, 4
V_WT = 5
V_STO = 6
V_ZS = 7
V_XF = 8
V_T = 12
V_XFR = 20
V_E = 44
V_KV = 48
V_ACC = 64

SLOT = 40960
BUF = [0, SLOT, 2 * SLOT, 3 * SLOT]
K1_LDS = 3 * SLOT + 32768


def dma_stage_ops(i, nm):
    slot = BUF[i % 3]
    ops = []
    for seg, (va, sr) in enumerate(((V_WA, S_A), (V_WB, S_B))):
        ops.append([("s", None, f"s_add_u32 m0, s{S_M0W}, {slot + seg*8192}"),
                    ("s", None, "s_nop 0"),
                    ("v", f"S{i}", f"buffer_load_dwordx4 v{va}, s[{sr}:{sr+3}], s{S_WK+i} offen lds")])
    for m in range(nm):
        ops.append([("s", None, f"s_add_u32 m0, s{S_M0X}, {slot + 16384 + m*8192}"),
                    ("s", None, f"s_add_u32 s{S_TMP}, s{S_XKF+i}, {m*65536}"),
                    ("v", f"S{i}", f"buffer_load_dwordx4 v{V_XD}, s[{S_X}:{S_X+3}], s{S_TMP} offen lds")])
    return ops


def dma_tile_ops(lj, tile, buf):
    ops = []
    for m in range(4):
        ops.append([("s", None, f"s_add_u32 m0, s{S_M0X}, {buf + m*8192}"),
                    ("s", None, f"s_add_u32 s{S_TMP}, s{S_XKP+m}, {tile*32768}"),
                    ("v", f"L{lj}", f"buffer_load_dwordx4 v{V_XD}, s[{S_X}:{S_X+3}], s{S_TMP} offen lds")])
    return ops


def emit_group(a, grp):
    for kind, tag, text in grp:
        if kind == "v":
            a.vmem(tag, text)
        else:
            a.i(text)


KROT = 1
NM = 3
S_KR = 39


def k1_prologue(a):
    a.i("s_cmp_ge_u32 s2, 256")
    a.i("s_cbranch_scc1 K1_done")
    if DIAG:
        a.i("s_memrealtime s[38:39]")
    a.i("s_load_dwordx16 s[16:31], s[0:1], 0")
    a.i("s_load_dwordx4 s[32:35], s[0:1], 64")
    a.i("s_load_dwordx2 s[36:37], s[0:1], 80")
    a.i("s_getpc_b64 s[98:99]")
    a.label("K1_pc")
    a.i(f"s_and_b32 s{S_XCD}, s2, 7")
    a.i(f"s_lshr_b32 s{S_IDX}, s2, 3")
    a.i(f"v_and_b32 v{V_LANE}, 63, v0")
    a.i(f"v_lshrrev_b32 v{V_T}, 6, v0")
    a.i(f"s_lshl_b32 s{S_T0}, s{S_IDX}, 11")
    a.i(f"v_readfirstlane_b32 s{S_WAVE}, v{V_T}")
    a.i(f"v_lshlrev_b32 v{V_T+1}, 7, v0")
    a.i(f"v_add_u32 v{V_T+1}, s{S_T0}, v{V_T+1}")
    a.i(f"v_min_u32 v{V_T+1}, CODE_END-K1_pc-4, v{V_T+1}")
    a.i("v_cmp_gt_u32 vcc, 16, v0")
    a.i("s_and_saveexec_b64 s[94:95], vcc")
    a.i("s_cbranch_execz K1_nopf")
    a.i(f"global_load_dword v{V_E}, v{V_T+1}, s[98:99]")
    a.label("K1_nopf")
    a.i("s_mov_b64 exec, s[94:95]")
    a.i(f"s_lshr_b32 s{S_PR}, s{S_WAVE}, 2")
    a.i(f"s_and_b32 s{S_CT}, s{S_WAVE}, 3")
    a.i(f"s_mul_i32 s{S_T0}, s{S_IDX}, 43")
    a.i(f"s_lshr_b32 s{S_T0}, s{S_T0}, 8")
    a.i(f"s_mul_i32 s{S_T1}, s{S_T0}, 6")
    a.i(f"s_sub_u32 s{S_P}, s{S_IDX}, s{S_T1}")
    a.i(f"s_lshl_b32 s{S_T0}, s{S_T0}, 3")
    a.i(f"s_add_u32 s{S_UNIT}, s{S_T0}, s{S_XCD}")
    a.i(f"s_mul_i32 s{S_TILE0}, s{S_P}, 11")
    a.i(f"s_max_u32 s{S_T0}, s{S_P}, 3")
    a.i(f"s_sub_u32 s{S_T0}, s{S_T0}, 3")
    a.i(f"s_sub_u32 s{S_TILE0}, s{S_TILE0}, s{S_T0}")
    a.i(f"s_lshl_b32 s{S_COLA}, s{S_UNIT}, 7")
    a.i(f"s_mov_b32 s{S_COLB}, s{S_COLA}")
    a.i(f"s_sub_u32 s{S_T0}, s{S_UNIT}, 28")
    a.i(f"s_lshl_b32 s{S_T0}, s{S_T0}, 8")
    a.i(f"s_add_u32 s{S_T1}, s{S_T0}, 128")
    a.i(f"s_cmp_ge_u32 s{S_UNIT}, 28")
    a.i(f"s_cselect_b32 s{S_COLA}, s{S_T0}, s{S_COLA}")
    a.i(f"s_cselect_b32 s{S_COLB}, s{S_T1}, s{S_COLB}")
    a.i("s_cselect_b32 s3, 1, 0")
    a.i(f"s_lshl_b32 s{S_T0}, s{S_XCD}, 7")
    a.i(f"s_add_u32 s{S_T1}, s{S_T0}, 2048")
    a.i(f"s_add_u32 s{S_T0}, s{S_T0}, 1024")
    a.i(f"s_sub_u32 s{S_T2}, s{S_IDX}, 24")
    a.i(f"s_lshl_b32 s{S_T3}, s{S_T2}, 3")
    a.i(f"s_cmp_ge_u32 s{S_IDX}, 24")
    a.i(f"s_cselect_b32 s{S_COLA}, s{S_T0}, s{S_COLA}")
    a.i(f"s_cselect_b32 s{S_COLB}, s{S_T1}, s{S_COLB}")
    a.i(f"s_cselect_b32 s{S_P}, s{S_T2}, s{S_P}")
    a.i(f"s_cselect_b32 s{S_TILE0}, s{S_T3}, s{S_TILE0}")
    a.i("s_cselect_b32 s3, 2, s3")
    a.i("s_cmp_eq_u32 s3, 0")
    a.i(f"s_movk_i32 s{S_T0}, 3584")
    a.i(f"s_movk_i32 s{S_T1}, 3072")
    a.i(f"s_cselect_b32 s{S_PITCH}, s{S_T0}, s{S_T1}")
    a.i(f"s_add_u32 s{S_T2}, s{S_TILE0}, s{S_PR}")
    a.i(f"s_lshl_b32 s{S_T2}, s{S_T2}, 15")
    a.i(f"s_lshl_b32 s{S_T3}, s{S_PITCH}, 6")
    if KROT:
        a.i(f"s_add_u32 s{S_C1}, s{S_XCD}, s{S_IDX}")
    else:
        a.i(f"s_mov_b32 s{S_C1}, s{S_XCD}")
    for i in range(8):
        a.i(f"s_add_u32 s{S_T0}, s{S_C1}, {i}")
        a.i(f"s_and_b32 s{S_T0}, s{S_T0}, 7")
        a.i(f"s_lshl_b32 s{S_T1}, s{S_T0}, 7")
        a.i(f"s_add_u32 s{S_XKF+i}, s{S_T1}, s{S_T2}")
        a.i(f"s_mul_i32 s{S_WK+i}, s{S_T0}, s{S_T3}")
    a.i(f"s_lshl_b32 s{S_M0W}, s{S_WAVE}, 10")
    a.i(f"s_lshl_b32 s{S_M0X}, s{S_PR}, 12")
    a.i(f"s_lshl_b32 s{S_T0}, s{S_CT}, 10")
    a.i(f"s_add_u32 s{S_M0X}, s{S_M0X}, s{S_T0}")
    t = V_T
    a.i(f"v_lshrrev_b32 v{t}, 3, v{V_LANE}")
    a.i(f"v_and_b32 v{t+1}, 7, v{V_LANE}")
    a.i(f"v_bfe_u32 v{t+2}, v{V_LANE}, 4, 1")
    a.i(f"v_lshlrev_b32 v{t+2}, 1, v{t+2}")
    a.i(f"v_xor_b32 v{t+3}, v{t+1}, v{t+2}")
    a.i(f"v_xor_b32 v{t+4}, 4, v{t+3}")
    a.i(f"s_lshl_b32 s{S_T0}, s{S_WAVE}, 3")
    a.i(f"v_add_u32 v{t+5}, s{S_T0}, v{t}")
    a.i(f"v_mul_lo_u32 v{t+5}, v{t+5}, s{S_PITCH}")
    a.i(f"v_lshl_add_u32 v{V_WA}, v{t+3}, 4, v{t+5}")
    a.i(f"v_add_u32 v{V_WA}, s{S_COLA}, v{V_WA}")
    a.i(f"v_lshl_add_u32 v{V_WB}, v{t+4}, 4, v{t+5}")
    a.i(f"v_add_u32 v{V_WB}, s{S_COLB}, v{V_WB}")
    a.i(f"s_lshl_b32 s{S_T0}, s{S_CT}, 3")
    a.i(f"v_add_u32 v{t+5}, s{S_T0}, v{t}")
    a.i(f"v_bfe_u32 v{t+6}, v{t+5}, 1, 3")
    a.i(f"v_xor_b32 v{t+6}, v{t+6}, v{t+1}")
    a.i(f"v_lshlrev_b32 v{t+5}, 10, v{t+5}")
    a.i(f"v_lshl_add_u32 v{V_XD}, v{t+6}, 4, v{t+5}")
    a.i("s_waitcnt lgkmcnt(0)")
    a.i("s_cmp_eq_u32 s3, 0")
    a.i(f"s_cselect_b32 s{S_A}, s24, s18")
    a.i(f"s_cselect_b32 s{S_A+1}, s25, s19")
    a.i(f"s_cselect_b32 s{S_B}, s26, s18")
    a.i(f"s_cselect_b32 s{S_B+1}, s27, s19")
    a.i(f"s_lshl_b32 s{S_A+2}, s{S_PITCH}, 9")
    a.i(f"s_and_b32 s{S_A+1}, s{S_A+1}, 0xffff")
    a.i(f"s_and_b32 s{S_B+1}, s{S_B+1}, 0xffff")
    a.i(f"s_mov_b32 s{S_B+2}, s{S_A+2}")
    a.i(f"s_mov_b32 s{S_A+3}, 0x20000")
    a.i(f"s_mov_b32 s{S_B+3}, 0x20000")
    srd(a, S_X, 16, 2048 * 1024)
    for i in range(3):
        ops = dma_stage_ops(i, 3)
        for grp in ops[:-1]:
            emit_group(a, grp)
        if NM == 3:
            a.i("s_cmp_eq_u32 s3, 2")
            a.i(f"s_cbranch_scc1 K1_skip{i}")
            emit_group(a, ops[-1])
            a.label(f"K1_skip{i}")
    srd(a, S_WS, 36, WS_USED)
    srd(a, S_GW, 30, 1024)
    srd(a, S_DBG, 34, 256)
    srd(a, S_W2, 28, 1792 * 1024)
    srd(a, S_WO, 20, 512 * 1024)
    a.i(f"s_lshl_b32 s{S_T2}, s{S_TILE0}, 15")
    for m in range(4):
        a.i(f"s_add_u32 s{S_T0}, s{S_C1}, s{S_PR}")
        a.i(f"s_add_u32 s{S_T0}, s{S_T0}, {2*m}")
        a.i(f"s_and_b32 s{S_T0}, s{S_T0}, 7")
        a.i(f"s_lshl_b32 s{S_T0}, s{S_T0}, 7")
        a.i(f"s_add_u32 s{S_XKP+m}, s{S_T0}, s{S_T2}")
    a.i(f"s_mov_b32 s{S_C1}, {LOG2E:#x}")
    a.i(f"s_mov_b32 s{S_C2}, {NLOG2E:#x}")
    a.i(f"s_mov_b32 s{S_C3}, {EPS:#x}")
    a.i(f"v_lshlrev_b32 v{V_STO}, 4, v{V_LANE}")
    a.i(f"v_and_b32 v{t}, 31, v{V_LANE}")
    a.i(f"v_lshrrev_b32 v{t+1}, 5, v{V_LANE}")
    a.i(f"v_bfe_u32 v{t+2}, v{t}, 1, 3")
    a.i(f"v_xor_b32 v{t+2}, v{t+2}, v{t+1}")
    a.i(f"v_lshlrev_b32 v{t}, 7, v{t}")
    a.i(f"s_lshl_b32 s{S_T0}, s{S_PR}, 12")
    a.i(f"v_add_u32 v{t}, s{S_T0}, v{t}")
    for s in range(4):
        a.i(f"v_xor_b32 v{t+3}, {2*s}, v{t+2}")
        a.i(f"v_lshl_add_u32 v{V_XF+s}, v{t+3}, 4, v{t}")
    a.i(f"v_bfe_u32 v{t}, v{V_LANE}, 4, 1")
    a.i(f"v_lshrrev_b32 v{t+1}, 5, v{V_LANE}")
    a.i(f"v_bfe_u32 v{t+2}, v{V_LANE}, 2, 2")
    a.i(f"v_bfe_u32 v{t+3}, v{V_LANE}, 1, 1")
    a.i(f"s_lshl_b32 s{S_T0}, s{S_CT}, 1")
    a.i(f"v_add_u32 v{t+3}, s{S_T0}, v{t+3}")
    a.i(f"v_bfe_u32 v{t+4}, v{V_LANE}, 3, 1")
    a.i(f"v_lshlrev_b32 v{t+4}, 1, v{t+4}")
    a.i(f"v_lshl_add_u32 v{t+4}, v{t}, 2, v{t+4}")
    a.i(f"v_xor_b32 v{t+3}, v{t+3}, v{t+4}")
    a.i(f"v_lshlrev_b32 v{t+5}, 13, v{t}")
    a.i(f"v_lshl_add_u32 v{t+5}, v{t+1}, 10, v{t+5}")
    a.i(f"v_lshl_add_u32 v{t+5}, v{t+2}, 7, v{t+5}")
    a.i(f"v_lshl_add_u32 v{t+5}, v{t+3}, 4, v{t+5}")
    a.i(f"v_and_b32 v{t+6}, 1, v{V_LANE}")
    a.i(f"v_lshl_add_u32 v{V_WT}, v{t+6}, 3, v{t+5}")
    cur0, cur1 = BUF[1], BUF[1] + 4096
    b0 = [BUF[3], BUF[0], BUF[3], BUF[0]]
    b1 = [BUF[2], BUF[1], BUF[2], BUF[1]]
    a.i(f"s_cmp_eq_u32 s{S_PR}, 0")
    for r in range(4):
        d0 = (b0[r] - cur0) & 0xffffffff
        d1 = (b1[r] - cur1) & 0xffffffff
        cur0, cur1 = b0[r], b1[r]
        a.i(f"s_mov_b32 s{S_T0}, {d0:#x}")
        a.i(f"s_mov_b32 s{S_T1}, {d1:#x}")
        a.i(f"s_cselect_b32 s{S_LB+r}, s{S_T0}, s{S_T1}")


def mk_ops(chk_blks):
    ops = []

    def V(cost, s, chk=False):
        def f(a, s=s, chk=chk):
            if chk:
                for b in chk_blks:
                    a.need_acc(b)
            a.i(s)
        ops.append((cost, f))
    return ops, V


def epi_mlp(cfg, acc, m):
    ops, V = mk_ops([acc])
    for r in range(8):
        V(4, f"v_mul_f32 v{acc+8+r}, v{acc+r}, v{acc+8+r}", chk=True)
    for r in range(8):
        V(4, f"v_mul_f32 v{acc+r}, s{S_C2}, v{acc+r}")
    for r in range(8):
        V(8, f"v_exp_f32 v{acc+r}, v{acc+r}")
    for r in range(8):
        V(4, f"v_add_f32 v{acc+r}, 1.0, v{acc+r}")
    for r in range(8):
        V(8, f"v_rcp_f32 v{acc+r}, v{acc+r}")
    for r in range(8):
        V(4, f"v_mul_f32 v{acc+8+r}, v{acc+r}, v{acc+8+r}")
    for j in range(4):
        V(4, f"v_cvt_pk_bf16_f32 v{acc+j}, v{acc+8+2*j}, v{acc+9+2*j}")

    def st(a):
        a.i(f"s_add_u32 s{S_TMP}, s{S_ST}, {2*m*AF_TT}")
        a.vmem("st", f"buffer_store_dwordx4 v[{acc}:{acc+3}], v{V_STO}, s[{S_WS}:{S_WS+3}], s{S_TMP} offen {cfg.store_aux}")
        a.nop(1)
    ops.append((12, st))
    return ops


def phi_ops(V, regs, tmp):
    for k, r in enumerate(regs):
        V(4, f"v_mul_f32 v{tmp+k}, s{S_C1}, v{r}", chk=True)
    for k, r in enumerate(regs):
        V(8, f"v_exp_f32_e64 v{tmp+k}, v{tmp+k} clamp")
    for k, r in enumerate(regs):
        V(4, f"v_max_f32 v{r}, 0, v{r}")
    for k, r in enumerate(regs):
        V(4, f"v_add_f32 v{r}, v{r}, v{tmp+k}")
    for k, r in enumerate(regs):
        V(4, f"v_add_f32 v{r}, s{S_C3}, v{r}")


def epi_q(cfg, acc, m):
    ops, V = mk_ops([acc])
    for half in range(2):
        regs = [acc + 8 * half + r for r in range(8)]
        phi_ops(V, regs, V_T)
        o = acc + 8 * half
        for j in range(4):
            V(4, f"v_cvt_pk_bf16_f32 v{o+j}, v{regs[2*j]}, v{regs[2*j+1]}")

        def st(a, o=o, half=half):
            a.i(f"s_add_u32 s{S_TMP}, s{S_ST}, {2*m*AF_TT + half*4096}")
            a.vmem("st", f"buffer_store_dwordx4 v[{o}:{o+3}], v{V_STO}, s[{S_WS}:{S_WS+3}], s{S_TMP} offen {cfg.store_aux}")
            a.nop(1)
        ops.append((12, st))
    return ops


def epi_kv(cfg, acc0, acc1, first):
    ops, V = mk_ops([acc0, acc1])
    for r in range(16):
        V(4, f"v_permlane16_swap_b32 v{acc0+r}, v{acc1+r}", chk=True)
    for half in range(2):
        phi_ops(V, [acc0 + 8 * half + r for r in range(8)], V_T)
    for j in range(8):
        V(4, f"v_cvt_pk_bf16_f32 v{acc1+j}, v{acc1+2*j}, v{acc1+2*j+1}")
    for r in range(16):
        if first and r == 0:
            V(4, f"v_mov_b32 v{V_ZS}, v{acc0}")
        else:
            V(4, f"v_add_f32 v{V_ZS}, v{V_ZS}, v{acc0+r}")
    for j in range(8):
        V(4, f"v_cvt_pk_bf16_f32 v{acc0+j}, v{acc0+2*j}, v{acc0+2*j+1}")

    def mm(a):
        a.nop(2)
        a.mfma(V_KV, f"v[{acc0}:{acc0+3}]", f"v[{acc1}:{acc1+3}]", None if first else V_KV)
        a.mfma(V_KV, f"v[{acc0+4}:{acc0+7}]", f"v[{acc1+4}:{acc1+7}]", V_KV)
    ops.append((24, mm))
    return ops


class K1State:
    pass


def k1_first_pass(a, cfg, kv):
    nm = 2 if kv else NM
    nl = 4 if kv else 11 - 2 * NM
    n1 = 2 * nm
    acc_blk = [V_ACC + 16 * k for k in range(4)]
    lbuf = [BUF[3], BUF[2], BUF[0], BUF[1], BUF[3], BUF[2], BUF[0]]
    a.vm, a.vm_done, a.ds, a.ds_done, a.mfma_w = ["pf"], 0, [], 0, {}
    for i in range(3):
        for grp in dma_stage_ops(i, nm):
            a.vm.append(f"S{i}")

    def opnds(q, xf):
        w = f"a[{4*q}:{4*q+3}]"
        x = f"v[{xf}:{xf+3}]"
        return (x, w) if kv else (w, x)

    def fp_reads(n):
        i, s = divmod(n, 4)
        L = []
        for rd in range(2):
            L.append((f"w{n}", f"ds_read_b64_tr_b16 a[{4*n+2*rd}:{4*n+2*rd+1}], v{V_WT} offset:{s*2048 + rd*512}"))
        for m in range(nm):
            xf = V_XFR + (n % 2) * 12 + 4 * m
            L.append((f"x{n}_{m}", f"ds_read_b128 v[{xf}:{xf+3}], v{V_XF+s} offset:{16384 + m*8192}"))
        return L

    st = K1State()
    st.nm, st.nl, st.n1, st.acc_blk, st.lbuf, st.opnds, st.kv = nm, nl, n1, acc_blk, lbuf, opnds, kv
    stamp(a, 1)
    a.wait(vm=["S0"])
    a.i("s_barrier")
    stamp(a, 2)
    for tag, text in fp_reads(0):
        a.dsop(tag, text)
    dma_q = []
    for n in range(32):
        i, s = divmod(n, 4)
        pre = []
        if s == 3:
            a.wait(ds_all=True)
            tgs = [f"S{i+1}"] if i < 7 else ["L0", "L1"]
            for tg in tgs:
                assert not any(op[1] == tg for g in dma_q for op in g), tg
                assert tg in a.vm
            a.wait(vm=tgs)
            a.i("s_barrier")
            if kv and i == 2:
                a.i(f"s_or_b32 s{S_T0}, s{S_P}, s{S_PR}")
                a.i(f"s_cmp_lg_u32 s{S_T0}, 0")
                a.i("s_cbranch_scc1 K1_kv_noflag")
                a.i("s_mov_b64 exec, 1")
                a.i(f"v_mov_b32 v{V_T}, 1")
                a.i(f"v_mov_b32 v{V_T+1}, 0")
                a.i(f"buffer_store_dword v{V_T}, v{V_T+1}, s[{S_DBG}:{S_DBG+3}], s{S_UNIT} offen sc1")
                a.i("s_mov_b64 exec, -1")
                a.label("K1_kv_noflag")
            if i + 3 <= 7:
                dma_q += dma_stage_ops(i + 3, nm)
            if i == 4:
                dma_q += dma_tile_ops(0, n1, lbuf[0])
            if i >= 5:
                dma_q += dma_tile_ops(i - 4, n1 + i - 4, lbuf[i - 4])
            if i < 7:
                d = (BUF[(i + 1) % 3] - BUF[i % 3]) & 0xffffffff
                pre = [f"v_add_u32 v{r}, {d:#x}, v{r}" for r in (V_WT, V_XF, V_XF + 1, V_XF + 2, V_XF + 3)]
            else:
                pre = [f"v_add_u32 v{r}, s{S_LB}, v{r}" for r in (V_XF, V_XF + 1, V_XF + 2, V_XF + 3)]
        for p in pre:
            a.i(p)
        if n < 31:
            fill = fp_reads(n + 1)
        else:
            fill = [lp_read(0, q) for q in range(3)]
        for m in range(nm):
            a.wait(ds=[f"w{n}", f"x{n}_{m}"])
            A, B = opnds(n, V_XFR + (n % 2) * 12 + 4 * m)
            a.mfma(acc_blk[m], A, B, None if n == 0 else acc_blk[m])
            k = 0
            while fill and k < 2:
                tag, text = fill.pop(0)
                a.dsop(tag, text)
                k += 1
            if dma_q:
                emit_group(a, dma_q.pop(0))
        while fill:
            tag, text = fill.pop(0)
            a.dsop(tag, text)
    st.dma_q = dma_q
    stamp(a, 3)
    return st


RING = 6


def lp_read(rd, q):
    i, s = divmod(q, 4)
    xf = V_XFR + 4 * ((rd * 32 + q) % RING)
    return (f"l{rd}_{q}", f"ds_read_b128 v[{xf}:{xf+3}], v{V_XF+s} offset:{i*4096}")


def k1_later(a, cfg, st, typ):
    nm, nl, n1, acc_blk, lbuf, opnds = st.nm, st.nl, st.n1, st.acc_blk, st.lbuf, st.opnds
    dma_q = list(st.dma_q)
    AH = cfg.ahead
    if typ == "mlp":
        a.i(f"s_lshl_b32 s{S_T0}, s{S_UNIT}, 2")
        a.i(f"s_add_u32 s{S_T0}, s{S_T0}, s{S_CT}")
    elif typ == "q":
        a.i(f"s_lshl_b32 s{S_T0}, s{S_UNIT}, 3")
        a.i(f"s_add_u32 s{S_T0}, s{S_T0}, s{S_CT}")
        a.i(f"s_sub_u32 s{S_T0}, s{S_T0}, {28*8-112}")
    if typ != "kv":
        a.i(f"s_lshl_b32 s{S_T0}, s{S_T0}, 10")
        a.i(f"s_add_u32 s{S_T1}, s{S_TILE0}, s{S_PR}")
        a.i(f"s_mul_i32 s{S_T1}, s{S_T1}, {AF_TT}")
        a.i(f"s_add_u32 s{S_ST}, s{S_T0}, s{S_T1}")
        if AF_OFF:
            a.i(f"s_add_u32 s{S_ST}, s{S_ST}, {AF_OFF}")
    for q in range(3, AH):
        tag, text = lp_read(0, q)
        a.dsop(tag, text)
    epi = []
    free_blk = acc_blk[nm:]

    def push_epi(blks, m, first=False):
        if typ == "mlp":
            ops = epi_mlp(cfg, blks[0], m)
        elif typ == "q":
            ops = epi_q(cfg, blks[0], m)
        else:
            ops = epi_kv(cfg, blks[0], blks[1], first)

        def rel(a, blks=blks):
            free_blk.extend(blks)
        ops.append((0, rel))
        epi.extend(ops)

    if typ == "kv":
        push_epi([acc_blk[0], acc_blk[1]], 0, first=True)
    else:
        for m in range(nm):
            push_epi([acc_blk[m]], m)
    extra = []
    if cfg.pf_w2 and typ != "kv":
        extra = pf_w2_ops(cfg)
    nrounds = (nl + 1) // 2
    pend = []

    def drain():
        while epi:
            c, f = epi.pop(0)
            f(a)

    for rd in range(nrounds):
        last_odd = (2 * rd + 1 >= nl)
        if last_odd:
            snap = (list(a.vm), a.vm_done, list(a.ds), a.ds_done, dict(a.mfma_w), list(epi), list(free_blk), a.n)
            a.i(f"s_cmp_eq_u32 s{S_PR}, 0")
            a.i(f"s_cbranch_scc1 K1_{typ}_last")
            stamp(a, 4)
            drain()
            stamp(a, 5)
            stamp_flush(a, 0, 7, S_WS)
            a.i("s_endpgm")
            a.label(f"K1_{typ}_last")
            a.vm, a.vm_done, a.ds, a.ds_done, a.mfma_w = snap[0], snap[1], snap[2], snap[3], snap[4]
            epi[:] = snap[5]
            free_blk[:] = snap[6]
            a.mfma_w = {k: a.n - (snap[7] - v) for k, v in snap[4].items()}
        while not free_blk:
            c, f = epi.pop(0)
            f(a)
        blk = free_blk.pop(0)
        has_next = rd + 1 < nrounds
        for q in range(32):
            if q == 32 - AH and has_next:
                tgs = [f"L{j}" for j in (2 * rd + 2, 2 * rd + 3) if j < nl]
                for tg in tgs:
                    assert not any(op[1] == tg for g in dma_q for op in g), tg
                    assert tg in a.vm
                a.wait(vm=tgs, ds_all=True)
                a.i("s_barrier")
                for nxt in (2 * rd + 4, 2 * rd + 5):
                    if nxt < nl:
                        dma_q += dma_tile_ops(nxt, n1 + nxt, lbuf[nxt])
                for r in range(4):
                    a.i(f"v_add_u32 v{V_XF+r}, s{S_LB+rd+1}, v{V_XF+r}")
            a.wait(ds=[f"l{rd}_{q}"])
            A, B = opnds(q, V_XFR + 4 * ((rd * 32 + q) % RING))
            a.mfma(blk, A, B, None if q == 0 else blk)
            if q + AH < 32:
                tag, text = lp_read(rd, q + AH)
                a.dsop(tag, text)
            elif has_next:
                tag, text = lp_read(rd + 1, q + AH - 32)
                a.dsop(tag, text)
            budget = cfg.fill_last if last_odd else cfg.fill_per_gap
            if dma_q:
                emit_group(a, dma_q.pop(0))
                budget -= 16
            elif extra and rd == cfg.pf_round and q % 2 == 0:
                emit_group(a, extra.pop(0))
                budget -= 16
            while epi and budget > 0:
                c, f = epi[0]
                if c > budget and budget < 16:
                    break
                epi.pop(0)
                f(a)
                budget -= c
        pend.append(blk)
        if typ == "kv":
            if len(pend) == 2:
                push_epi(pend, 0)
                pend = []
        else:
            push_epi(pend, nm + rd)
            pend = []
    assert not dma_q and not extra
    stamp(a, 4)
    if typ == "kv":
        k1_g_loads(a)
    drain()
    if typ == "kv":
        k1_kv_tail(a)
        k1_g_compute(a)
    stamp(a, 5)
    stamp_flush(a, 0, 7, S_WS)
    a.i("s_endpgm")


def pf_w2_ops(cfg):
    ops = []
    if cfg.pf_mode == 0:
        ops.append([("s", None, f"s_lshl_b32 s{S_T0}, s2, 3"),
                    ("s", None, f"s_add_u32 s{S_T0}, s{S_T0}, s{S_WAVE}"),
                    ("s", None, f"s_lshl_b32 s{S_T0}, s{S_T0}, 11"),
                    ("s", None, f"v_lshlrev_b32 v{V_E+1}, 7, v{V_LANE}"),
                    ("s", None, f"s_sub_u32 s{S_T1}, s{S_T0}, {1792*1024}"),
                    ("s", None, "s_mov_b64 exec, 0xffff"),
                    ("v", "pf", f"buffer_load_dword v{V_E}, v{V_E+1}, s[{S_W2}:{S_W2+3}], s{S_T0} offen"),
                    ("v", "pf", f"buffer_load_dword v{V_E}, v{V_E+1}, s[{S_WO}:{S_WO+3}], s{S_T1} offen"),
                    ("s", None, "s_mov_b64 exec, -1")])
    else:
        ops.append([("s", None, f"s_lshl_b32 s{S_T0}, s{S_IDX}, 3"),
                    ("s", None, f"s_add_u32 s{S_T0}, s{S_T0}, s{S_WAVE}"),
                    ("s", None, f"s_mul_i32 s{S_T0}, s{S_T0}, {12*1024}"),
                    ("s", None, f"s_and_b32 s{S_T1}, s{S_XCD}, 1"),
                    ("s", None, f"s_lshl_b32 s{S_T1}, s{S_T1}, 9"),
                    ("s", None, f"s_add_u32 s{S_T0}, s{S_T0}, s{S_T1}"),
                    ("s", None, f"v_lshrrev_b32 v{V_E+1}, 2, v{V_LANE}"),
                    ("s", None, f"v_lshlrev_b32 v{V_E+1}, 10, v{V_E+1}"),
                    ("s", None, f"v_and_b32 v{V_E+2}, 3, v{V_LANE}"),
                    ("s", None, f"v_lshl_add_u32 v{V_E+1}, v{V_E+2}, 7, v{V_E+1}"),
                    ("s", None, f"v_add_u32 v{V_E+1}, s{S_T0}, v{V_E+1}"),
                    ("s", None, f"v_subrev_u32 v{V_E+2}, {1792*1024}, v{V_E+1}"),
                    ("s", None, "s_mov_b32 exec_hi, 0xffff"),
                    ("v", "pf", f"buffer_load_dword v{V_E}, v{V_E+1}, s[{S_W2}:{S_W2+3}], 0 offen"),
                    ("v", "pf", f"buffer_load_dword v{V_E}, v{V_E+2}, s[{S_WO}:{S_WO+3}], 0 offen"),
                    ("s", None, "s_mov_b64 exec, -1")])
    return ops


def k1_kv_head(a):
    a.i(f"s_lshl_b32 s{S_T0}, s{S_XCD}, 2")
    a.i(f"s_add_u32 s{S_T0}, s{S_T0}, s{S_CT}")
    a.i(f"s_lshl_b32 s{S_UNIT}, s{S_T0}, 2")
    a.i(f"s_mul_i32 s{S_ST}, s{S_T0}, {KVT_HEAD}")
    a.i(f"s_add_u32 s{S_ST}, s{S_ST}, {KVT_OFF}")
    a.i(f"s_or_b32 s{S_T0}, s{S_P}, s{S_PR}")
    a.i(f"s_cmp_lg_u32 s{S_T0}, 0")
    a.i("s_cbranch_scc1 K1_kv_nozero")
    a.i(f"v_lshlrev_b32 v{V_T}, 3, v{V_LANE}")
    for k in range(6):
        a.i(f"v_mov_b32 v{V_KV+k}, 0")
    a.i(f"buffer_atomic_swap_x2 v[{V_KV}:{V_KV+1}], v{V_T}, s[{S_WS}:{S_WS+3}], s{S_ST} offen sc0")
    a.i(f"buffer_atomic_swap_x2 v[{V_KV+2}:{V_KV+3}], v{V_T}, s[{S_WS}:{S_WS+3}], s{S_ST} offen offset:512 sc0")
    a.i("s_mov_b64 exec, 0xffff")
    a.i(f"buffer_atomic_swap_x2 v[{V_KV+4}:{V_KV+5}], v{V_T}, s[{S_WS}:{S_WS+3}], s{S_ST} offen offset:1024 sc0")
    a.i("s_mov_b64 exec, -1")
    a.label("K1_kv_nozero")


def k1_kv_tail(a):
    t = V_T
    B = V_ACC
    a.need_acc(V_KV, 16)
    for r in range(8):
        a.i(f"v_permlane16_swap_b32 v{V_KV+8+r}, v{t+r}")
    a.i(f"v_mov_b32 v{B}, v{V_ZS}")
    a.nop(2)
    a.i(f"v_permlane16_swap_b32 v{B}, v{V_ZS}")
    a.nop(1)
    a.i(f"v_add_f32 v{V_ZS}, v{V_ZS}, v{B}")
    a.i(f"v_mov_b32 v{B}, v{V_ZS}")
    a.nop(2)
    a.i(f"v_permlane32_swap_b32 v{B}, v{V_ZS}")
    a.nop(1)
    a.i(f"v_add_f32 v{V_ZS}, v{V_ZS}, v{B}")
    for r in range(8):
        a.i(f"v_add_f32 v{V_KV+r}, v{V_KV+r}, v{t+r}")
    a.i(f"s_mul_i32 s{S_T1}, s{S_WAVE}, {KVT_HEAD}")
    a.i(f"s_add_u32 s{S_T1}, s{S_T1}, {BUF[3]}")
    a.i(f"v_and_b32 v{B}, 15, v{V_LANE}")
    a.i(f"v_lshrrev_b32 v{B+1}, 5, v{V_LANE}")
    a.i(f"v_lshl_add_u32 v{B+1}, v{B+1}, 4, v{B}")
    a.i(f"v_lshlrev_b32 v{B+1}, 5, v{B+1}")
    a.i(f"v_add_u32 v{B+1}, s{S_T1}, v{B+1}")
    a.i(f"v_and_b32 v{B+2}, 3, v{B}")
    a.i(f"v_lshrrev_b32 v{B+3}, 3, v{B}")
    a.i(f"v_lshl_add_u32 v{B+2}, v{B+3}, 2, v{B+2}")
    a.i(f"v_bfe_u32 v{B+3}, v{B}, 2, 1")
    a.i(f"v_lshl_add_u32 v{B+2}, v{B+3}, 3, v{B+2}")
    a.i(f"v_lshlrev_b32 v{B+2}, 2, v{B+2}")
    a.i(f"v_add_u32 v{B+2}, s{S_T1}, v{B+2}")
    a.i(f"v_lshlrev_b32 v{B+4}, 2, v{V_LANE}")
    a.i(f"v_add_u32 v{B+3}, s{S_T1}, v{B+4}")
    a.i(f"s_mov_b32 s{S_MASK}, 0xffff")
    a.i(f"s_mov_b32 s{S_MASK+1}, 0xffff")
    a.i(f"s_mov_b64 exec, s[{S_MASK}:{S_MASK+1}]")
    a.i(f"ds_write_b128 v{B+1}, v[{V_KV}:{V_KV+3}]")
    a.i(f"ds_write_b128 v{B+1}, v[{V_KV+4}:{V_KV+7}] offset:16")
    a.i("s_mov_b64 exec, 0xffff")
    a.i(f"ds_write_b32 v{B+2}, v{V_ZS} offset:1024")
    a.i("s_mov_b64 exec, -1")
    a.i("s_waitcnt lgkmcnt(0)")
    for k in range(5):
        a.i(f"ds_read_b32 v{B+8+k}, v{B+3} offset:{256*k}")
    a.label("K1_kv_poll")
    a.i("s_mov_b64 exec, 1")
    a.i(f"v_mov_b32 v{t+1}, 0")
    a.i(f"buffer_load_dword v{t}, v{t+1}, s[{S_DBG}:{S_DBG+3}], s{S_UNIT} offen sc1")
    a.i("s_waitcnt vmcnt(0)")
    a.i(f"v_readfirstlane_b32 s{S_T0}, v{t}")
    a.i("s_mov_b64 exec, -1")
    a.i(f"s_cmp_lg_u32 s{S_T0}, 0")
    a.i("s_cbranch_scc1 K1_kv_go")
    a.i("s_sleep 8")
    a.i("s_branch K1_kv_poll")
    a.label("K1_kv_go")
    a.vm_done = len(a.vm)
    a.i("s_waitcnt lgkmcnt(0)")
    for k in range(5):
        if k == 4:
            a.i("s_mov_b64 exec, 0xffff")
        a.vmem("at", f"buffer_atomic_add_f32 v{B+8+k}, v{B+4}, s[{S_WS}:{S_WS+3}], s{S_ST} offen offset:{256*k}")
    a.i("s_mov_b64 exec, -1")


def k1_g_loads(a):
    a.i(f"s_lshl_b32 s{S_T0}, s{S_P}, 8")
    a.i(f"s_lshl_b32 s{S_T1}, s{S_XCD}, 5")
    a.i(f"s_add_u32 s{S_T0}, s{S_T0}, s{S_T1}")
    a.i(f"s_lshl_b32 s{S_T1}, s{S_WAVE}, 2")
    a.i(f"s_add_u32 s{S_T2}, s{S_T0}, s{S_T1}")
    a.i(f"s_lshl_b32 s{S_T0}, s{S_T2}, 10")
    e = V_XFR
    a.nop(4)
    a.vmem("g", f"buffer_load_dwordx4 v[{e}:{e+3}], v{V_STO}, s[{S_GW}:{S_GW+3}], 0 offen")
    for k in range(4):
        a.vmem("g", f"buffer_load_dwordx4 v[{e+4+4*k}:{e+7+4*k}], v{V_STO}, s[{S_X}:{S_X+3}], s{S_T0} offen offset:{1024*k}")


def k1_g_compute(a):
    e = V_XFR
    a.wait(vm=["g"])
    t = V_ACC + 16
    R = [V_ACC + 24 + k for k in range(4)]
    for j in range(4):
        for k in range(4):
            a.i(f"v_dot2_f32_bf16 v{R[k]}, v{e+4+4*k+j}, v{e+j}, " + ("0" if j == 0 else f"v{R[k]}"))
    a.nop(4)
    for mod in ("row_shr:1", "row_shr:2", "row_shr:4", "row_shr:8"):
        for r in R:
            a.i(f"v_add_f32_dpp v{r}, v{r}, v{r} {mod} row_mask:0xf bank_mask:0xf bound_ctrl:0")
    for r in R:
        a.i(f"v_add_f32_dpp v{r}, v{r}, v{r} row_bcast:15 row_mask:0xa bank_mask:0xf")
    for r in R:
        a.i(f"v_add_f32_dpp v{r}, v{r}, v{r} row_bcast:31 row_mask:0xc bank_mask:0xf")

    def rnd(regs):
        for r in regs:
            a.i(f"v_cvt_pk_bf16_f32 v{r}, v{r}, v{r}")
        for r in regs:
            a.i(f"v_and_b32 v{r}, 0xffff0000, v{r}")
    rnd(R)
    for r in R:
        a.i(f"v_mul_f32 v{r}, s{S_C2}, v{r}")
    for r in R:
        a.i(f"v_exp_f32 v{r}, v{r}")
    for r in R:
        a.i(f"v_add_f32 v{r}, 1.0, v{r}")
    for r in R:
        a.i(f"v_rcp_f32 v{r}, v{r}")
    a.nop(1)
    rnd(R)
    o = V_ACC + 32
    O = [o + 2 * k + 1 for k in range(4)]
    for k in range(4):
        a.i(f"v_sub_f32 v{O[k]}, 1.0, v{R[k]}")
    rnd(O)
    for k in range(4):
        a.i(f"v_max_f32 v{O[k]}, 0x30800000, v{O[k]}")
    for k in range(4):
        a.i(f"v_rcp_f32 v{t+k}, v{O[k]}")
    a.nop(1)
    for k in range(4):
        a.i(f"v_fma_f32 v{t+4+k}, -v{O[k]}, v{t+k}, 1.0")
    for k in range(4):
        a.i(f"v_fma_f32 v{t+k}, v{t+4+k}, v{t+k}, v{t+k}")
    for k in range(4):
        a.i(f"v_mul_f32 v{o+2*k}, v{R[k]}, v{t+k}")
    a.i(f"s_lshl_b32 s{S_T0}, s{S_T2}, 3")
    a.i(f"s_add_u32 s{S_T0}, s{S_T0}, {G_OFF}")
    a.i(f"v_mov_b32 v{t}, 0")
    a.i(f"s_mov_b32 s{S_SAVE}, 0")
    a.i(f"s_mov_b32 s{S_SAVE+1}, 0x80000000")
    a.i(f"s_mov_b64 exec, s[{S_SAVE}:{S_SAVE+1}]")
    a.vmem("gst", f"buffer_store_dwordx4 v[{o}:{o+3}], v{t}, s[{S_WS}:{S_WS+3}], s{S_T0} offen")
    a.vmem("gst", f"buffer_store_dwordx4 v[{o+4}:{o+7}], v{t}, s[{S_WS}:{S_WS+3}], s{S_T0} offen offset:16")
    a.i("s_mov_b64 exec, -1")


def gen_k1(cfg):
    import copy
    a = Asm()
    a.raw(".globl k1_kernel\n.p2align 8\n.type k1_kernel,@function\nk1_kernel:")
    k1_prologue(a)
    a.i("s_cmp_eq_u32 s3, 2")
    a.i("s_cbranch_scc1 K1_kv")
    st = k1_first_pass(a, cfg, False)
    snap = (list(a.vm), a.vm_done, list(a.ds), a.ds_done, dict(a.mfma_w), a.n)
    a.i("s_cmp_eq_u32 s3, 1")
    a.i("s_cbranch_scc1 K1_q")
    k1_later(a, cfg, st, "mlp")
    a.raw(".p2align 6")
    a.label("K1_q")
    a.vm, a.vm_done, a.ds, a.ds_done = list(snap[0]), snap[1], list(snap[2]), snap[3]
    a.mfma_w = {k: a.n - (snap[5] - v) for k, v in snap[4].items()}
    k1_later(a, cfg, st, "q")
    a.raw(".p2align 6")
    a.label("K1_kv")
    k1_kv_head(a)
    st = k1_first_pass(a, cfg, True)
    k1_later(a, cfg, st, "kv")
    a.label("K1_done")
    a.i("s_endpgm")
    return a.text()


class K2Cfg:
    depth = 6
    wdepth = 8
    mode = 1
    nw = 4
    sep = 1


def gen_k2(cfg):
    a = Asm()
    D, DW, NW = cfg.depth, cfg.wdepth, cfg.nw
    NH, NA = 112 // NW, 32 // NW
    C_WS, C_W2, C_WO, C_OUT = 40, 44, 48, 52
    C_W, C_RB, C_CB, C_M0, T0, T1, T2, T3 = 4, 5, 6, 7, 8, 9, 10, 11
    S_HB, S_WB, S_QB, S_OB, S_KVB, C_EPS = 12, 13, 14, 15, 56, 57
    V_L = 1
    V_A0, V_A1, V_WD, V_TR0, V_TR1, V_KVA = 2, 3, 4, 5, 6, 7
    VT = 8
    V_G = 16
    V_RC = 20
    V_KVF = 24
    V_WF = 32
    V_OF = 48
    P = 56
    ACC = 64
    A_ND = 64
    assert 8 * D <= 64
    a.raw(".globl k2_kernel\n.p2align 8\n.type k2_kernel,@function\nk2_kernel:")
    a.i("s_cmp_ge_u32 s2, 256")
    a.i("s_cbranch_scc1 K2_done")
    if DIAG:
        a.i("s_memrealtime s[38:39]")
    a.i("s_load_dwordx2 s[16:17], s[0:1], 16")
    a.i("s_load_dwordx2 s[18:19], s[0:1], 48")
    a.i("s_load_dwordx2 s[20:21], s[0:1], 64")
    a.i("s_load_dwordx2 s[22:23], s[0:1], 80")
    a.i("s_getpc_b64 s[24:25]")
    a.label("K2_pc")
    a.i(f"s_and_b32 s{T0}, s2, 7")
    a.i(f"s_lshr_b32 s{T1}, s2, 3")
    a.i(f"v_and_b32 v{V_L}, 63, v0")
    a.i(f"v_lshrrev_b32 v{VT}, 6, v0")
    a.i(f"s_lshl_b32 s{T2}, s{T1}, 9")
    a.i(f"v_readfirstlane_b32 s{C_W}, v{VT}")
    a.i(f"v_lshlrev_b32 v{VT+1}, 7, v0")
    a.i(f"v_add_u32 v{VT+1}, s{T2}, v{VT+1}")
    a.i(f"v_min_u32 v{VT+1}, CODE_END-K2_pc-4, v{VT+1}")
    a.i("v_cmp_gt_u32 vcc, 4, v0")
    a.i("s_and_saveexec_b64 s[26:27], vcc")
    a.i("s_cbranch_execz K2_nopf")
    a.i(f"global_load_dword v{P+7}, v{VT+1}, s[24:25]")
    a.label("K2_nopf")
    a.i("s_mov_b64 exec, s[26:27]")
    a.vm.append("pf")
    if cfg.mode == 0:
        a.i(f"s_lshr_b32 s{C_RB}, s{T1}, 3")
        a.i(f"s_lshl_b32 s{T2}, s{T0}, 2")
        a.i(f"s_add_u32 s{C_RB}, s{C_RB}, s{T2}")
        a.i(f"s_and_b32 s{C_CB}, s{T1}, 7")
    else:
        a.i(f"s_lshr_b32 s{C_RB}, s{T0}, 1")
        a.i(f"s_lshl_b32 s{C_RB}, s{C_RB}, 3")
        a.i(f"s_lshr_b32 s{T2}, s{T1}, 2")
        a.i(f"s_add_u32 s{C_RB}, s{C_RB}, s{T2}")
        a.i(f"s_and_b32 s{C_CB}, s{T0}, 1")
        a.i(f"s_lshl_b32 s{C_CB}, s{C_CB}, 2")
        a.i(f"s_and_b32 s{T2}, s{T1}, 3")
        a.i(f"s_add_u32 s{C_CB}, s{C_CB}, s{T2}")
    t = VT
    a.i(f"s_mul_i32 s{T0}, s{C_RB}, {2*AF_TT}")
    a.i(f"v_lshlrev_b32 v{V_A0}, 4, v{V_L}")
    a.i(f"v_add_u32 v{V_A0}, s{T0}, v{V_A0}")
    a.i(f"v_add_u32 v{V_A1}, {AF_TT}, v{V_A0}")
    a.i(f"s_mul_i32 s{S_HB}, s{C_W}, {NH*1024}")
    a.i(f"s_mul_i32 s{S_WB}, s{C_W}, {NH*16384}")
    a.i(f"s_mul_i32 s{S_QB}, s{C_W}, {NA*1024}")
    a.i(f"s_add_u32 s{S_QB}, s{S_QB}, {112*1024}")
    a.i(f"s_mul_i32 s{S_OB}, s{C_W}, {NA*16384}")
    a.i(f"s_mul_i32 s{S_KVB}, s{C_W}, {NA*KVT_HEAD}")
    a.i(f"s_add_u32 s{S_KVB}, s{S_KVB}, {KVT_OFF}")
    a.i(f"s_mul_i32 s{C_M0}, s{C_W}, {DW*2048}")
    SEP = cfg.sep and NW * (DW * 2048 + 64 * 272) <= 163840
    if SEP:
        a.i(f"s_add_u32 s{C_M0}, s{C_M0}, {NW*64*272}")
    a.i(f"s_mov_b32 s{C_EPS}, {EPS:#x}")
    a.i(f"v_lshrrev_b32 v{t}, 3, v{V_L}")
    a.i(f"v_and_b32 v{t+1}, 7, v{V_L}")
    a.i(f"v_bfe_u32 v{t+2}, v{V_L}, 4, 1")
    a.i(f"v_lshlrev_b32 v{t+2}, 2, v{t+2}")
    a.i(f"v_xor_b32 v{t+1}, v{t+1}, v{t+2}")
    a.i(f"v_lshlrev_b32 v{t}, 10, v{t}")
    a.i(f"v_lshl_add_u32 v{V_WD}, v{t+1}, 4, v{t}")
    a.i(f"s_lshl_b32 s{T0}, s{C_CB}, 7")
    a.i(f"v_add_u32 v{V_WD}, s{T0}, v{V_WD}")
    a.i("s_waitcnt lgkmcnt(0)")
    srd(a, C_WS, 22, WS_USED)
    srd(a, C_W2, 18, 1792 * 1024)
    srd(a, C_WO, 16, 512 * 1024)

    seq = []
    hq, aq = list(range(NH)), list(range(NA))
    NS = NH + NA
    gap = max((NS - 3) // NA, 2)
    for n in range(NS):
        if aq and n % gap == gap - 1 and n < NS - 2:
            seq.append(("a", aq.pop(0)))
        elif hq:
            seq.append(("h", hq.pop(0)))
        else:
            seq.append(("a", aq.pop(0)))
    assert not hq and not aq

    def issue_w(n):
        kind, k = seq[n]
        d = n % DW
        wb, w = (S_WB, C_W2) if kind == "h" else (S_OB, C_WO)
        for b in range(2):
            a.i(f"s_add_u32 m0, s{C_M0}, {d*2048 + b*1024}")
            a.i(f"s_add_u32 s{T2}, s{wb}, {k*16384 + b*8192}")
            a.vmem(f"s{n}", f"buffer_load_dwordx4 v{V_WD}, s[{w}:{w+3}], s{T2} offen lds")

    def issue(n):
        kind, k = seq[n]
        d = n % D
        ab = S_HB if kind == "h" else S_QB
        a.i(f"s_add_u32 s{T1}, s{ab}, {k*1024}")
        a.vmem(f"s{n}", f"buffer_load_dwordx4 a[{8*d}:{8*d+3}], v{V_A0}, s[{C_WS}:{C_WS+3}], s{T1} offen")
        a.vmem(f"s{n}", f"buffer_load_dwordx4 a[{8*d+4}:{8*d+7}], v{V_A1}, s[{C_WS}:{C_WS+3}], s{T1} offen")

    def kv_issue(k):
        a.i(f"s_add_u32 s{T3}, s{S_KVB}, {k*KVT_HEAD}")
        a.vmem(f"kv{k}", f"buffer_load_dwordx4 v[{VT}:{VT+3}], v{V_KVA}, s[{C_WS}:{C_WS+3}], s{T3} offen")
        a.vmem(f"kv{k}", f"buffer_load_dwordx4 v[{VT+4}:{VT+7}], v{V_KVA}, s[{C_WS}:{C_WS+3}], s{T3} offen offset:16")

    def tr_reads(n):
        d = n % DW
        wf = V_WF + 8 * (n % 2)
        for ct, va in enumerate((V_TR0, V_TR1)):
            for rd in range(2):
                r = wf + 4 * ct + 2 * rd
                a.dsop(f"t{n}", f"ds_read_b64_tr_b16 v[{r}:{r+1}], v{va} offset:{d*2048 + rd*1024}")

    for n in range(max(D, DW)):
        if n < DW:
            issue_w(n)
        if n < D:
            issue(n)
    srd(a, C_OUT, 20, 2048 * 1024)
    u = P
    a.i(f"v_lshrrev_b32 v{u}, 5, v{V_L}")
    a.i(f"v_bfe_u32 v{u+1}, v{V_L}, 2, 2")
    a.i(f"v_lshl_add_u32 v{u}, v{u}, 2, v{u+1}")
    a.i(f"v_bfe_u32 v{u+1}, v{V_L}, 4, 1")
    a.i(f"v_bfe_u32 v{u+2}, v{V_L}, 1, 1")
    a.i(f"v_lshl_add_u32 v{u+1}, v{u+1}, 1, v{u+2}")
    a.i(f"v_bfe_u32 v{u+2}, v{V_L}, 3, 1")
    a.i(f"v_lshlrev_b32 v{u+2}, 2, v{u+2}")
    a.i(f"v_xor_b32 v{u+1}, v{u+1}, v{u+2}")
    a.i(f"v_lshlrev_b32 v{u}, 7, v{u}")
    a.i(f"v_lshl_add_u32 v{u}, v{u+1}, 4, v{u}")
    a.i(f"v_and_b32 v{u+1}, 1, v{V_L}")
    a.i(f"v_lshl_add_u32 v{u}, v{u+1}, 3, v{u}")
    a.i(f"v_add_u32 v{V_TR0}, s{C_M0}, v{u}")
    a.i(f"v_xor_b32 v{u}, 64, v{u}")
    a.i(f"v_add_u32 v{V_TR1}, s{C_M0}, v{u}")
    a.i(f"v_and_b32 v{u}, 31, v{V_L}")
    a.i(f"v_lshrrev_b32 v{u+1}, 5, v{V_L}")
    a.i(f"v_lshl_add_u32 v{u+2}, v{u+1}, 4, v{u}")
    a.i(f"v_add_u32 v{u+1}, 32, v{u+1}")
    a.i(f"v_cmp_gt_u32 vcc, 16, v{u}")
    a.i(f"v_lshlrev_b32 v{V_G+2}, 3, v{u}")
    a.i(f"s_lshl_b32 s{T0}, s{C_RB}, 9")
    a.i(f"s_add_u32 s{T0}, s{T0}, {G_OFF}")
    a.i(f"v_cndmask_b32 v{u+2}, v{u+1}, v{u+2}, vcc")
    a.i(f"v_lshlrev_b32 v{V_KVA}, 5, v{u+2}")
    a.vmem("kv0", f"buffer_load_dword v{V_G}, v{V_G+2}, s[{C_WS}:{C_WS+3}], s{T0} offen")
    a.vmem("kv0", f"buffer_load_dword v{V_G+1}, v{V_G+2}, s[{C_WS}:{C_WS+3}], s{T0} offen offset:256")
    kv_issue(0)
    stamp(a, 1, 60)
    a.wait(vm=["s0"])
    stamp(a, 2, 60)
    tr_reads(0)
    nd_w = {}
    for n in range(NS):
        kind, k = seq[n]
        d = n % D
        if kind == "a":
            a.wait(vm=[f"kv{k}"])
            for j in range(4):
                a.i(f"v_cvt_pk_bf16_f32 v{V_KVF+j}, v{VT+2*j}, v{VT+2*j+1}")
            a.nop(2)
            for tt in range(2):
                b = A_ND + 16 * tt
                a.i(f"v_mfma_f32_32x32x16_bf16 a[{b}:{b+15}], v[{V_KVF}:{V_KVF+3}], a[{8*d+4*tt}:{8*d+4*tt+3}], 0")
                nd_w[tt] = a.n
            if k + 1 < NA:
                kv_issue(k + 1)
        if n + 1 < NS:
            a.wait(vm=[f"s{n+1}"])
            tr_reads(n + 1)
        if kind == "a":
            for tt in range(2):
                g_ = a.n - nd_w[tt]
                if g_ < 13:
                    a.nop(13 - g_)
                a.i(f"v_accvgpr_read_b32 v{V_RC+tt}, a{A_ND+16*tt+8}")
            for tt in range(2):
                a.i(f"v_add_f32 v{V_RC+tt}, s{C_EPS}, v{V_RC+tt}")
            for tt in range(2):
                a.i(f"v_rcp_f32 v{V_RC+tt}, v{V_RC+tt}")
            a.nop(1)
            for tt in range(2):
                a.i(f"v_mul_f32 v{V_RC+tt}, v{V_RC+tt}, v{V_G+tt}")
            for tt in range(2):
                for j in range(8):
                    a.i(f"v_accvgpr_read_b32 v{P+j}, a{A_ND+16*tt+j}")
                for j in range(8):
                    a.i(f"v_mul_f32 v{P+j}, v{P+j}, v{V_RC+tt}")
                for j in range(4):
                    a.i(f"v_cvt_pk_bf16_f32 v{V_OF+4*tt+j}, v{P+2*j}, v{P+2*j+1}")
            a.nop(2)
        a.wait(ds=[f"t{n}"])
        wf = V_WF + 8 * (n % 2)
        for ct in range(2):
            for tt in range(2):
                blk = ACC + 16 * (ct * 2 + tt)
                B = f"v[{V_OF+4*tt}:{V_OF+4*tt+3}]" if kind == "a" else f"a[{8*d+4*tt}:{8*d+4*tt+3}]"
                a.mfma(blk, f"v[{wf+4*ct}:{wf+4*ct+3}]", B, blk if n else None)
        if n + DW < NS:
            issue_w(n + DW)
        if n + D < NS:
            issue(n + D)
    stamp(a, 3, 60)
    PITCH = 272
    WSZ = 64 * PITCH
    TPW = 64 // NW
    a.i(f"v_lshrrev_b32 v{t+1}, 3, v{V_L}")
    a.i(f"s_mul_i32 s{T0}, s{C_W}, {TPW}")
    a.i(f"v_add_u32 v{t+1}, s{T0}, v{t+1}")
    a.i(f"v_lshlrev_b32 v{t+5}, 3, v{t+1}")
    a.i(f"s_lshl_b32 s{T0}, s{C_RB}, 9")
    a.i(f"s_add_u32 s{T0}, s{T0}, {G_OFF + 4}")
    for hf in range(TPW // 8):
        a.i(f"buffer_load_dword v{V_RC+hf}, v{t+5}, s[{C_WS}:{C_WS+3}], s{T0} offen offset:{64*hf}")
    a.i(f"v_and_b32 v{t}, 31, v{V_L}")
    a.i(f"v_lshrrev_b32 v{t+2}, 5, v{V_L}")
    a.i(f"v_mul_u32_u24 v{t}, {PITCH}, v{t}")
    a.i(f"v_lshl_add_u32 v{t}, v{t+2}, 4, v{t}")
    a.i(f"s_mul_i32 s{T0}, s{C_W}, {WSZ}")
    a.i(f"v_add_u32 v{t}, s{T0}, v{t}")
    a.i(f"v_and_b32 v{t+2}, 7, v{V_L}")
    a.i(f"v_mul_u32_u24 v{t+3}, {PITCH}, v{t+1}")
    a.i(f"v_lshl_add_u32 v{t+3}, v{t+2}, 5, v{t+3}")
    a.i(f"v_add_u32 v{t+6}, {3*WSZ}, v{t+3}")
    a.i(f"v_add_u32 v{t+7}, {6*WSZ}, v{t+3}")
    a.i(f"v_lshlrev_b32 v{t+4}, 10, v{t+1}")
    a.i(f"v_lshl_add_u32 v{t+4}, v{t+2}, 4, v{t+4}")
    a.i(f"s_lshl_b32 s{T0}, s{C_RB}, 16")
    a.i(f"s_lshl_b32 s{T1}, s{C_CB}, 7")
    a.i(f"s_add_u32 s{T0}, s{T0}, s{T1}")
    if not SEP:
        a.i("s_waitcnt lgkmcnt(0)")
        a.i("s_barrier")
    for blk in range(4):
        a.need_acc(ACC + 16 * blk, 16)
    for blk in range(4):
        ct, tt = blk >> 1, blk & 1
        for q in range(4):
            r = ACC + 16 * blk + 4 * q
            off = tt * 32 * PITCH + (ct * 32 + 8 * q) * 4
            a.i(f"ds_write_b128 v{t}, v[{r}:{r+3}] offset:{off}")
    a.i("s_waitcnt lgkmcnt(0)")
    a.i("s_barrier")
    R = ACC
    for hf in range(TPW // 8):
        for w in range(NW):
            for p in range(2):
                r = R + hf * 32 + w * 8 + p * 4
                va = (t + 3, t + 6, t + 7)[w // 3]
                a.i(f"ds_read_b128 v[{r}:{r+3}], v{va} offset:{(w % 3) * WSZ + hf * 8 * PITCH + p * 16}")
    a.i("s_waitcnt lgkmcnt(0) vmcnt(0)")
    for hf in range(TPW // 8):
        b = R + hf * 32
        step = 8
        while step < NW * 8:
            for w in range(0, NW * 8, 2 * step):
                for j in range(8):
                    a.i(f"v_add_f32 v{b+w+j}, v{b+w+j}, v{b+w+step+j}")
            step *= 2
        for j in range(8):
            a.i(f"v_mul_f32 v{b+j}, v{b+j}, v{V_RC+hf}")
        for j in range(4):
            a.i(f"v_cvt_pk_bf16_f32 v{b+8+j}, v{b+2*j}, v{b+2*j+1}")
        if hf:
            a.i(f"s_add_u32 s{T0}, s{T0}, 8192")
        a.i(f"buffer_store_dwordx4 v[{b+8}:{b+11}], v{t+4}, s[{C_OUT}:{C_OUT+3}], s{T0} offen")
    stamp(a, 4, 60)
    stamp_flush(a, 1, 6, C_WS, 60)
    a.label("K2_done")
    a.i("s_endpgm")
    lds = NW * (DW * 2048 + WSZ) if SEP else max(NW * DW * 2048, NW * WSZ)
    return a.text(), lds, NW


def kd(name, nv, accum, nsgpr=102):
    return f""".p2align 6
.amdhsa_kernel {name}
  .amdhsa_next_free_vgpr {nv}
  .amdhsa_next_free_sgpr {nsgpr}
  .amdhsa_accum_offset {accum}
  .amdhsa_group_segment_fixed_size 0
  .amdhsa_kernarg_size 88
  .amdhsa_user_sgpr_count 2
  .amdhsa_user_sgpr_kernarg_segment_ptr 1
  .amdhsa_system_sgpr_workgroup_id_x 1
  .amdhsa_float_denorm_mode_32 3
.end_amdhsa_kernel"""


def build(c1=None, c2=None):
    c1 = c1 or K1Cfg()
    c2 = c2 or K2Cfg()
    k1 = gen_k1(c1)
    k2, lds2, nw2 = gen_k2(c2)
    hdr = f"""; gated_mix: linear attention block + SwiGLU block, gated mix.  Generated by gen/gen8.py
; @launch kernel=k1_kernel grid=(256,1,1) block=(512,1,1) lds={K1_LDS}
; @launch kernel=k2_kernel grid=(256,1,1) block=({nw2*64},1,1) lds={lds2}
.amdgcn_target "amdgcn-amd-amdhsa--gfx950"
.text
"""
    tail = """
.p2align 8
CODE_END:
    s_endpgm
.section .rodata,"a"
"""
    return hdr + k1 + "\n" + k2 + tail + kd("k1_kernel", 256, 128) + "\n" + kd("k2_kernel", 224, 128) + "\n"


if __name__ == "__main__":
    if "--diag" in sys.argv:
        DIAG = True
        sys.argv.remove("--diag")
    c1, c2 = K1Cfg(), K2Cfg()
    for arg in list(sys.argv[1:]):
        if "=" in arg:
            k, v = arg.split("=")
            c = c2 if k.startswith("k2_") else c1
            k = k[3:] if k.startswith("k2_") else k
            setattr(c, k, v if k.endswith("_aux") else int(v))
            sys.argv.remove(arg)
    KROT, NM = c1.krot, c1.nm
    out = sys.argv[1] if len(sys.argv) > 1 else f"cdna_kernels/{NAME}.s"
    open(out, "w").write(build(c1, c2))
    print("wrote", out)
```

```python
import sys

NAME = "gated_mix__linear_attn_block__glu_gated_swiglu__prompt"

AF_OFF = 0
AF_TT = 144 * 1024
AF_SIZE = 64 * AF_TT
KVT_OFF = AF_SIZE
KVT_HEAD = 1152
KVT_SIZE = 32 * KVT_HEAD
G_OFF = KVT_OFF + KVT_SIZE
G_SIZE = 2048 * 8
WS_USED = G_OFF + G_SIZE

STAMP_OFF = 16 << 20
DIAG = False

LOG2E = 0x3FB8AA3B
NLOG2E = 0xBFB8AA3B
EPS = 0x358637BD


class Asm:
    def __init__(self):
        self.L = []
        self.n = 0
        self.vm = []
        self.vm_done = 0
        self.ds = []
        self.ds_done = 0
        self.mfma_w = {}

    def raw(self, s):
        self.L.append(s)

    def i(self, s):
        self.L.append("    " + s)
        self.n += 1

    def label(self, s):
        self.L.append(s + ":")

    def vmem(self, tag, s):
        self.i(s)
        self.vm.append(tag)

    def dsop(self, tag, s):
        self.i(s)
        self.ds.append(tag)

    def _need(self, lst, tags):
        last = -1
        for k, t in enumerate(lst):
            if t in tags:
                last = k
        return last

    def wait(self, vm=(), ds=(), vm_all=False, ds_all=False):
        parts = []
        if vm_all:
            lv = len(self.vm) - 1
        else:
            lv = self._need(self.vm, set(vm)) if vm else -1
        if lv >= self.vm_done:
            n = len(self.vm) - 1 - lv
            assert n <= 63, n
            parts.append(f"vmcnt({n})")
            self.vm_done = lv + 1
        if ds_all:
            ld = len(self.ds) - 1
        else:
            ld = self._need(self.ds, set(ds)) if ds else -1
        if ld >= self.ds_done:
            n = len(self.ds) - 1 - ld
            if n > 15:
                n = 15
                ld = len(self.ds) - 1 - 15
            parts.append(f"lgkmcnt({n})")
            self.ds_done = ld + 1
        if parts:
            self.i("s_waitcnt " + " ".join(parts))

    def nop(self, k):
        while k > 0:
            c = min(k, 16)
            self.L.append(f"    s_nop {c-1}")
            self.n += c
            k -= c

    def mfma(self, d, a, b, c):
        cs = "0" if c is None else f"v[{c}:{c+15}]"
        self.i(f"v_mfma_f32_32x32x16_bf16 v[{d}:{d+15}], {a}, {b}, {cs}")
        self.mfma_w[d] = self.n

    def need_acc(self, d, dist=13):
        if d in self.mfma_w:
            gap = self.n - self.mfma_w[d]
            if gap < dist:
                self.nop(dist - gap)

    def text(self):
        return "\n".join(self.L)


def stamp(a, k, base=16):
    if DIAG:
        a.i(f"s_memrealtime s[{base+2*k}:{base+2*k+1}]")


def stamp_flush(a, kern, nst, ws_ptr_srd, base=16, t0=38):
    if not DIAG:
        return
    a.i("s_waitcnt vmcnt(0)")
    stamp(a, nst - 1, base)
    a.i("s_waitcnt lgkmcnt(0)")
    a.i("v_cmp_eq_u32 vcc, 0, v0")
    a.i("s_and_saveexec_b64 s[94:95], vcc")
    a.i(f"s_cbranch_execz STAMP_skip_{a.n}")
    lbl = f"STAMP_skip_{a.n-1}"
    a.L[-1] = f"    s_cbranch_execz {lbl}"
    a.i(f"s_mov_b32 s{ws_ptr_srd+2}, {STAMP_OFF + 65536}")
    a.i(f"s_lshl_b32 s3, s2, 6")
    a.i(f"s_add_u32 s3, s3, {STAMP_OFF + kern*16384}")
    a.i("v_mov_b32 v2, 0")
    for k in range(nst):
        src = t0 if k == 0 else base + 2 * k
        a.i(f"v_mov_b32 v4, s{src}")
        a.i(f"v_mov_b32 v5, s{src+1}")
        a.i(f"buffer_store_dwordx2 v[4:5], v2, s[{ws_ptr_srd}:{ws_ptr_srd+3}], s3 offen offset:{8*k}")
        a.i("s_nop 1")
    a.label(lbl)


def srd(a, s, ptr, size):
    a.i(f"s_mov_b32 s{s}, s{ptr}")
    a.i(f"s_and_b32 s{s+1}, s{ptr+1}, 0xffff")
    a.i(f"s_mov_b32 s{s+2}, {size}")
    a.i(f"s_mov_b32 s{s+3}, 0x20000")


class K1Cfg:
    store_aux = "sc1"
    fill_per_gap = 28
    ahead = 5
    pf_w2 = True
    krot = 1
    nm = 2
    fill_last = 20
    pf_mode = 1
    pf_round = 1


S_X, S_A, S_B, S_WS, S_GW, S_DBG, S_W2, S_WO = 40, 44, 48, 52, 56, 60, 64, 68
S_XCD, S_IDX, S_WAVE, S_TILE0, S_PITCH, S_COLA, S_COLB, S_UNIT = 4, 5, 6, 7, 8, 9, 10, 11
S_T0, S_T1, S_T2, S_T3 = 12, 13, 14, 15
S_XKF = 72
S_WK = 80
S_M0X = 88
S_M0W = 89
S_ST = 90
S_C1, S_C2, S_C3 = 91, 92, 93
S_MASK = 94
S_TMP = 96
S_P = 97
S_SAVE = 98
S_PR, S_CT = 100, 101
S_XKP = 30
S_LB = 34

V_LANE = 1
V_WA, V_WB, V_XD = 2, 3, 4
V_WT = 5
V_STO = 6
V_ZS = 7
V_XF = 8
V_T = 12
V_XFR = 20
V_E = 44
V_KV = 48
V_ACC = 64

SLOT = 40960
BUF = [0, SLOT, 2 * SLOT, 3 * SLOT]
K1_LDS = 3 * SLOT + 32768


def dma_stage_ops(i, nm):
    slot = BUF[i % 3]
    ops = []
    for seg, (va, sr) in enumerate(((V_WA, S_A), (V_WB, S_B))):
        ops.append([("s", None, f"s_add_u32 m0, s{S_M0W}, {slot + seg*8192}"),
                    ("s", None, "s_nop 0"),
                    ("v", f"S{i}", f"buffer_load_dwordx4 v{va}, s[{sr}:{sr+3}], s{S_WK+i} offen lds")])
    for m in range(nm):
        ops.append([("s", None, f"s_add_u32 m0, s{S_M0X}, {slot + 16384 + m*8192}"),
                    ("s", None, f"s_add_u32 s{S_TMP}, s{S_XKF+i}, {m*65536}"),
                    ("v", f"S{i}", f"buffer_load_dwordx4 v{V_XD}, s[{S_X}:{S_X+3}], s{S_TMP} offen lds")])
    return ops


def dma_tile_ops(lj, tile, buf):
    ops = []
    for m in range(4):
        ops.append([("s", None, f"s_add_u32 m0, s{S_M0X}, {buf + m*8192}"),
                    ("s", None, f"s_add_u32 s{S_TMP}, s{S_XKP+m}, {tile*32768}"),
                    ("v", f"L{lj}", f"buffer_load_dwordx4 v{V_XD}, s[{S_X}:{S_X+3}], s{S_TMP} offen lds")])
    return ops


def emit_group(a, grp):
    for kind, tag, text in grp:
        if kind == "v":
            a.vmem(tag, text)
        else:
            a.i(text)


KROT = 1
NM = 3
S_KR = 39


def k1_prologue(a):
    a.i("s_cmp_ge_u32 s2, 256")
    a.i("s_cbranch_scc1 K1_done")
    if DIAG:
        a.i("s_memrealtime s[38:39]")
    a.i("s_load_dwordx16 s[16:31], s[0:1], 0")
    a.i("s_load_dwordx4 s[32:35], s[0:1], 64")
    a.i("s_load_dwordx2 s[36:37], s[0:1], 80")
    a.i("s_getpc_b64 s[98:99]")
    a.label("K1_pc")
    a.i(f"s_and_b32 s{S_XCD}, s2, 7")
    a.i(f"s_lshr_b32 s{S_IDX}, s2, 3")
    a.i(f"v_and_b32 v{V_LANE}, 63, v0")
    a.i(f"v_lshrrev_b32 v{V_T}, 6, v0")
    a.i(f"s_lshl_b32 s{S_T0}, s{S_IDX}, 11")
    a.i(f"v_readfirstlane_b32 s{S_WAVE}, v{V_T}")
    a.i(f"v_lshlrev_b32 v{V_T+1}, 7, v0")
    a.i(f"v_add_u32 v{V_T+1}, s{S_T0}, v{V_T+1}")
    a.i(f"v_min_u32 v{V_T+1}, CODE_END-K1_pc-4, v{V_T+1}")
    a.i("v_cmp_gt_u32 vcc, 16, v0")
    a.i("s_and_saveexec_b64 s[94:95], vcc")
    a.i("s_cbranch_execz K1_nopf")
    a.i(f"global_load_dword v{V_E}, v{V_T+1}, s[98:99]")
    a.label("K1_nopf")
    a.i("s_mov_b64 exec, s[94:95]")
    a.i(f"s_lshr_b32 s{S_PR}, s{S_WAVE}, 2")
    a.i(f"s_and_b32 s{S_CT}, s{S_WAVE}, 3")
    a.i(f"s_mul_i32 s{S_T0}, s{S_IDX}, 43")
    a.i(f"s_lshr_b32 s{S_T0}, s{S_T0}, 8")
    a.i(f"s_mul_i32 s{S_T1}, s{S_T0}, 6")
    a.i(f"s_sub_u32 s{S_P}, s{S_IDX}, s{S_T1}")
    a.i(f"s_lshl_b32 s{S_T0}, s{S_T0}, 3")
    a.i(f"s_add_u32 s{S_UNIT}, s{S_T0}, s{S_XCD}")
    a.i(f"s_mul_i32 s{S_TILE0}, s{S_P}, 11")
    a.i(f"s_max_u32 s{S_T0}, s{S_P}, 3")
    a.i(f"s_sub_u32 s{S_T0}, s{S_T0}, 3")
    a.i(f"s_sub_u32 s{S_TILE0}, s{S_TILE0}, s{S_T0}")
    a.i(f"s_lshl_b32 s{S_COLA}, s{S_UNIT}, 7")
    a.i(f"s_mov_b32 s{S_COLB}, s{S_COLA}")
    a.i(f"s_sub_u32 s{S_T0}, s{S_UNIT}, 28")
    a.i(f"s_lshl_b32 s{S_T0}, s{S_T0}, 8")
    a.i(f"s_add_u32 s{S_T1}, s{S_T0}, 128")
    a.i(f"s_cmp_ge_u32 s{S_UNIT}, 28")
    a.i(f"s_cselect_b32 s{S_COLA}, s{S_T0}, s{S_COLA}")
    a.i(f"s_cselect_b32 s{S_COLB}, s{S_T1}, s{S_COLB}")
    a.i("s_cselect_b32 s3, 1, 0")
    a.i(f"s_lshl_b32 s{S_T0}, s{S_XCD}, 7")
    a.i(f"s_add_u32 s{S_T1}, s{S_T0}, 2048")
    a.i(f"s_add_u32 s{S_T0}, s{S_T0}, 1024")
    a.i(f"s_sub_u32 s{S_T2}, s{S_IDX}, 24")
    a.i(f"s_lshl_b32 s{S_T3}, s{S_T2}, 3")
    a.i(f"s_cmp_ge_u32 s{S_IDX}, 24")
    a.i(f"s_cselect_b32 s{S_COLA}, s{S_T0}, s{S_COLA}")
    a.i(f"s_cselect_b32 s{S_COLB}, s{S_T1}, s{S_COLB}")
    a.i(f"s_cselect_b32 s{S_P}, s{S_T2}, s{S_P}")
    a.i(f"s_cselect_b32 s{S_TILE0}, s{S_T3}, s{S_TILE0}")
    a.i("s_cselect_b32 s3, 2, s3")
    a.i("s_cmp_eq_u32 s3, 0")
    a.i(f"s_movk_i32 s{S_T0}, 3584")
    a.i(f"s_movk_i32 s{S_T1}, 3072")
    a.i(f"s_cselect_b32 s{S_PITCH}, s{S_T0}, s{S_T1}")
    a.i(f"s_add_u32 s{S_T2}, s{S_TILE0}, s{S_PR}")
    a.i(f"s_lshl_b32 s{S_T2}, s{S_T2}, 15")
    a.i(f"s_lshl_b32 s{S_T3}, s{S_PITCH}, 6")
    if KROT:
        a.i(f"s_add_u32 s{S_C1}, s{S_XCD}, s{S_IDX}")
    else:
        a.i(f"s_mov_b32 s{S_C1}, s{S_XCD}")
    for i in range(8):
        a.i(f"s_add_u32 s{S_T0}, s{S_C1}, {i}")
        a.i(f"s_and_b32 s{S_T0}, s{S_T0}, 7")
        a.i(f"s_lshl_b32 s{S_T1}, s{S_T0}, 7")
        a.i(f"s_add_u32 s{S_XKF+i}, s{S_T1}, s{S_T2}")
        a.i(f"s_mul_i32 s{S_WK+i}, s{S_T0}, s{S_T3}")
    a.i(f"s_lshl_b32 s{S_M0W}, s{S_WAVE}, 10")
    a.i(f"s_lshl_b32 s{S_M0X}, s{S_PR}, 12")
    a.i(f"s_lshl_b32 s{S_T0}, s{S_CT}, 10")
    a.i(f"s_add_u32 s{S_M0X}, s{S_M0X}, s{S_T0}")
    t = V_T
    a.i(f"v_lshrrev_b32 v{t}, 3, v{V_LANE}")
    a.i(f"v_and_b32 v{t+1}, 7, v{V_LANE}")
    a.i(f"v_bfe_u32 v{t+2}, v{V_LANE}, 4, 1")
    a.i(f"v_lshlrev_b32 v{t+2}, 1, v{t+2}")
    a.i(f"v_xor_b32 v{t+3}, v{t+1}, v{t+2}")
    a.i(f"v_xor_b32 v{t+4}, 4, v{t+3}")
    a.i(f"s_lshl_b32 s{S_T0}, s{S_WAVE}, 3")
    a.i(f"v_add_u32 v{t+5}, s{S_T0}, v{t}")
    a.i(f"v_mul_lo_u32 v{t+5}, v{t+5}, s{S_PITCH}")
    a.i(f"v_lshl_add_u32 v{V_WA}, v{t+3}, 4, v{t+5}")
    a.i(f"v_add_u32 v{V_WA}, s{S_COLA}, v{V_WA}")
    a.i(f"v_lshl_add_u32 v{V_WB}, v{t+4}, 4, v{t+5}")
    a.i(f"v_add_u32 v{V_WB}, s{S_COLB}, v{V_WB}")
    a.i(f"s_lshl_b32 s{S_T0}, s{S_CT}, 3")
    a.i(f"v_add_u32 v{t+5}, s{S_T0}, v{t}")
    a.i(f"v_bfe_u32 v{t+6}, v{t+5}, 1, 3")
    a.i(f"v_xor_b32 v{t+6}, v{t+6}, v{t+1}")
    a.i(f"v_lshlrev_b32 v{t+5}, 10, v{t+5}")
    a.i(f"v_lshl_add_u32 v{V_XD}, v{t+6}, 4, v{t+5}")
    a.i("s_waitcnt lgkmcnt(0)")
    a.i("s_cmp_eq_u32 s3, 0")
    a.i(f"s_cselect_b32 s{S_A}, s24, s18")
    a.i(f"s_cselect_b32 s{S_A+1}, s25, s19")
    a.i(f"s_cselect_b32 s{S_B}, s26, s18")
    a.i(f"s_cselect_b32 s{S_B+1}, s27, s19")
    a.i(f"s_lshl_b32 s{S_A+2}, s{S_PITCH}, 9")
    a.i(f"s_and_b32 s{S_A+1}, s{S_A+1}, 0xffff")
    a.i(f"s_and_b32 s{S_B+1}, s{S_B+1}, 0xffff")
    a.i(f"s_mov_b32 s{S_B+2}, s{S_A+2}")
    a.i(f"s_mov_b32 s{S_A+3}, 0x20000")
    a.i(f"s_mov_b32 s{S_B+3}, 0x20000")
    srd(a, S_X, 16, 2048 * 1024)
    for i in range(3):
        ops = dma_stage_ops(i, 3)
        for grp in ops[:-1]:
            emit_group(a, grp)
        if NM == 3:
            a.i("s_cmp_eq_u32 s3, 2")
            a.i(f"s_cbranch_scc1 K1_skip{i}")
            emit_group(a, ops[-1])
            a.label(f"K1_skip{i}")
    srd(a, S_WS, 36, WS_USED)
    srd(a, S_GW, 30, 1024)
    srd(a, S_DBG, 34, 256)
    srd(a, S_W2, 28, 1792 * 1024)
    srd(a, S_WO, 20, 512 * 1024)
    a.i(f"s_lshl_b32 s{S_T2}, s{S_TILE0}, 15")
    for m in range(4):
        a.i(f"s_add_u32 s{S_T0}, s{S_C1}, s{S_PR}")
        a.i(f"s_add_u32 s{S_T0}, s{S_T0}, {2*m}")
        a.i(f"s_and_b32 s{S_T0}, s{S_T0}, 7")
        a.i(f"s_lshl_b32 s{S_T0}, s{S_T0}, 7")
        a.i(f"s_add_u32 s{S_XKP+m}, s{S_T0}, s{S_T2}")
    a.i(f"s_mov_b32 s{S_C1}, {LOG2E:#x}")
    a.i(f"s_mov_b32 s{S_C2}, {NLOG2E:#x}")
    a.i(f"s_mov_b32 s{S_C3}, {EPS:#x}")
    a.i(f"v_lshlrev_b32 v{V_STO}, 4, v{V_LANE}")
    a.i(f"v_and_b32 v{t}, 31, v{V_LANE}")
    a.i(f"v_lshrrev_b32 v{t+1}, 5, v{V_LANE}")
    a.i(f"v_bfe_u32 v{t+2}, v{t}, 1, 3")
    a.i(f"v_xor_b32 v{t+2}, v{t+2}, v{t+1}")
    a.i(f"v_lshlrev_b32 v{t}, 7, v{t}")
    a.i(f"s_lshl_b32 s{S_T0}, s{S_PR}, 12")
    a.i(f"v_add_u32 v{t}, s{S_T0}, v{t}")
    for s in range(4):
        a.i(f"v_xor_b32 v{t+3}, {2*s}, v{t+2}")
        a.i(f"v_lshl_add_u32 v{V_XF+s}, v{t+3}, 4, v{t}")
    a.i(f"v_bfe_u32 v{t}, v{V_LANE}, 4, 1")
    a.i(f"v_lshrrev_b32 v{t+1}, 5, v{V_LANE}")
    a.i(f"v_bfe_u32 v{t+2}, v{V_LANE}, 2, 2")
    a.i(f"v_bfe_u32 v{t+3}, v{V_LANE}, 1, 1")
    a.i(f"s_lshl_b32 s{S_T0}, s{S_CT}, 1")
    a.i(f"v_add_u32 v{t+3}, s{S_T0}, v{t+3}")
    a.i(f"v_bfe_u32 v{t+4}, v{V_LANE}, 3, 1")
    a.i(f"v_lshlrev_b32 v{t+4}, 1, v{t+4}")
    a.i(f"v_lshl_add_u32 v{t+4}, v{t}, 2, v{t+4}")
    a.i(f"v_xor_b32 v{t+3}, v{t+3}, v{t+4}")
    a.i(f"v_lshlrev_b32 v{t+5}, 13, v{t}")
    a.i(f"v_lshl_add_u32 v{t+5}, v{t+1}, 10, v{t+5}")
    a.i(f"v_lshl_add_u32 v{t+5}, v{t+2}, 7, v{t+5}")
    a.i(f"v_lshl_add_u32 v{t+5}, v{t+3}, 4, v{t+5}")
    a.i(f"v_and_b32 v{t+6}, 1, v{V_LANE}")
    a.i(f"v_lshl_add_u32 v{V_WT}, v{t+6}, 3, v{t+5}")
    cur0, cur1 = BUF[1], BUF[1] + 4096
    b0 = [BUF[3], BUF[0], BUF[3], BUF[0]]
    b1 = [BUF[2], BUF[1], BUF[2], BUF[1]]
    a.i(f"s_cmp_eq_u32 s{S_PR}, 0")
    for r in range(4):
        d0 = (b0[r] - cur0) & 0xffffffff
        d1 = (b1[r] - cur1) & 0xffffffff
        cur0, cur1 = b0[r], b1[r]
        a.i(f"s_mov_b32 s{S_T0}, {d0:#x}")
        a.i(f"s_mov_b32 s{S_T1}, {d1:#x}")
        a.i(f"s_cselect_b32 s{S_LB+r}, s{S_T0}, s{S_T1}")


def mk_ops(chk_blks):
    ops = []

    def V(cost, s, chk=False):
        def f(a, s=s, chk=chk):
            if chk:
                for b in chk_blks:
                    a.need_acc(b)
            a.i(s)
        ops.append((cost, f))
    return ops, V


def epi_mlp(cfg, acc, m):
    ops, V = mk_ops([acc])
    for r in range(8):
        V(4, f"v_mul_f32 v{acc+8+r}, v{acc+r}, v{acc+8+r}", chk=True)
    for r in range(8):
        V(4, f"v_mul_f32 v{acc+r}, s{S_C2}, v{acc+r}")
    for r in range(8):
        V(8, f"v_exp_f32 v{acc+r}, v{acc+r}")
    for r in range(8):
        V(4, f"v_add_f32 v{acc+r}, 1.0, v{acc+r}")
    for r in range(8):
        V(8, f"v_rcp_f32 v{acc+r}, v{acc+r}")
    for r in range(8):
        V(4, f"v_mul_f32 v{acc+8+r}, v{acc+r}, v{acc+8+r}")
    for j in range(4):
        V(4, f"v_cvt_pk_bf16_f32 v{acc+j}, v{acc+8+2*j}, v{acc+9+2*j}")

    def st(a):
        a.i(f"s_add_u32 s{S_TMP}, s{S_ST}, {2*m*AF_TT}")
        a.vmem("st", f"buffer_store_dwordx4 v[{acc}:{acc+3}], v{V_STO}, s[{S_WS}:{S_WS+3}], s{S_TMP} offen {cfg.store_aux}")
        a.nop(1)
    ops.append((12, st))
    return ops


def phi_ops(V, regs, tmp):
    for k, r in enumerate(regs):
        V(4, f"v_mul_f32 v{tmp+k}, s{S_C1}, v{r}", chk=True)
    for k, r in enumerate(regs):
        V(8, f"v_exp_f32_e64 v{tmp+k}, v{tmp+k} clamp")
    for k, r in enumerate(regs):
        V(4, f"v_max_f32 v{r}, 0, v{r}")
    for k, r in enumerate(regs):
        V(4, f"v_add_f32 v{r}, v{r}, v{tmp+k}")
    for k, r in enumerate(regs):
        V(4, f"v_add_f32 v{r}, s{S_C3}, v{r}")


def epi_q(cfg, acc, m):
    ops, V = mk_ops([acc])
    for half in range(2):
        regs = [acc + 8 * half + r for r in range(8)]
        phi_ops(V, regs, V_T)
        o = acc + 8 * half
        for j in range(4):
            V(4, f"v_cvt_pk_bf16_f32 v{o+j}, v{regs[2*j]}, v{regs[2*j+1]}")

        def st(a, o=o, half=half):
            a.i(f"s_add_u32 s{S_TMP}, s{S_ST}, {2*m*AF_TT + half*4096}")
            a.vmem("st", f"buffer_store_dwordx4 v[{o}:{o+3}], v{V_STO}, s[{S_WS}:{S_WS+3}], s{S_TMP} offen {cfg.store_aux}")
            a.nop(1)
        ops.append((12, st))
    return ops


def epi_kv(cfg, acc0, acc1, first):
    ops, V = mk_ops([acc0, acc1])
    for r in range(16):
        V(4, f"v_permlane16_swap_b32 v{acc0+r}, v{acc1+r}", chk=True)
    for half in range(2):
        phi_ops(V, [acc0 + 8 * half + r for r in range(8)], V_T)
    for j in range(8):
        V(4, f"v_cvt_pk_bf16_f32 v{acc1+j}, v{acc1+2*j}, v{acc1+2*j+1}")
    for r in range(16):
        if first and r == 0:
            V(4, f"v_mov_b32 v{V_ZS}, v{acc0}")
        else:
            V(4, f"v_add_f32 v{V_ZS}, v{V_ZS}, v{acc0+r}")
    for j in range(8):
        V(4, f"v_cvt_pk_bf16_f32 v{acc0+j}, v{acc0+2*j}, v{acc0+2*j+1}")

    def mm(a):
        a.nop(2)
        a.mfma(V_KV, f"v[{acc0}:{acc0+3}]", f"v[{acc1}:{acc1+3}]", None if first else V_KV)
        a.mfma(V_KV, f"v[{acc0+4}:{acc0+7}]", f"v[{acc1+4}:{acc1+7}]", V_KV)
    ops.append((24, mm))
    return ops


class K1State:
    pass


def k1_first_pass(a, cfg, kv):
    nm = 2 if kv else NM
    nl = 4 if kv else 11 - 2 * NM
    n1 = 2 * nm
    acc_blk = [V_ACC + 16 * k for k in range(4)]
    lbuf = [BUF[3], BUF[2], BUF[0], BUF[1], BUF[3], BUF[2], BUF[0]]
    a.vm, a.vm_done, a.ds, a.ds_done, a.mfma_w = ["pf"], 0, [], 0, {}
    for i in range(3):
        for grp in dma_stage_ops(i, nm):
            a.vm.append(f"S{i}")

    def opnds(q, xf):
        w = f"a[{4*q}:{4*q+3}]"
        x = f"v[{xf}:{xf+3}]"
        return (x, w) if kv else (w, x)

    def fp_reads(n):
        i, s = divmod(n, 4)
        L = []
        for rd in range(2):
            L.append((f"w{n}", f"ds_read_b64_tr_b16 a[{4*n+2*rd}:{4*n+2*rd+1}], v{V_WT} offset:{s*2048 + rd*512}"))
        for m in range(nm):
            xf = V_XFR + (n % 2) * 12 + 4 * m
            L.append((f"x{n}_{m}", f"ds_read_b128 v[{xf}:{xf+3}], v{V_XF+s} offset:{16384 + m*8192}"))
        return L

    st = K1State()
    st.nm, st.nl, st.n1, st.acc_blk, st.lbuf, st.opnds, st.kv = nm, nl, n1, acc_blk, lbuf, opnds, kv
    stamp(a, 1)
    a.wait(vm=["S0"])
    a.i("s_barrier")
    stamp(a, 2)
    for tag, text in fp_reads(0):
        a.dsop(tag, text)
    dma_q = []
    for n in range(32):
        i, s = divmod(n, 4)
        pre = []
        if s == 3:
            a.wait(ds_all=True)
            tgs = [f"S{i+1}"] if i < 7 else ["L0", "L1"]
            for tg in tgs:
                assert not any(op[1] == tg for g in dma_q for op in g), tg
                assert tg in a.vm
            a.wait(vm=tgs)
            a.i("s_barrier")
            if kv and i == 2:
                a.i(f"s_or_b32 s{S_T0}, s{S_P}, s{S_PR}")
                a.i(f"s_cmp_lg_u32 s{S_T0}, 0")
                a.i("s_cbranch_scc1 K1_kv_noflag")
                a.i("s_mov_b64 exec, 1")
                a.i(f"v_mov_b32 v{V_T}, 1")
                a.i(f"v_mov_b32 v{V_T+1}, 0")
                a.i(f"buffer_store_dword v{V_T}, v{V_T+1}, s[{S_DBG}:{S_DBG+3}], s{S_UNIT} offen sc1")
                a.i("s_mov_b64 exec, -1")
                a.label("K1_kv_noflag")
            if i + 3 <= 7:
                dma_q += dma_stage_ops(i + 3, nm)
            if i == 4:
                dma_q += dma_tile_ops(0, n1, lbuf[0])
            if i >= 5:
                dma_q += dma_tile_ops(i - 4, n1 + i - 4, lbuf[i - 4])
            if i < 7:
                d = (BUF[(i + 1) % 3] - BUF[i % 3]) & 0xffffffff
                pre = [f"v_add_u32 v{r}, {d:#x}, v{r}" for r in (V_WT, V_XF, V_XF + 1, V_XF + 2, V_XF + 3)]
            else:
                pre = [f"v_add_u32 v{r}, s{S_LB}, v{r}" for r in (V_XF, V_XF + 1, V_XF + 2, V_XF + 3)]
        for p in pre:
            a.i(p)
        if n < 31:
            fill = fp_reads(n + 1)
        else:
            fill = [lp_read(0, q) for q in range(3)]
        for m in range(nm):
            a.wait(ds=[f"w{n}", f"x{n}_{m}"])
            A, B = opnds(n, V_XFR + (n % 2) * 12 + 4 * m)
            a.mfma(acc_blk[m], A, B, None if n == 0 else acc_blk[m])
            k = 0
            while fill and k < 2:
                tag, text = fill.pop(0)
                a.dsop(tag, text)
                k += 1
            if dma_q:
                emit_group(a, dma_q.pop(0))
        while fill:
            tag, text = fill.pop(0)
            a.dsop(tag, text)
    st.dma_q = dma_q
    stamp(a, 3)
    return st


RING = 6


def lp_read(rd, q):
    i, s = divmod(q, 4)
    xf = V_XFR + 4 * ((rd * 32 + q) % RING)
    return (f"l{rd}_{q}", f"ds_read_b128 v[{xf}:{xf+3}], v{V_XF+s} offset:{i*4096}")


def k1_later(a, cfg, st, typ):
    nm, nl, n1, acc_blk, lbuf, opnds = st.nm, st.nl, st.n1, st.acc_blk, st.lbuf, st.opnds
    dma_q = list(st.dma_q)
    AH = cfg.ahead
    if typ == "mlp":
        a.i(f"s_lshl_b32 s{S_T0}, s{S_UNIT}, 2")
        a.i(f"s_add_u32 s{S_T0}, s{S_T0}, s{S_CT}")
    elif typ == "q":
        a.i(f"s_lshl_b32 s{S_T0}, s{S_UNIT}, 3")
        a.i(f"s_add_u32 s{S_T0}, s{S_T0}, s{S_CT}")
        a.i(f"s_sub_u32 s{S_T0}, s{S_T0}, {28*8-112}")
    if typ != "kv":
        a.i(f"s_lshl_b32 s{S_T0}, s{S_T0}, 10")
        a.i(f"s_add_u32 s{S_T1}, s{S_TILE0}, s{S_PR}")
        a.i(f"s_mul_i32 s{S_T1}, s{S_T1}, {AF_TT}")
        a.i(f"s_add_u32 s{S_ST}, s{S_T0}, s{S_T1}")
        if AF_OFF:
            a.i(f"s_add_u32 s{S_ST}, s{S_ST}, {AF_OFF}")
    for q in range(3, AH):
        tag, text = lp_read(0, q)
        a.dsop(tag, text)
    epi = []
    free_blk = acc_blk[nm:]

    def push_epi(blks, m, first=False):
        if typ == "mlp":
            ops = epi_mlp(cfg, blks[0], m)
        elif typ == "q":
            ops = epi_q(cfg, blks[0], m)
        else:
            ops = epi_kv(cfg, blks[0], blks[1], first)

        def rel(a, blks=blks):
            free_blk.extend(blks)
        ops.append((0, rel))
        epi.extend(ops)

    if typ == "kv":
        push_epi([acc_blk[0], acc_blk[1]], 0, first=True)
    else:
        for m in range(nm):
            push_epi([acc_blk[m]], m)
    extra = []
    if cfg.pf_w2 and typ != "kv":
        extra = pf_w2_ops(cfg)
    nrounds = (nl + 1) // 2
    pend = []

    def drain():
        while epi:
            c, f = epi.pop(0)
            f(a)

    for rd in range(nrounds):
        last_odd = (2 * rd + 1 >= nl)
        if last_odd:
            snap = (list(a.vm), a.vm_done, list(a.ds), a.ds_done, dict(a.mfma_w), list(epi), list(free_blk), a.n)
            a.i(f"s_cmp_eq_u32 s{S_PR}, 0")
            a.i(f"s_cbranch_scc1 K1_{typ}_last")
            stamp(a, 4)
            drain()
            stamp(a, 5)
            stamp_flush(a, 0, 7, S_WS)
            a.i("s_endpgm")
            a.label(f"K1_{typ}_last")
            a.vm, a.vm_done, a.ds, a.ds_done, a.mfma_w = snap[0], snap[1], snap[2], snap[3], snap[4]
            epi[:] = snap[5]
            free_blk[:] = snap[6]
            a.mfma_w = {k: a.n - (snap[7] - v) for k, v in snap[4].items()}
        while not free_blk:
            c, f = epi.pop(0)
            f(a)
        blk = free_blk.pop(0)
        has_next = rd + 1 < nrounds
        for q in range(32):
            if q == 32 - AH and has_next:
                tgs = [f"L{j}" for j in (2 * rd + 2, 2 * rd + 3) if j < nl]
                for tg in tgs:
                    assert not any(op[1] == tg for g in dma_q for op in g), tg
                    assert tg in a.vm
                a.wait(vm=tgs, ds_all=True)
                a.i("s_barrier")
                for nxt in (2 * rd + 4, 2 * rd + 5):
                    if nxt < nl:
                        dma_q += dma_tile_ops(nxt, n1 + nxt, lbuf[nxt])
                for r in range(4):
                    a.i(f"v_add_u32 v{V_XF+r}, s{S_LB+rd+1}, v{V_XF+r}")
            a.wait(ds=[f"l{rd}_{q}"])
            A, B = opnds(q, V_XFR + 4 * ((rd * 32 + q) % RING))
            a.mfma(blk, A, B, None if q == 0 else blk)
            if q + AH < 32:
                tag, text = lp_read(rd, q + AH)
                a.dsop(tag, text)
            elif has_next:
                tag, text = lp_read(rd + 1, q + AH - 32)
                a.dsop(tag, text)
            budget = cfg.fill_last if last_odd else cfg.fill_per_gap
            if dma_q:
                emit_group(a, dma_q.pop(0))
                budget -= 16
            elif extra and rd == cfg.pf_round and q % 2 == 0:
                emit_group(a, extra.pop(0))
                budget -= 16
            while epi and budget > 0:
                c, f = epi[0]
                if c > budget and budget < 16:
                    break
                epi.pop(0)
                f(a)
                budget -= c
        pend.append(blk)
        if typ == "kv":
            if len(pend) == 2:
                push_epi(pend, 0)
                pend = []
        else:
            push_epi(pend, nm + rd)
            pend = []
    assert not dma_q and not extra
    stamp(a, 4)
    if typ == "kv":
        k1_g_loads(a)
    drain()
    if typ == "kv":
        k1_kv_tail(a)
        k1_g_compute(a)
    stamp(a, 5)
    stamp_flush(a, 0, 7, S_WS)
    a.i("s_endpgm")


def pf_w2_ops(cfg):
    ops = []
    if cfg.pf_mode == 0:
        ops.append([("s", None, f"s_lshl_b32 s{S_T0}, s2, 3"),
                    ("s", None, f"s_add_u32 s{S_T0}, s{S_T0}, s{S_WAVE}"),
                    ("s", None, f"s_lshl_b32 s{S_T0}, s{S_T0}, 11"),
                    ("s", None, f"v_lshlrev_b32 v{V_E+1}, 7, v{V_LANE}"),
                    ("s", None, f"s_sub_u32 s{S_T1}, s{S_T0}, {1792*1024}"),
                    ("s", None, "s_mov_b64 exec, 0xffff"),
                    ("v", "pf", f"buffer_load_dword v{V_E}, v{V_E+1}, s[{S_W2}:{S_W2+3}], s{S_T0} offen"),
                    ("v", "pf", f"buffer_load_dword v{V_E}, v{V_E+1}, s[{S_WO}:{S_WO+3}], s{S_T1} offen"),
                    ("s", None, "s_mov_b64 exec, -1")])
    else:
        ops.append([("s", None, f"s_lshl_b32 s{S_T0}, s{S_IDX}, 3"),
                    ("s", None, f"s_add_u32 s{S_T0}, s{S_T0}, s{S_WAVE}"),
                    ("s", None, f"s_mul_i32 s{S_T0}, s{S_T0}, {12*1024}"),
                    ("s", None, f"s_and_b32 s{S_T1}, s{S_XCD}, 1"),
                    ("s", None, f"s_lshl_b32 s{S_T1}, s{S_T1}, 9"),
                    ("s", None, f"s_add_u32 s{S_T0}, s{S_T0}, s{S_T1}"),
                    ("s", None, f"v_lshrrev_b32 v{V_E+1}, 2, v{V_LANE}"),
                    ("s", None, f"v_lshlrev_b32 v{V_E+1}, 10, v{V_E+1}"),
                    ("s", None, f"v_and_b32 v{V_E+2}, 3, v{V_LANE}"),
                    ("s", None, f"v_lshl_add_u32 v{V_E+1}, v{V_E+2}, 7, v{V_E+1}"),
                    ("s", None, f"v_add_u32 v{V_E+1}, s{S_T0}, v{V_E+1}"),
                    ("s", None, f"v_subrev_u32 v{V_E+2}, {1792*1024}, v{V_E+1}"),
                    ("s", None, "s_mov_b32 exec_hi, 0xffff"),
                    ("v", "pf", f"buffer_load_dword v{V_E}, v{V_E+1}, s[{S_W2}:{S_W2+3}], 0 offen"),
                    ("v", "pf", f"buffer_load_dword v{V_E}, v{V_E+2}, s[{S_WO}:{S_WO+3}], 0 offen"),
                    ("s", None, "s_mov_b64 exec, -1")])
    return ops


def k1_kv_head(a):
    a.i(f"s_lshl_b32 s{S_T0}, s{S_XCD}, 2")
    a.i(f"s_add_u32 s{S_T0}, s{S_T0}, s{S_CT}")
    a.i(f"s_lshl_b32 s{S_UNIT}, s{S_T0}, 2")
    a.i(f"s_mul_i32 s{S_ST}, s{S_T0}, {KVT_HEAD}")
    a.i(f"s_add_u32 s{S_ST}, s{S_ST}, {KVT_OFF}")
    a.i(f"s_or_b32 s{S_T0}, s{S_P}, s{S_PR}")
    a.i(f"s_cmp_lg_u32 s{S_T0}, 0")
    a.i("s_cbranch_scc1 K1_kv_nozero")
    a.i(f"v_lshlrev_b32 v{V_T}, 3, v{V_LANE}")
    for k in range(6):
        a.i(f"v_mov_b32 v{V_KV+k}, 0")
    a.i(f"buffer_atomic_swap_x2 v[{V_KV}:{V_KV+1}], v{V_T}, s[{S_WS}:{S_WS+3}], s{S_ST} offen sc0")
    a.i(f"buffer_atomic_swap_x2 v[{V_KV+2}:{V_KV+3}], v{V_T}, s[{S_WS}:{S_WS+3}], s{S_ST} offen offset:512 sc0")
    a.i("s_mov_b64 exec, 0xffff")
    a.i(f"buffer_atomic_swap_x2 v[{V_KV+4}:{V_KV+5}], v{V_T}, s[{S_WS}:{S_WS+3}], s{S_ST} offen offset:1024 sc0")
    a.i("s_mov_b64 exec, -1")
    a.label("K1_kv_nozero")


def k1_kv_tail(a):
    t = V_T
    B = V_ACC
    a.need_acc(V_KV, 16)
    for r in range(8):
        a.i(f"v_permlane16_swap_b32 v{V_KV+8+r}, v{t+r}")
    a.i(f"v_mov_b32 v{B}, v{V_ZS}")
    a.nop(2)
    a.i(f"v_permlane16_swap_b32 v{B}, v{V_ZS}")
    a.nop(1)
    a.i(f"v_add_f32 v{V_ZS}, v{V_ZS}, v{B}")
    a.i(f"v_mov_b32 v{B}, v{V_ZS}")
    a.nop(2)
    a.i(f"v_permlane32_swap_b32 v{B}, v{V_ZS}")
    a.nop(1)
    a.i(f"v_add_f32 v{V_ZS}, v{V_ZS}, v{B}")
    for r in range(8):
        a.i(f"v_add_f32 v{V_KV+r}, v{V_KV+r}, v{t+r}")
    a.i(f"s_mul_i32 s{S_T1}, s{S_WAVE}, {KVT_HEAD}")
    a.i(f"s_add_u32 s{S_T1}, s{S_T1}, {BUF[3]}")
    a.i(f"v_and_b32 v{B}, 15, v{V_LANE}")
    a.i(f"v_lshrrev_b32 v{B+1}, 5, v{V_LANE}")
    a.i(f"v_lshl_add_u32 v{B+1}, v{B+1}, 4, v{B}")
    a.i(f"v_lshlrev_b32 v{B+1}, 5, v{B+1}")
    a.i(f"v_add_u32 v{B+1}, s{S_T1}, v{B+1}")
    a.i(f"v_and_b32 v{B+2}, 3, v{B}")
    a.i(f"v_lshrrev_b32 v{B+3}, 3, v{B}")
    a.i(f"v_lshl_add_u32 v{B+2}, v{B+3}, 2, v{B+2}")
    a.i(f"v_bfe_u32 v{B+3}, v{B}, 2, 1")
    a.i(f"v_lshl_add_u32 v{B+2}, v{B+3}, 3, v{B+2}")
    a.i(f"v_lshlrev_b32 v{B+2}, 2, v{B+2}")
    a.i(f"v_add_u32 v{B+2}, s{S_T1}, v{B+2}")
    a.i(f"v_lshlrev_b32 v{B+4}, 2, v{V_LANE}")
    a.i(f"v_add_u32 v{B+3}, s{S_T1}, v{B+4}")
    a.i(f"s_mov_b32 s{S_MASK}, 0xffff")
    a.i(f"s_mov_b32 s{S_MASK+1}, 0xffff")
    a.i(f"s_mov_b64 exec, s[{S_MASK}:{S_MASK+1}]")
    a.i(f"ds_write_b128 v{B+1}, v[{V_KV}:{V_KV+3}]")
    a.i(f"ds_write_b128 v{B+1}, v[{V_KV+4}:{V_KV+7}] offset:16")
    a.i("s_mov_b64 exec, 0xffff")
    a.i(f"ds_write_b32 v{B+2}, v{V_ZS} offset:1024")
    a.i("s_mov_b64 exec, -1")
    a.i("s_waitcnt lgkmcnt(0)")
    for k in range(5):
        a.i(f"ds_read_b32 v{B+8+k}, v{B+3} offset:{256*k}")
    a.label("K1_kv_poll")
    a.i("s_mov_b64 exec, 1")
    a.i(f"v_mov_b32 v{t+1}, 0")
    a.i(f"buffer_load_dword v{t}, v{t+1}, s[{S_DBG}:{S_DBG+3}], s{S_UNIT} offen sc1")
    a.i("s_waitcnt vmcnt(0)")
    a.i(f"v_readfirstlane_b32 s{S_T0}, v{t}")
    a.i("s_mov_b64 exec, -1")
    a.i(f"s_cmp_lg_u32 s{S_T0}, 0")
    a.i("s_cbranch_scc1 K1_kv_go")
    a.i("s_sleep 8")
    a.i("s_branch K1_kv_poll")
    a.label("K1_kv_go")
    a.vm_done = len(a.vm)
    a.i("s_waitcnt lgkmcnt(0)")
    for k in range(5):
        if k == 4:
            a.i("s_mov_b64 exec, 0xffff")
        a.vmem("at", f"buffer_atomic_add_f32 v{B+8+k}, v{B+4}, s[{S_WS}:{S_WS+3}], s{S_ST} offen offset:{256*k}")
    a.i("s_mov_b64 exec, -1")


def k1_g_loads(a):
    a.i(f"s_lshl_b32 s{S_T0}, s{S_P}, 8")
    a.i(f"s_lshl_b32 s{S_T1}, s{S_XCD}, 5")
    a.i(f"s_add_u32 s{S_T0}, s{S_T0}, s{S_T1}")
    a.i(f"s_lshl_b32 s{S_T1}, s{S_WAVE}, 2")
    a.i(f"s_add_u32 s{S_T2}, s{S_T0}, s{S_T1}")
    a.i(f"s_lshl_b32 s{S_T0}, s{S_T2}, 10")
    e = V_XFR
    a.nop(4)
    a.vmem("g", f"buffer_load_dwordx4 v[{e}:{e+3}], v{V_STO}, s[{S_GW}:{S_GW+3}], 0 offen")
    for k in range(4):
        a.vmem("g", f"buffer_load_dwordx4 v[{e+4+4*k}:{e+7+4*k}], v{V_STO}, s[{S_X}:{S_X+3}], s{S_T0} offen offset:{1024*k}")


def k1_g_compute(a):
    e = V_XFR
    a.wait(vm=["g"])
    t = V_ACC + 16
    R = [V_ACC + 24 + k for k in range(4)]
    for j in range(4):
        for k in range(4):
            a.i(f"v_dot2_f32_bf16 v{R[k]}, v{e+4+4*k+j}, v{e+j}, " + ("0" if j == 0 else f"v{R[k]}"))
    a.nop(4)
    for mod in ("row_shr:1", "row_shr:2", "row_shr:4", "row_shr:8"):
        for r in R:
            a.i(f"v_add_f32_dpp v{r}, v{r}, v{r} {mod} row_mask:0xf bank_mask:0xf bound_ctrl:0")
    for r in R:
        a.i(f"v_add_f32_dpp v{r}, v{r}, v{r} row_bcast:15 row_mask:0xa bank_mask:0xf")
    for r in R:
        a.i(f"v_add_f32_dpp v{r}, v{r}, v{r} row_bcast:31 row_mask:0xc bank_mask:0xf")

    def rnd(regs):
        for r in regs:
            a.i(f"v_cvt_pk_bf16_f32 v{r}, v{r}, v{r}")
        for r in regs:
            a.i(f"v_and_b32 v{r}, 0xffff0000, v{r}")
    rnd(R)
    for r in R:
        a.i(f"v_mul_f32 v{r}, s{S_C2}, v{r}")
    for r in R:
        a.i(f"v_exp_f32 v{r}, v{r}")
    for r in R:
        a.i(f"v_add_f32 v{r}, 1.0, v{r}")
    for r in R:
        a.i(f"v_rcp_f32 v{r}, v{r}")
    a.nop(1)
    rnd(R)
    o = V_ACC + 32
    O = [o + 2 * k + 1 for k in range(4)]
    for k in range(4):
        a.i(f"v_sub_f32 v{O[k]}, 1.0, v{R[k]}")
    rnd(O)
    for k in range(4):
        a.i(f"v_max_f32 v{O[k]}, 0x30800000, v{O[k]}")
    for k in range(4):
        a.i(f"v_rcp_f32 v{t+k}, v{O[k]}")
    a.nop(1)
    for k in range(4):
        a.i(f"v_fma_f32 v{t+4+k}, -v{O[k]}, v{t+k}, 1.0")
    for k in range(4):
        a.i(f"v_fma_f32 v{t+k}, v{t+4+k}, v{t+k}, v{t+k}")
    for k in range(4):
        a.i(f"v_mul_f32 v{o+2*k}, v{R[k]}, v{t+k}")
    a.i(f"s_lshl_b32 s{S_T0}, s{S_T2}, 3")
    a.i(f"s_add_u32 s{S_T0}, s{S_T0}, {G_OFF}")
    a.i(f"v_mov_b32 v{t}, 0")
    a.i(f"s_mov_b32 s{S_SAVE}, 0")
    a.i(f"s_mov_b32 s{S_SAVE+1}, 0x80000000")
    a.i(f"s_mov_b64 exec, s[{S_SAVE}:{S_SAVE+1}]")
    a.vmem("gst", f"buffer_store_dwordx4 v[{o}:{o+3}], v{t}, s[{S_WS}:{S_WS+3}], s{S_T0} offen")
    a.vmem("gst", f"buffer_store_dwordx4 v[{o+4}:{o+7}], v{t}, s[{S_WS}:{S_WS+3}], s{S_T0} offen offset:16")
    a.i("s_mov_b64 exec, -1")


def gen_k1(cfg):
    import copy
    a = Asm()
    a.raw(".globl k1_kernel\n.p2align 8\n.type k1_kernel,@function\nk1_kernel:")
    k1_prologue(a)
    a.i("s_cmp_eq_u32 s3, 2")
    a.i("s_cbranch_scc1 K1_kv")
    st = k1_first_pass(a, cfg, False)
    snap = (list(a.vm), a.vm_done, list(a.ds), a.ds_done, dict(a.mfma_w), a.n)
    a.i("s_cmp_eq_u32 s3, 1")
    a.i("s_cbranch_scc1 K1_q")
    k1_later(a, cfg, st, "mlp")
    a.raw(".p2align 6")
    a.label("K1_q")
    a.vm, a.vm_done, a.ds, a.ds_done = list(snap[0]), snap[1], list(snap[2]), snap[3]
    a.mfma_w = {k: a.n - (snap[5] - v) for k, v in snap[4].items()}
    k1_later(a, cfg, st, "q")
    a.raw(".p2align 6")
    a.label("K1_kv")
    k1_kv_head(a)
    st = k1_first_pass(a, cfg, True)
    k1_later(a, cfg, st, "kv")
    a.label("K1_done")
    a.i("s_endpgm")
    return a.text()


class K2Cfg:
    depth = 6
    wdepth = 8
    mode = 1
    nw = 4
    sep = 1
    out_aux = ''


def gen_k2(cfg):
    a = Asm()
    D, DW, NW = cfg.depth, cfg.wdepth, cfg.nw
    NH, NA = 112 // NW, 32 // NW
    C_WS, C_W2, C_WO, C_OUT = 40, 44, 48, 52
    C_W, C_RB, C_CB, C_M0, T0, T1, T2, T3 = 4, 5, 6, 7, 8, 9, 10, 11
    S_HB, S_WB, S_QB, S_OB, S_KVB, C_EPS = 12, 13, 14, 15, 56, 57
    V_L = 1
    V_A0, V_A1, V_WD, V_TR0, V_TR1, V_KVA = 2, 3, 4, 5, 6, 7
    VT = 8
    V_G = 16
    V_RC = 20
    V_KVF = 24
    V_WF = 32
    V_OF = 48
    P = 56
    ACC = 64
    A_ND = 64
    assert 8 * D <= 64
    a.raw(".globl k2_kernel\n.p2align 8\n.type k2_kernel,@function\nk2_kernel:")
    a.i("s_cmp_ge_u32 s2, 256")
    a.i("s_cbranch_scc1 K2_done")
    if DIAG:
        a.i("s_memrealtime s[38:39]")
    a.i("s_load_dwordx2 s[16:17], s[0:1], 16")
    a.i("s_load_dwordx2 s[18:19], s[0:1], 48")
    a.i("s_load_dwordx2 s[20:21], s[0:1], 64")
    a.i("s_load_dwordx2 s[22:23], s[0:1], 80")
    a.i("s_getpc_b64 s[24:25]")
    a.label("K2_pc")
    a.i(f"s_and_b32 s{T0}, s2, 7")
    a.i(f"s_lshr_b32 s{T1}, s2, 3")
    a.i(f"v_and_b32 v{V_L}, 63, v0")
    a.i(f"v_lshrrev_b32 v{VT}, 6, v0")
    a.i(f"s_lshl_b32 s{T2}, s{T1}, 9")
    a.i(f"v_readfirstlane_b32 s{C_W}, v{VT}")
    a.i(f"v_lshlrev_b32 v{VT+1}, 7, v0")
    a.i(f"v_add_u32 v{VT+1}, s{T2}, v{VT+1}")
    a.i(f"v_min_u32 v{VT+1}, CODE_END-K2_pc-4, v{VT+1}")
    a.i("v_cmp_gt_u32 vcc, 4, v0")
    a.i("s_and_saveexec_b64 s[26:27], vcc")
    a.i("s_cbranch_execz K2_nopf")
    a.i(f"global_load_dword v{P+7}, v{VT+1}, s[24:25]")
    a.label("K2_nopf")
    a.i("s_mov_b64 exec, s[26:27]")
    a.vm.append("pf")
    if cfg.mode == 0:
        a.i(f"s_lshr_b32 s{C_RB}, s{T1}, 3")
        a.i(f"s_lshl_b32 s{T2}, s{T0}, 2")
        a.i(f"s_add_u32 s{C_RB}, s{C_RB}, s{T2}")
        a.i(f"s_and_b32 s{C_CB}, s{T1}, 7")
    else:
        a.i(f"s_lshr_b32 s{C_RB}, s{T0}, 1")
        a.i(f"s_lshl_b32 s{C_RB}, s{C_RB}, 3")
        a.i(f"s_lshr_b32 s{T2}, s{T1}, 2")
        a.i(f"s_add_u32 s{C_RB}, s{C_RB}, s{T2}")
        a.i(f"s_and_b32 s{C_CB}, s{T0}, 1")
        a.i(f"s_lshl_b32 s{C_CB}, s{C_CB}, 2")
        a.i(f"s_and_b32 s{T2}, s{T1}, 3")
        a.i(f"s_add_u32 s{C_CB}, s{C_CB}, s{T2}")
    t = VT
    a.i(f"s_mul_i32 s{T0}, s{C_RB}, {2*AF_TT}")
    a.i(f"v_lshlrev_b32 v{V_A0}, 4, v{V_L}")
    a.i(f"v_add_u32 v{V_A0}, s{T0}, v{V_A0}")
    a.i(f"v_add_u32 v{V_A1}, {AF_TT}, v{V_A0}")
    a.i(f"s_mul_i32 s{S_HB}, s{C_W}, {NH*1024}")
    a.i(f"s_mul_i32 s{S_WB}, s{C_W}, {NH*16384}")
    a.i(f"s_mul_i32 s{S_QB}, s{C_W}, {NA*1024}")
    a.i(f"s_add_u32 s{S_QB}, s{S_QB}, {112*1024}")
    a.i(f"s_mul_i32 s{S_OB}, s{C_W}, {NA*16384}")
    a.i(f"s_mul_i32 s{S_KVB}, s{C_W}, {NA*KVT_HEAD}")
    a.i(f"s_add_u32 s{S_KVB}, s{S_KVB}, {KVT_OFF}")
    a.i(f"s_mul_i32 s{C_M0}, s{C_W}, {DW*2048}")
    SEP = cfg.sep and NW * (DW * 2048 + 64 * 272) <= 163840
    if SEP:
        a.i(f"s_add_u32 s{C_M0}, s{C_M0}, {NW*64*272}")
    a.i(f"s_mov_b32 s{C_EPS}, {EPS:#x}")
    a.i(f"v_lshrrev_b32 v{t}, 3, v{V_L}")
    a.i(f"v_and_b32 v{t+1}, 7, v{V_L}")
    a.i(f"v_bfe_u32 v{t+2}, v{V_L}, 4, 1")
    a.i(f"v_lshlrev_b32 v{t+2}, 2, v{t+2}")
    a.i(f"v_xor_b32 v{t+1}, v{t+1}, v{t+2}")
    a.i(f"v_lshlrev_b32 v{t}, 10, v{t}")
    a.i(f"v_lshl_add_u32 v{V_WD}, v{t+1}, 4, v{t}")
    a.i(f"s_lshl_b32 s{T0}, s{C_CB}, 7")
    a.i(f"v_add_u32 v{V_WD}, s{T0}, v{V_WD}")
    a.i("s_waitcnt lgkmcnt(0)")
    srd(a, C_WS, 22, WS_USED)
    srd(a, C_W2, 18, 1792 * 1024)
    srd(a, C_WO, 16, 512 * 1024)

    seq = []
    hq, aq = list(range(NH)), list(range(NA))
    NS = NH + NA
    gap = max((NS - 3) // NA, 2)
    for n in range(NS):
        if aq and n % gap == gap - 1 and n < NS - 2:
            seq.append(("a", aq.pop(0)))
        elif hq:
            seq.append(("h", hq.pop(0)))
        else:
            seq.append(("a", aq.pop(0)))
    assert not hq and not aq

    def issue_w(n):
        kind, k = seq[n]
        d = n % DW
        wb, w = (S_WB, C_W2) if kind == "h" else (S_OB, C_WO)
        for b in range(2):
            a.i(f"s_add_u32 m0, s{C_M0}, {d*2048 + b*1024}")
            a.i(f"s_add_u32 s{T2}, s{wb}, {k*16384 + b*8192}")
            a.vmem(f"s{n}", f"buffer_load_dwordx4 v{V_WD}, s[{w}:{w+3}], s{T2} offen lds")

    def issue(n):
        kind, k = seq[n]
        d = n % D
        ab = S_HB if kind == "h" else S_QB
        a.i(f"s_add_u32 s{T1}, s{ab}, {k*1024}")
        a.vmem(f"s{n}", f"buffer_load_dwordx4 a[{8*d}:{8*d+3}], v{V_A0}, s[{C_WS}:{C_WS+3}], s{T1} offen")
        a.vmem(f"s{n}", f"buffer_load_dwordx4 a[{8*d+4}:{8*d+7}], v{V_A1}, s[{C_WS}:{C_WS+3}], s{T1} offen")

    def kv_issue(k):
        a.i(f"s_add_u32 s{T3}, s{S_KVB}, {k*KVT_HEAD}")
        a.vmem(f"kv{k}", f"buffer_load_dwordx4 v[{VT}:{VT+3}], v{V_KVA}, s[{C_WS}:{C_WS+3}], s{T3} offen")
        a.vmem(f"kv{k}", f"buffer_load_dwordx4 v[{VT+4}:{VT+7}], v{V_KVA}, s[{C_WS}:{C_WS+3}], s{T3} offen offset:16")

    def tr_reads(n):
        d = n % DW
        wf = V_WF + 8 * (n % 2)
        for ct, va in enumerate((V_TR0, V_TR1)):
            for rd in range(2):
                r = wf + 4 * ct + 2 * rd
                a.dsop(f"t{n}", f"ds_read_b64_tr_b16 v[{r}:{r+1}], v{va} offset:{d*2048 + rd*1024}")

    for n in range(max(D, DW)):
        if n < DW:
            issue_w(n)
        if n < D:
            issue(n)
    srd(a, C_OUT, 20, 2048 * 1024)
    u = P
    a.i(f"v_lshrrev_b32 v{u}, 5, v{V_L}")
    a.i(f"v_bfe_u32 v{u+1}, v{V_L}, 2, 2")
    a.i(f"v_lshl_add_u32 v{u}, v{u}, 2, v{u+1}")
    a.i(f"v_bfe_u32 v{u+1}, v{V_L}, 4, 1")
    a.i(f"v_bfe_u32 v{u+2}, v{V_L}, 1, 1")
    a.i(f"v_lshl_add_u32 v{u+1}, v{u+1}, 1, v{u+2}")
    a.i(f"v_bfe_u32 v{u+2}, v{V_L}, 3, 1")
    a.i(f"v_lshlrev_b32 v{u+2}, 2, v{u+2}")
    a.i(f"v_xor_b32 v{u+1}, v{u+1}, v{u+2}")
    a.i(f"v_lshlrev_b32 v{u}, 7, v{u}")
    a.i(f"v_lshl_add_u32 v{u}, v{u+1}, 4, v{u}")
    a.i(f"v_and_b32 v{u+1}, 1, v{V_L}")
    a.i(f"v_lshl_add_u32 v{u}, v{u+1}, 3, v{u}")
    a.i(f"v_add_u32 v{V_TR0}, s{C_M0}, v{u}")
    a.i(f"v_xor_b32 v{u}, 64, v{u}")
    a.i(f"v_add_u32 v{V_TR1}, s{C_M0}, v{u}")
    a.i(f"v_and_b32 v{u}, 31, v{V_L}")
    a.i(f"v_lshrrev_b32 v{u+1}, 5, v{V_L}")
    a.i(f"v_lshl_add_u32 v{u+2}, v{u+1}, 4, v{u}")
    a.i(f"v_add_u32 v{u+1}, 32, v{u+1}")
    a.i(f"v_cmp_gt_u32 vcc, 16, v{u}")
    a.i(f"v_lshlrev_b32 v{V_G+2}, 3, v{u}")
    a.i(f"s_lshl_b32 s{T0}, s{C_RB}, 9")
    a.i(f"s_add_u32 s{T0}, s{T0}, {G_OFF}")
    a.i(f"v_cndmask_b32 v{u+2}, v{u+1}, v{u+2}, vcc")
    a.i(f"v_lshlrev_b32 v{V_KVA}, 5, v{u+2}")
    a.vmem("kv0", f"buffer_load_dword v{V_G}, v{V_G+2}, s[{C_WS}:{C_WS+3}], s{T0} offen")
    a.vmem("kv0", f"buffer_load_dword v{V_G+1}, v{V_G+2}, s[{C_WS}:{C_WS+3}], s{T0} offen offset:256")
    kv_issue(0)
    stamp(a, 1, 60)
    a.wait(vm=["s0"])
    stamp(a, 2, 60)
    tr_reads(0)
    nd_w = {}
    for n in range(NS):
        kind, k = seq[n]
        d = n % D
        if kind == "a":
            a.wait(vm=[f"kv{k}"])
            for j in range(4):
                a.i(f"v_cvt_pk_bf16_f32 v{V_KVF+j}, v{VT+2*j}, v{VT+2*j+1}")
            a.nop(2)
            for tt in range(2):
                b = A_ND + 16 * tt
                a.i(f"v_mfma_f32_32x32x16_bf16 a[{b}:{b+15}], v[{V_KVF}:{V_KVF+3}], a[{8*d+4*tt}:{8*d+4*tt+3}], 0")
                nd_w[tt] = a.n
            if k + 1 < NA:
                kv_issue(k + 1)
        if n + 1 < NS:
            a.wait(vm=[f"s{n+1}"])
            tr_reads(n + 1)
        if kind == "a":
            for tt in range(2):
                g_ = a.n - nd_w[tt]
                if g_ < 13:
                    a.nop(13 - g_)
                a.i(f"v_accvgpr_read_b32 v{V_RC+tt}, a{A_ND+16*tt+8}")
            for tt in range(2):
                a.i(f"v_add_f32 v{V_RC+tt}, s{C_EPS}, v{V_RC+tt}")
            for tt in range(2):
                a.i(f"v_rcp_f32 v{V_RC+tt}, v{V_RC+tt}")
            a.nop(1)
            for tt in range(2):
                a.i(f"v_mul_f32 v{V_RC+tt}, v{V_RC+tt}, v{V_G+tt}")
            for tt in range(2):
                for j in range(8):
                    a.i(f"v_accvgpr_read_b32 v{P+j}, a{A_ND+16*tt+j}")
                for j in range(8):
                    a.i(f"v_mul_f32 v{P+j}, v{P+j}, v{V_RC+tt}")
                for j in range(4):
                    a.i(f"v_cvt_pk_bf16_f32 v{V_OF+4*tt+j}, v{P+2*j}, v{P+2*j+1}")
            a.nop(2)
        a.wait(ds=[f"t{n}"])
        wf = V_WF + 8 * (n % 2)
        for ct in range(2):
            for tt in range(2):
                blk = ACC + 16 * (ct * 2 + tt)
                B = f"v[{V_OF+4*tt}:{V_OF+4*tt+3}]" if kind == "a" else f"a[{8*d+4*tt}:{8*d+4*tt+3}]"
                a.mfma(blk, f"v[{wf+4*ct}:{wf+4*ct+3}]", B, blk if n else None)
        if n + DW < NS:
            issue_w(n + DW)
        if n + D < NS:
            issue(n + D)
    stamp(a, 3, 60)
    PITCH = 272
    WSZ = 64 * PITCH
    TPW = 64 // NW
    a.i(f"v_lshrrev_b32 v{t+1}, 3, v{V_L}")
    a.i(f"s_mul_i32 s{T0}, s{C_W}, {TPW}")
    a.i(f"v_add_u32 v{t+1}, s{T0}, v{t+1}")
    a.i(f"v_lshlrev_b32 v{t+5}, 3, v{t+1}")
    a.i(f"s_lshl_b32 s{T0}, s{C_RB}, 9")
    a.i(f"s_add_u32 s{T0}, s{T0}, {G_OFF + 4}")
    for hf in range(TPW // 8):
        a.i(f"buffer_load_dword v{V_RC+hf}, v{t+5}, s[{C_WS}:{C_WS+3}], s{T0} offen offset:{64*hf}")
    a.i(f"v_and_b32 v{t}, 31, v{V_L}")
    a.i(f"v_lshrrev_b32 v{t+2}, 5, v{V_L}")
    a.i(f"v_mul_u32_u24 v{t}, {PITCH}, v{t}")
    a.i(f"v_lshl_add_u32 v{t}, v{t+2}, 4, v{t}")
    a.i(f"s_mul_i32 s{T0}, s{C_W}, {WSZ}")
    a.i(f"v_add_u32 v{t}, s{T0}, v{t}")
    a.i(f"v_and_b32 v{t+2}, 7, v{V_L}")
    a.i(f"v_mul_u32_u24 v{t+3}, {PITCH}, v{t+1}")
    a.i(f"v_lshl_add_u32 v{t+3}, v{t+2}, 5, v{t+3}")
    a.i(f"v_add_u32 v{t+6}, {3*WSZ}, v{t+3}")
    a.i(f"v_add_u32 v{t+7}, {6*WSZ}, v{t+3}")
    a.i(f"v_lshlrev_b32 v{t+4}, 10, v{t+1}")
    a.i(f"v_lshl_add_u32 v{t+4}, v{t+2}, 4, v{t+4}")
    a.i(f"s_lshl_b32 s{T0}, s{C_RB}, 16")
    a.i(f"s_lshl_b32 s{T1}, s{C_CB}, 7")
    a.i(f"s_add_u32 s{T0}, s{T0}, s{T1}")
    if not SEP:
        a.i("s_waitcnt lgkmcnt(0)")
        a.i("s_barrier")
    for blk in range(4):
        a.need_acc(ACC + 16 * blk, 16)
    for blk in range(4):
        ct, tt = blk >> 1, blk & 1
        for q in range(4):
            r = ACC + 16 * blk + 4 * q
            off = tt * 32 * PITCH + (ct * 32 + 8 * q) * 4
            a.i(f"ds_write_b128 v{t}, v[{r}:{r+3}] offset:{off}")
    a.i("s_waitcnt lgkmcnt(0)")
    a.i("s_barrier")
    R = ACC
    for hf in range(TPW // 8):
        for w in range(NW):
            for p in range(2):
                r = R + hf * 32 + w * 8 + p * 4
                va = (t + 3, t + 6, t + 7)[w // 3]
                a.i(f"ds_read_b128 v[{r}:{r+3}], v{va} offset:{(w % 3) * WSZ + hf * 8 * PITCH + p * 16}")
    a.i("s_waitcnt lgkmcnt(0) vmcnt(0)")
    for hf in range(TPW // 8):
        b = R + hf * 32
        step = 8
        while step < NW * 8:
            for w in range(0, NW * 8, 2 * step):
                for j in range(8):
                    a.i(f"v_add_f32 v{b+w+j}, v{b+w+j}, v{b+w+step+j}")
            step *= 2
        for j in range(8):
            a.i(f"v_mul_f32 v{b+j}, v{b+j}, v{V_RC+hf}")
        for j in range(4):
            a.i(f"v_cvt_pk_bf16_f32 v{b+8+j}, v{b+2*j}, v{b+2*j+1}")
        if hf:
            a.i(f"s_add_u32 s{T0}, s{T0}, 8192")
        a.i(f"buffer_store_dwordx4 v[{b+8}:{b+11}], v{t+4}, s[{C_OUT}:{C_OUT+3}], s{T0} offen {cfg.out_aux}")
    stamp(a, 4, 60)
    stamp_flush(a, 1, 6, C_WS, 60)
    a.label("K2_done")
    a.i("s_endpgm")
    lds = NW * (DW * 2048 + WSZ) if SEP else max(NW * DW * 2048, NW * WSZ)
    return a.text(), lds, NW


def kd(name, nv, accum, nsgpr=102):
    return f""".p2align 6
.amdhsa_kernel {name}
  .amdhsa_next_free_vgpr {nv}
  .amdhsa_next_free_sgpr {nsgpr}
  .amdhsa_accum_offset {accum}
  .amdhsa_group_segment_fixed_size 0
  .amdhsa_kernarg_size 88
  .amdhsa_user_sgpr_count 2
  .amdhsa_user_sgpr_kernarg_segment_ptr 1
  .amdhsa_system_sgpr_workgroup_id_x 1
  .amdhsa_float_denorm_mode_32 3
.end_amdhsa_kernel"""


def build(c1=None, c2=None):
    c1 = c1 or K1Cfg()
    c2 = c2 or K2Cfg()
    k1 = gen_k1(c1)
    k2, lds2, nw2 = gen_k2(c2)
    hdr = f"""; gated_mix: linear attention block + SwiGLU block, gated mix.  Generated by gen/gen8.py
; @launch kernel=k1_kernel grid=(256,1,1) block=(512,1,1) lds={K1_LDS}
; @launch kernel=k2_kernel grid=(256,1,1) block=({nw2*64},1,1) lds={lds2}
.amdgcn_target "amdgcn-amd-amdhsa--gfx950"
.text
"""
    tail = """
.p2align 8
CODE_END:
    s_endpgm
.section .rodata,"a"
"""
    return hdr + k1 + "\n" + k2 + tail + kd("k1_kernel", 256, 128) + "\n" + kd("k2_kernel", 224, 128) + "\n"


if __name__ == "__main__":
    if "--diag" in sys.argv:
        DIAG = True
        sys.argv.remove("--diag")
    c1, c2 = K1Cfg(), K2Cfg()
    for arg in list(sys.argv[1:]):
        if "=" in arg:
            k, v = arg.split("=")
            c = c2 if k.startswith("k2_") else c1
            k = k[3:] if k.startswith("k2_") else k
            setattr(c, k, v if k.endswith("_aux") else int(v))
            sys.argv.remove(arg)
    KROT, NM = c1.krot, c1.nm
    out = sys.argv[1] if len(sys.argv) > 1 else f"cdna_kernels/{NAME}.s"
    open(out, "w").write(build(c1, c2))
    print("wrote", out)
```

```python
import sys

NAME = "gated_mix__linear_attn_block__glu_gated_swiglu__prompt"

AF_OFF = 0
AF_TT = 144 * 1024
AF_SIZE = 64 * AF_TT
KVT_OFF = AF_SIZE
KVT_HEAD = 1152
KVT_SIZE = 32 * KVT_HEAD
G_OFF = KVT_OFF + KVT_SIZE
G_SIZE = 2048 * 8
WS_USED = G_OFF + G_SIZE

STAMP_OFF = 16 << 20
DIAG = False

LOG2E = 0x3FB8AA3B
NLOG2E = 0xBFB8AA3B
EPS = 0x358637BD


class Asm:
    def __init__(self):
        self.L = []
        self.n = 0
        self.vm = []
        self.vm_done = 0
        self.ds = []
        self.ds_done = 0
        self.mfma_w = {}

    def raw(self, s):
        self.L.append(s)

    def i(self, s):
        self.L.append("    " + s)
        self.n += 1

    def label(self, s):
        self.L.append(s + ":")

    def vmem(self, tag, s):
        self.i(s)
        self.vm.append(tag)

    def dsop(self, tag, s):
        self.i(s)
        self.ds.append(tag)

    def _need(self, lst, tags):
        last = -1
        for k, t in enumerate(lst):
            if t in tags:
                last = k
        return last

    def wait(self, vm=(), ds=(), vm_all=False, ds_all=False):
        parts = []
        if vm_all:
            lv = len(self.vm) - 1
        else:
            lv = self._need(self.vm, set(vm)) if vm else -1
        if lv >= self.vm_done:
            n = len(self.vm) - 1 - lv
            assert n <= 63, n
            parts.append(f"vmcnt({n})")
            self.vm_done = lv + 1
        if ds_all:
            ld = len(self.ds) - 1
        else:
            ld = self._need(self.ds, set(ds)) if ds else -1
        if ld >= self.ds_done:
            n = len(self.ds) - 1 - ld
            if n > 15:
                n = 15
                ld = len(self.ds) - 1 - 15
            parts.append(f"lgkmcnt({n})")
            self.ds_done = ld + 1
        if parts:
            self.i("s_waitcnt " + " ".join(parts))

    def nop(self, k):
        while k > 0:
            c = min(k, 16)
            self.L.append(f"    s_nop {c-1}")
            self.n += c
            k -= c

    def mfma(self, d, a, b, c):
        cs = "0" if c is None else f"v[{c}:{c+15}]"
        self.i(f"v_mfma_f32_32x32x16_bf16 v[{d}:{d+15}], {a}, {b}, {cs}")
        self.mfma_w[d] = self.n

    def need_acc(self, d, dist=13):
        if d in self.mfma_w:
            gap = self.n - self.mfma_w[d]
            if gap < dist:
                self.nop(dist - gap)

    def text(self):
        return "\n".join(self.L)


def stamp(a, k, base=16):
    if DIAG:
        a.i(f"s_memrealtime s[{base+2*k}:{base+2*k+1}]")


def stamp_flush(a, kern, nst, ws_ptr_srd, base=16, t0=38):
    if not DIAG:
        return
    a.i("s_waitcnt vmcnt(0)")
    stamp(a, nst - 1, base)
    a.i("s_waitcnt lgkmcnt(0)")
    a.i("v_cmp_eq_u32 vcc, 0, v0")
    a.i("s_and_saveexec_b64 s[94:95], vcc")
    a.i(f"s_cbranch_execz STAMP_skip_{a.n}")
    lbl = f"STAMP_skip_{a.n-1}"
    a.L[-1] = f"    s_cbranch_execz {lbl}"
    a.i(f"s_mov_b32 s{ws_ptr_srd+2}, {STAMP_OFF + 65536}")
    a.i(f"s_lshl_b32 s3, s2, 6")
    a.i(f"s_add_u32 s3, s3, {STAMP_OFF + kern*16384}")
    a.i("v_mov_b32 v2, 0")
    for k in range(nst):
        src = t0 if k == 0 else base + 2 * k
        a.i(f"v_mov_b32 v4, s{src}")
        a.i(f"v_mov_b32 v5, s{src+1}")
        a.i(f"buffer_store_dwordx2 v[4:5], v2, s[{ws_ptr_srd}:{ws_ptr_srd+3}], s3 offen offset:{8*k}")
        a.i("s_nop 1")
    a.label(lbl)


def srd(a, s, ptr, size):
    a.i(f"s_mov_b32 s{s}, s{ptr}")
    a.i(f"s_and_b32 s{s+1}, s{ptr+1}, 0xffff")
    a.i(f"s_mov_b32 s{s+2}, {size}")
    a.i(f"s_mov_b32 s{s+3}, 0x20000")


class K1Cfg:
    store_aux = "sc1"
    fill_per_gap = 28
    ahead = 5
    pf_w2 = True
    krot = 1
    nm = 2
    fill_last = 20
    pf_mode = 1
    pf_round = 1
    shift = 1
    touch_x = 1


S_X, S_A, S_B, S_WS, S_GW, S_DBG, S_W2, S_WO = 40, 44, 48, 52, 56, 60, 64, 68
S_XCD, S_IDX, S_WAVE, S_TILE0, S_PITCH, S_COLA, S_COLB, S_UNIT = 4, 5, 6, 7, 8, 9, 10, 11
S_T0, S_T1, S_T2, S_T3 = 12, 13, 14, 15
S_XKF = 72
S_WK = 80
S_M0X = 88
S_M0W = 89
S_ST = 90
S_C1, S_C2, S_C3 = 91, 92, 93
S_MASK = 94
S_TMP = 96
S_P = 97
S_SAVE = 98
S_PR, S_CT = 100, 101
S_XKP = 30
S_LB = 34

V_LANE = 1
V_WA, V_WB, V_XD = 2, 3, 4
V_WT = 5
V_STO = 6
V_ZS = 7
V_XF = 8
V_T = 12
V_XFR = 20
V_E = 44
V_KV = 48
V_ACC = 64

SLOT = 40960
BUF = [0, SLOT, 2 * SLOT, 3 * SLOT]
K1_LDS = 3 * SLOT + 32768


def dma_stage_ops(i, nm):
    slot = BUF[i % 3]
    ops = []
    for seg, (va, sr) in enumerate(((V_WA, S_A), (V_WB, S_B))):
        ops.append([("s", None, f"s_add_u32 m0, s{S_M0W}, {slot + seg*8192}"),
                    ("s", None, "s_nop 0"),
                    ("v", f"S{i}", f"buffer_load_dwordx4 v{va}, s[{sr}:{sr+3}], s{S_WK+i} offen lds")])
    for m in range(nm):
        ops.append([("s", None, f"s_add_u32 m0, s{S_M0X}, {slot + 16384 + m*8192}"),
                    ("s", None, f"s_add_u32 s{S_TMP}, s{S_TBP}, {m*65536}"),
                    ("s", None, f"s_and_b32 s{S_TMP}, s{S_TMP}, 0x1fffff"),
                    ("s", None, f"s_add_u32 s{S_TMP}, s{S_TMP}, s{S_XKF+i}"),
                    ("v", f"S{i}", f"buffer_load_dwordx4 v{V_XD}, s[{S_X}:{S_X+3}], s{S_TMP} offen lds")])
    return ops


def dma_tile_ops(lj, tile, buf):
    ops = []
    for m in range(4):
        ops.append([("s", None, f"s_add_u32 m0, s{S_M0X}, {buf + m*8192}"),
                    ("s", None, f"s_add_u32 s{S_TMP}, s{S_TB0}, {tile*32768}"),
                    ("s", None, f"s_and_b32 s{S_TMP}, s{S_TMP}, 0x1fffff"),
                    ("s", None, f"s_add_u32 s{S_TMP}, s{S_TMP}, s{S_XKP+m}"),
                    ("v", f"L{lj}", f"buffer_load_dwordx4 v{V_XD}, s[{S_X}:{S_X+3}], s{S_TMP} offen lds")])
    return ops


def emit_group(a, grp):
    for kind, tag, text in grp:
        if kind == "v":
            a.vmem(tag, text)
        else:
            a.i(text)


KROT = 1
NM = 3
SHIFT = 1
TOUCHX = 1
S_TBP, S_TB0, S_TP = 9, 10, 8
S_KR = 39


def k1_prologue(a):
    a.i("s_cmp_ge_u32 s2, 256")
    a.i("s_cbranch_scc1 K1_done")
    if DIAG:
        a.i("s_memrealtime s[38:39]")
    a.i("s_load_dwordx16 s[16:31], s[0:1], 0")
    a.i("s_load_dwordx4 s[32:35], s[0:1], 64")
    a.i("s_load_dwordx2 s[36:37], s[0:1], 80")
    a.i("s_getpc_b64 s[98:99]")
    a.label("K1_pc")
    a.i(f"s_and_b32 s{S_XCD}, s2, 7")
    a.i(f"s_lshr_b32 s{S_IDX}, s2, 3")
    a.i(f"v_and_b32 v{V_LANE}, 63, v0")
    a.i(f"v_lshrrev_b32 v{V_T}, 6, v0")
    a.i(f"s_lshl_b32 s{S_T0}, s{S_IDX}, 11")
    a.i(f"v_readfirstlane_b32 s{S_WAVE}, v{V_T}")
    a.i(f"v_lshlrev_b32 v{V_T+1}, 7, v0")
    a.i(f"v_add_u32 v{V_T+1}, s{S_T0}, v{V_T+1}")
    a.i(f"v_min_u32 v{V_T+1}, CODE_END-K1_pc-4, v{V_T+1}")
    a.i("v_cmp_gt_u32 vcc, 16, v0")
    a.i("s_and_saveexec_b64 s[94:95], vcc")
    a.i("s_cbranch_execz K1_nopf")
    a.i(f"global_load_dword v{V_E}, v{V_T+1}, s[98:99]")
    a.label("K1_nopf")
    a.i("s_mov_b64 exec, s[94:95]")
    a.i(f"s_lshr_b32 s{S_PR}, s{S_WAVE}, 2")
    a.i(f"s_and_b32 s{S_CT}, s{S_WAVE}, 3")
    a.i(f"s_mul_i32 s{S_T0}, s{S_IDX}, 43")
    a.i(f"s_lshr_b32 s{S_T0}, s{S_T0}, 8")
    a.i(f"s_mul_i32 s{S_T1}, s{S_T0}, 6")
    a.i(f"s_sub_u32 s{S_P}, s{S_IDX}, s{S_T1}")
    a.i(f"s_lshl_b32 s{S_T0}, s{S_T0}, 3")
    a.i(f"s_add_u32 s{S_UNIT}, s{S_T0}, s{S_XCD}")
    a.i(f"s_mul_i32 s{S_TILE0}, s{S_P}, 11")
    a.i(f"s_max_u32 s{S_T0}, s{S_P}, 3")
    a.i(f"s_sub_u32 s{S_T0}, s{S_T0}, 3")
    a.i(f"s_sub_u32 s{S_TILE0}, s{S_TILE0}, s{S_T0}")
    a.i(f"s_lshl_b32 s{S_COLA}, s{S_UNIT}, 7")
    a.i(f"s_mov_b32 s{S_COLB}, s{S_COLA}")
    a.i(f"s_sub_u32 s{S_T0}, s{S_UNIT}, 28")
    a.i(f"s_lshl_b32 s{S_T0}, s{S_T0}, 8")
    a.i(f"s_add_u32 s{S_T1}, s{S_T0}, 128")
    a.i(f"s_cmp_ge_u32 s{S_UNIT}, 28")
    a.i(f"s_cselect_b32 s{S_COLA}, s{S_T0}, s{S_COLA}")
    a.i(f"s_cselect_b32 s{S_COLB}, s{S_T1}, s{S_COLB}")
    a.i("s_cselect_b32 s3, 1, 0")
    a.i(f"s_lshl_b32 s{S_T0}, s{S_XCD}, 7")
    a.i(f"s_add_u32 s{S_T1}, s{S_T0}, 2048")
    a.i(f"s_add_u32 s{S_T0}, s{S_T0}, 1024")
    a.i(f"s_sub_u32 s{S_T2}, s{S_IDX}, 24")
    a.i(f"s_lshl_b32 s{S_T3}, s{S_T2}, 3")
    a.i(f"s_cmp_ge_u32 s{S_IDX}, 24")
    a.i(f"s_cselect_b32 s{S_COLA}, s{S_T0}, s{S_COLA}")
    a.i(f"s_cselect_b32 s{S_COLB}, s{S_T1}, s{S_COLB}")
    a.i(f"s_cselect_b32 s{S_P}, s{S_T2}, s{S_P}")
    a.i(f"s_cselect_b32 s{S_TILE0}, s{S_T3}, s{S_TILE0}")
    a.i("s_cselect_b32 s3, 2, s3")
    a.i("s_cmp_eq_u32 s3, 0")
    a.i(f"s_movk_i32 s{S_T0}, 3584")
    a.i(f"s_movk_i32 s{S_T1}, 3072")
    a.i(f"s_cselect_b32 s{S_PITCH}, s{S_T0}, s{S_T1}")
    if SHIFT:
        a.i(f"s_mul_i32 s{S_T2}, s{S_XCD}, 11")
        a.i(f"s_lshr_b32 s{S_T2}, s{S_T2}, 3")
        a.i(f"s_add_u32 s{S_TILE0}, s{S_TILE0}, s{S_T2}")
    a.i(f"s_lshl_b32 s{S_T3}, s{S_PITCH}, 6")
    if KROT:
        a.i(f"s_add_u32 s{S_C1}, s{S_XCD}, s{S_IDX}")
    else:
        a.i(f"s_mov_b32 s{S_C1}, s{S_XCD}")
    for i in range(8):
        a.i(f"s_add_u32 s{S_T0}, s{S_C1}, {i}")
        a.i(f"s_and_b32 s{S_T0}, s{S_T0}, 7")
        a.i(f"s_lshl_b32 s{S_XKF+i}, s{S_T0}, 7")
        a.i(f"s_mul_i32 s{S_WK+i}, s{S_T0}, s{S_T3}")
    a.i(f"s_lshl_b32 s{S_M0W}, s{S_WAVE}, 10")
    a.i(f"s_lshl_b32 s{S_M0X}, s{S_PR}, 12")
    a.i(f"s_lshl_b32 s{S_T0}, s{S_CT}, 10")
    a.i(f"s_add_u32 s{S_M0X}, s{S_M0X}, s{S_T0}")
    t = V_T
    a.i(f"v_lshrrev_b32 v{t}, 3, v{V_LANE}")
    a.i(f"v_and_b32 v{t+1}, 7, v{V_LANE}")
    a.i(f"v_bfe_u32 v{t+2}, v{V_LANE}, 4, 1")
    a.i(f"v_lshlrev_b32 v{t+2}, 1, v{t+2}")
    a.i(f"v_xor_b32 v{t+3}, v{t+1}, v{t+2}")
    a.i(f"v_xor_b32 v{t+4}, 4, v{t+3}")
    a.i(f"s_lshl_b32 s{S_T0}, s{S_WAVE}, 3")
    a.i(f"v_add_u32 v{t+5}, s{S_T0}, v{t}")
    a.i(f"v_mul_lo_u32 v{t+5}, v{t+5}, s{S_PITCH}")
    a.i(f"v_lshl_add_u32 v{V_WA}, v{t+3}, 4, v{t+5}")
    a.i(f"v_add_u32 v{V_WA}, s{S_COLA}, v{V_WA}")
    a.i(f"v_lshl_add_u32 v{V_WB}, v{t+4}, 4, v{t+5}")
    a.i(f"v_add_u32 v{V_WB}, s{S_COLB}, v{V_WB}")
    a.i(f"s_lshl_b32 s{S_T0}, s{S_CT}, 3")
    a.i(f"v_add_u32 v{t+5}, s{S_T0}, v{t}")
    a.i(f"v_bfe_u32 v{t+6}, v{t+5}, 1, 3")
    a.i(f"v_xor_b32 v{t+6}, v{t+6}, v{t+1}")
    a.i(f"v_lshlrev_b32 v{t+5}, 10, v{t+5}")
    a.i(f"v_lshl_add_u32 v{V_XD}, v{t+6}, 4, v{t+5}")
    a.i("s_waitcnt lgkmcnt(0)")
    a.i("s_cmp_eq_u32 s3, 0")
    a.i(f"s_cselect_b32 s{S_A}, s24, s18")
    a.i(f"s_cselect_b32 s{S_A+1}, s25, s19")
    a.i(f"s_cselect_b32 s{S_B}, s26, s18")
    a.i(f"s_cselect_b32 s{S_B+1}, s27, s19")
    a.i(f"s_lshl_b32 s{S_A+2}, s{S_PITCH}, 9")
    a.i(f"s_and_b32 s{S_A+1}, s{S_A+1}, 0xffff")
    a.i(f"s_and_b32 s{S_B+1}, s{S_B+1}, 0xffff")
    a.i(f"s_mov_b32 s{S_B+2}, s{S_A+2}")
    a.i(f"s_mov_b32 s{S_A+3}, 0x20000")
    a.i(f"s_mov_b32 s{S_B+3}, 0x20000")
    srd(a, S_X, 16, 2048 * 1024)
    a.i(f"s_add_u32 s{S_TP}, s{S_TILE0}, s{S_PR}")
    a.i(f"s_lshl_b32 s{S_TBP}, s{S_TP}, 15")
    a.i(f"s_lshl_b32 s{S_TB0}, s{S_TILE0}, 15")
    for i in range(3):
        ops = dma_stage_ops(i, 3)
        for grp in ops[:-1]:
            emit_group(a, grp)
        if NM == 3:
            a.i("s_cmp_eq_u32 s3, 2")
            a.i(f"s_cbranch_scc1 K1_skip{i}")
            emit_group(a, ops[-1])
            a.label(f"K1_skip{i}")
    srd(a, S_WS, 36, WS_USED)
    srd(a, S_GW, 30, 1024)
    srd(a, S_DBG, 34, 256)
    srd(a, S_W2, 28, 1792 * 1024)
    srd(a, S_WO, 20, 512 * 1024)
    if TOUCHX:
        a.i(f"s_lshl_b32 s{S_T0}, s2, 3")
        a.i(f"s_add_u32 s{S_T0}, s{S_T0}, s{S_WAVE}")
        a.i(f"s_lshl_b32 s{S_T0}, s{S_T0}, 10")
        a.i(f"v_lshlrev_b32 v{V_E+1}, 7, v{V_LANE}")
        a.i("s_mov_b64 exec, 0xff")
        a.i(f"buffer_load_dword v{V_E+2}, v{V_E+1}, s[{S_X}:{S_X+3}], s{S_T0} offen")
        a.i("s_mov_b64 exec, -1")
    for m in range(4):
        a.i(f"s_add_u32 s{S_T0}, s{S_C1}, s{S_PR}")
        a.i(f"s_add_u32 s{S_T0}, s{S_T0}, {2*m}")
        a.i(f"s_and_b32 s{S_T0}, s{S_T0}, 7")
        a.i(f"s_lshl_b32 s{S_XKP+m}, s{S_T0}, 7")
    a.i(f"s_mov_b32 s{S_C1}, {LOG2E:#x}")
    a.i(f"s_mov_b32 s{S_C2}, {NLOG2E:#x}")
    a.i(f"s_mov_b32 s{S_C3}, {EPS:#x}")
    a.i(f"v_lshlrev_b32 v{V_STO}, 4, v{V_LANE}")
    a.i(f"v_and_b32 v{t}, 31, v{V_LANE}")
    a.i(f"v_lshrrev_b32 v{t+1}, 5, v{V_LANE}")
    a.i(f"v_bfe_u32 v{t+2}, v{t}, 1, 3")
    a.i(f"v_xor_b32 v{t+2}, v{t+2}, v{t+1}")
    a.i(f"v_lshlrev_b32 v{t}, 7, v{t}")
    a.i(f"s_lshl_b32 s{S_T0}, s{S_PR}, 12")
    a.i(f"v_add_u32 v{t}, s{S_T0}, v{t}")
    for s in range(4):
        a.i(f"v_xor_b32 v{t+3}, {2*s}, v{t+2}")
        a.i(f"v_lshl_add_u32 v{V_XF+s}, v{t+3}, 4, v{t}")
    a.i(f"v_bfe_u32 v{t}, v{V_LANE}, 4, 1")
    a.i(f"v_lshrrev_b32 v{t+1}, 5, v{V_LANE}")
    a.i(f"v_bfe_u32 v{t+2}, v{V_LANE}, 2, 2")
    a.i(f"v_bfe_u32 v{t+3}, v{V_LANE}, 1, 1")
    a.i(f"s_lshl_b32 s{S_T0}, s{S_CT}, 1")
    a.i(f"v_add_u32 v{t+3}, s{S_T0}, v{t+3}")
    a.i(f"v_bfe_u32 v{t+4}, v{V_LANE}, 3, 1")
    a.i(f"v_lshlrev_b32 v{t+4}, 1, v{t+4}")
    a.i(f"v_lshl_add_u32 v{t+4}, v{t}, 2, v{t+4}")
    a.i(f"v_xor_b32 v{t+3}, v{t+3}, v{t+4}")
    a.i(f"v_lshlrev_b32 v{t+5}, 13, v{t}")
    a.i(f"v_lshl_add_u32 v{t+5}, v{t+1}, 10, v{t+5}")
    a.i(f"v_lshl_add_u32 v{t+5}, v{t+2}, 7, v{t+5}")
    a.i(f"v_lshl_add_u32 v{t+5}, v{t+3}, 4, v{t+5}")
    a.i(f"v_and_b32 v{t+6}, 1, v{V_LANE}")
    a.i(f"v_lshl_add_u32 v{V_WT}, v{t+6}, 3, v{t+5}")
    cur0, cur1 = BUF[1], BUF[1] + 4096
    b0 = [BUF[3], BUF[0], BUF[3], BUF[0]]
    b1 = [BUF[2], BUF[1], BUF[2], BUF[1]]
    a.i(f"s_cmp_eq_u32 s{S_PR}, 0")
    for r in range(4):
        d0 = (b0[r] - cur0) & 0xffffffff
        d1 = (b1[r] - cur1) & 0xffffffff
        cur0, cur1 = b0[r], b1[r]
        a.i(f"s_mov_b32 s{S_T0}, {d0:#x}")
        a.i(f"s_mov_b32 s{S_T1}, {d1:#x}")
        a.i(f"s_cselect_b32 s{S_LB+r}, s{S_T0}, s{S_T1}")


def mk_ops(chk_blks):
    ops = []

    def V(cost, s, chk=False):
        def f(a, s=s, chk=chk):
            if chk:
                for b in chk_blks:
                    a.need_acc(b)
            a.i(s)
        ops.append((cost, f))
    return ops, V


def epi_mlp(cfg, acc, m):
    ops, V = mk_ops([acc])
    for r in range(8):
        V(4, f"v_mul_f32 v{acc+8+r}, v{acc+r}, v{acc+8+r}", chk=True)
    for r in range(8):
        V(4, f"v_mul_f32 v{acc+r}, s{S_C2}, v{acc+r}")
    for r in range(8):
        V(8, f"v_exp_f32 v{acc+r}, v{acc+r}")
    for r in range(8):
        V(4, f"v_add_f32 v{acc+r}, 1.0, v{acc+r}")
    for r in range(8):
        V(8, f"v_rcp_f32 v{acc+r}, v{acc+r}")
    for r in range(8):
        V(4, f"v_mul_f32 v{acc+8+r}, v{acc+r}, v{acc+8+r}")
    for j in range(4):
        V(4, f"v_cvt_pk_bf16_f32 v{acc+j}, v{acc+8+2*j}, v{acc+9+2*j}")

    def st(a):
        a.i(f"s_add_u32 s{S_TMP}, s{S_TP}, {2*m}")
        a.i(f"s_and_b32 s{S_TMP}, s{S_TMP}, 63")
        a.i(f"s_mul_i32 s{S_TMP}, s{S_TMP}, {AF_TT}")
        a.i(f"s_add_u32 s{S_TMP}, s{S_TMP}, s{S_ST}")
        a.vmem("st", f"buffer_store_dwordx4 v[{acc}:{acc+3}], v{V_STO}, s[{S_WS}:{S_WS+3}], s{S_TMP} offen {cfg.store_aux}")
        a.nop(1)
    ops.append((12, st))
    return ops


def phi_ops(V, regs, tmp):
    for k, r in enumerate(regs):
        V(4, f"v_mul_f32 v{tmp+k}, s{S_C1}, v{r}", chk=True)
    for k, r in enumerate(regs):
        V(8, f"v_exp_f32_e64 v{tmp+k}, v{tmp+k} clamp")
    for k, r in enumerate(regs):
        V(4, f"v_max_f32 v{r}, 0, v{r}")
    for k, r in enumerate(regs):
        V(4, f"v_add_f32 v{r}, v{r}, v{tmp+k}")
    for k, r in enumerate(regs):
        V(4, f"v_add_f32 v{r}, s{S_C3}, v{r}")


def epi_q(cfg, acc, m):
    ops, V = mk_ops([acc])
    for half in range(2):
        regs = [acc + 8 * half + r for r in range(8)]
        phi_ops(V, regs, V_T)
        o = acc + 8 * half
        for j in range(4):
            V(4, f"v_cvt_pk_bf16_f32 v{o+j}, v{regs[2*j]}, v{regs[2*j+1]}")

        def st(a, o=o, half=half):
            a.i(f"s_add_u32 s{S_TMP}, s{S_TP}, {2*m}")
            a.i(f"s_and_b32 s{S_TMP}, s{S_TMP}, 63")
            a.i(f"s_mul_i32 s{S_TMP}, s{S_TMP}, {AF_TT}")
            a.i(f"s_add_u32 s{S_TMP}, s{S_TMP}, s{S_ST}")
            if half:
                a.i(f"s_add_u32 s{S_TMP}, s{S_TMP}, 4096")
            a.vmem("st", f"buffer_store_dwordx4 v[{o}:{o+3}], v{V_STO}, s[{S_WS}:{S_WS+3}], s{S_TMP} offen {cfg.store_aux}")
            a.nop(1)
        ops.append((12, st))
    return ops


def epi_kv(cfg, acc0, acc1, first):
    ops, V = mk_ops([acc0, acc1])
    for r in range(16):
        V(4, f"v_permlane16_swap_b32 v{acc0+r}, v{acc1+r}", chk=True)
    for half in range(2):
        phi_ops(V, [acc0 + 8 * half + r for r in range(8)], V_T)
    for j in range(8):
        V(4, f"v_cvt_pk_bf16_f32 v{acc1+j}, v{acc1+2*j}, v{acc1+2*j+1}")
    for r in range(16):
        if first and r == 0:
            V(4, f"v_mov_b32 v{V_ZS}, v{acc0}")
        else:
            V(4, f"v_add_f32 v{V_ZS}, v{V_ZS}, v{acc0+r}")
    for j in range(8):
        V(4, f"v_cvt_pk_bf16_f32 v{acc0+j}, v{acc0+2*j}, v{acc0+2*j+1}")

    def mm(a):
        a.nop(2)
        a.mfma(V_KV, f"v[{acc0}:{acc0+3}]", f"v[{acc1}:{acc1+3}]", None if first else V_KV)
        a.mfma(V_KV, f"v[{acc0+4}:{acc0+7}]", f"v[{acc1+4}:{acc1+7}]", V_KV)
    ops.append((24, mm))
    return ops


class K1State:
    pass


def k1_first_pass(a, cfg, kv):
    nm = 2 if kv else NM
    nl = 4 if kv else 11 - 2 * NM
    n1 = 2 * nm
    acc_blk = [V_ACC + 16 * k for k in range(4)]
    lbuf = [BUF[3], BUF[2], BUF[0], BUF[1], BUF[3], BUF[2], BUF[0]]
    a.vm, a.vm_done, a.ds, a.ds_done, a.mfma_w = ["pf"], 0, [], 0, {}
    for i in range(3):
        for grp in dma_stage_ops(i, nm):
            a.vm.append(f"S{i}")

    def opnds(q, xf):
        w = f"a[{4*q}:{4*q+3}]"
        x = f"v[{xf}:{xf+3}]"
        return (x, w) if kv else (w, x)

    def fp_reads(n):
        i, s = divmod(n, 4)
        L = []
        for rd in range(2):
            L.append((f"w{n}", f"ds_read_b64_tr_b16 a[{4*n+2*rd}:{4*n+2*rd+1}], v{V_WT} offset:{s*2048 + rd*512}"))
        for m in range(nm):
            xf = V_XFR + (n % 2) * 12 + 4 * m
            L.append((f"x{n}_{m}", f"ds_read_b128 v[{xf}:{xf+3}], v{V_XF+s} offset:{16384 + m*8192}"))
        return L

    st = K1State()
    st.nm, st.nl, st.n1, st.acc_blk, st.lbuf, st.opnds, st.kv = nm, nl, n1, acc_blk, lbuf, opnds, kv
    stamp(a, 1)
    a.wait(vm=["S0"])
    a.i("s_barrier")
    stamp(a, 2)
    for tag, text in fp_reads(0):
        a.dsop(tag, text)
    dma_q = []
    for n in range(32):
        i, s = divmod(n, 4)
        pre = []
        if s == 3:
            a.wait(ds_all=True)
            tgs = [f"S{i+1}"] if i < 7 else ["L0", "L1"]
            for tg in tgs:
                assert not any(op[1] == tg for g in dma_q for op in g), tg
                assert tg in a.vm
            a.wait(vm=tgs)
            a.i("s_barrier")
            if kv and i == 2:
                a.i(f"s_or_b32 s{S_T0}, s{S_P}, s{S_PR}")
                a.i(f"s_cmp_lg_u32 s{S_T0}, 0")
                a.i("s_cbranch_scc1 K1_kv_noflag")
                a.i("s_mov_b64 exec, 1")
                a.i(f"v_mov_b32 v{V_T}, 1")
                a.i(f"v_mov_b32 v{V_T+1}, 0")
                a.i(f"buffer_store_dword v{V_T}, v{V_T+1}, s[{S_DBG}:{S_DBG+3}], s{S_UNIT} offen sc1")
                a.i("s_mov_b64 exec, -1")
                a.label("K1_kv_noflag")
            if i + 3 <= 7:
                dma_q += dma_stage_ops(i + 3, nm)
            if i == 4:
                dma_q += dma_tile_ops(0, n1, lbuf[0])
            if i >= 5:
                dma_q += dma_tile_ops(i - 4, n1 + i - 4, lbuf[i - 4])
            if i < 7:
                d = (BUF[(i + 1) % 3] - BUF[i % 3]) & 0xffffffff
                pre = [f"v_add_u32 v{r}, {d:#x}, v{r}" for r in (V_WT, V_XF, V_XF + 1, V_XF + 2, V_XF + 3)]
            else:
                pre = [f"v_add_u32 v{r}, s{S_LB}, v{r}" for r in (V_XF, V_XF + 1, V_XF + 2, V_XF + 3)]
        for p in pre:
            a.i(p)
        if n < 31:
            fill = fp_reads(n + 1)
        else:
            fill = [lp_read(0, q) for q in range(3)]
        for m in range(nm):
            a.wait(ds=[f"w{n}", f"x{n}_{m}"])
            A, B = opnds(n, V_XFR + (n % 2) * 12 + 4 * m)
            a.mfma(acc_blk[m], A, B, None if n == 0 else acc_blk[m])
            k = 0
            while fill and k < 2:
                tag, text = fill.pop(0)
                a.dsop(tag, text)
                k += 1
            if dma_q:
                emit_group(a, dma_q.pop(0))
        while fill:
            tag, text = fill.pop(0)
            a.dsop(tag, text)
    st.dma_q = dma_q
    stamp(a, 3)
    return st


RING = 6


def lp_read(rd, q):
    i, s = divmod(q, 4)
    xf = V_XFR + 4 * ((rd * 32 + q) % RING)
    return (f"l{rd}_{q}", f"ds_read_b128 v[{xf}:{xf+3}], v{V_XF+s} offset:{i*4096}")


def k1_later(a, cfg, st, typ):
    nm, nl, n1, acc_blk, lbuf, opnds = st.nm, st.nl, st.n1, st.acc_blk, st.lbuf, st.opnds
    dma_q = list(st.dma_q)
    AH = cfg.ahead
    if typ == "mlp":
        a.i(f"s_lshl_b32 s{S_T0}, s{S_UNIT}, 2")
        a.i(f"s_add_u32 s{S_T0}, s{S_T0}, s{S_CT}")
    elif typ == "q":
        a.i(f"s_lshl_b32 s{S_T0}, s{S_UNIT}, 3")
        a.i(f"s_add_u32 s{S_T0}, s{S_T0}, s{S_CT}")
        a.i(f"s_sub_u32 s{S_T0}, s{S_T0}, {28*8-112}")
    if typ != "kv":
        a.i(f"s_lshl_b32 s{S_ST}, s{S_T0}, 10")
        if AF_OFF:
            a.i(f"s_add_u32 s{S_ST}, s{S_ST}, {AF_OFF}")
    for q in range(3, AH):
        tag, text = lp_read(0, q)
        a.dsop(tag, text)
    epi = []
    free_blk = acc_blk[nm:]

    def push_epi(blks, m, first=False):
        if typ == "mlp":
            ops = epi_mlp(cfg, blks[0], m)
        elif typ == "q":
            ops = epi_q(cfg, blks[0], m)
        else:
            ops = epi_kv(cfg, blks[0], blks[1], first)

        def rel(a, blks=blks):
            free_blk.extend(blks)
        ops.append((0, rel))
        epi.extend(ops)

    if typ == "kv":
        push_epi([acc_blk[0], acc_blk[1]], 0, first=True)
    else:
        for m in range(nm):
            push_epi([acc_blk[m]], m)
    extra = []
    if cfg.pf_w2 and typ != "kv":
        extra = pf_w2_ops(cfg)
    nrounds = (nl + 1) // 2
    pend = []

    def drain():
        while epi:
            c, f = epi.pop(0)
            f(a)

    for rd in range(nrounds):
        last_odd = (2 * rd + 1 >= nl)
        if last_odd:
            snap = (list(a.vm), a.vm_done, list(a.ds), a.ds_done, dict(a.mfma_w), list(epi), list(free_blk), a.n)
            a.i(f"s_cmp_eq_u32 s{S_PR}, 0")
            a.i(f"s_cbranch_scc1 K1_{typ}_last")
            stamp(a, 4)
            drain()
            stamp(a, 5)
            stamp_flush(a, 0, 7, S_WS)
            a.i("s_endpgm")
            a.label(f"K1_{typ}_last")
            a.vm, a.vm_done, a.ds, a.ds_done, a.mfma_w = snap[0], snap[1], snap[2], snap[3], snap[4]
            epi[:] = snap[5]
            free_blk[:] = snap[6]
            a.mfma_w = {k: a.n - (snap[7] - v) for k, v in snap[4].items()}
        while not free_blk:
            c, f = epi.pop(0)
            f(a)
        blk = free_blk.pop(0)
        has_next = rd + 1 < nrounds
        for q in range(32):
            if q == 32 - AH and has_next:
                tgs = [f"L{j}" for j in (2 * rd + 2, 2 * rd + 3) if j < nl]
                for tg in tgs:
                    assert not any(op[1] == tg for g in dma_q for op in g), tg
                    assert tg in a.vm
                a.wait(vm=tgs, ds_all=True)
                a.i("s_barrier")
                for nxt in (2 * rd + 4, 2 * rd + 5):
                    if nxt < nl:
                        dma_q += dma_tile_ops(nxt, n1 + nxt, lbuf[nxt])
                for r in range(4):
                    a.i(f"v_add_u32 v{V_XF+r}, s{S_LB+rd+1}, v{V_XF+r}")
            a.wait(ds=[f"l{rd}_{q}"])
            A, B = opnds(q, V_XFR + 4 * ((rd * 32 + q) % RING))
            a.mfma(blk, A, B, None if q == 0 else blk)
            if q + AH < 32:
                tag, text = lp_read(rd, q + AH)
                a.dsop(tag, text)
            elif has_next:
                tag, text = lp_read(rd + 1, q + AH - 32)
                a.dsop(tag, text)
            budget = cfg.fill_last if last_odd else cfg.fill_per_gap
            if dma_q:
                emit_group(a, dma_q.pop(0))
                budget -= 16
            elif extra and rd == cfg.pf_round and q % 2 == 0:
                emit_group(a, extra.pop(0))
                budget -= 16
            while epi and budget > 0:
                c, f = epi[0]
                if c > budget and budget < 16:
                    break
                epi.pop(0)
                f(a)
                budget -= c
        pend.append(blk)
        if typ == "kv":
            if len(pend) == 2:
                push_epi(pend, 0)
                pend = []
        else:
            push_epi(pend, nm + rd)
            pend = []
    assert not dma_q and not extra
    stamp(a, 4)
    if typ == "kv":
        k1_g_loads(a)
    drain()
    if typ == "kv":
        k1_kv_tail(a)
        k1_g_compute(a)
    stamp(a, 5)
    stamp_flush(a, 0, 7, S_WS)
    a.i("s_endpgm")


def pf_w2_ops(cfg):
    ops = []
    if cfg.pf_mode == 0:
        ops.append([("s", None, f"s_lshl_b32 s{S_T0}, s2, 3"),
                    ("s", None, f"s_add_u32 s{S_T0}, s{S_T0}, s{S_WAVE}"),
                    ("s", None, f"s_lshl_b32 s{S_T0}, s{S_T0}, 11"),
                    ("s", None, f"v_lshlrev_b32 v{V_E+1}, 7, v{V_LANE}"),
                    ("s", None, f"s_sub_u32 s{S_T1}, s{S_T0}, {1792*1024}"),
                    ("s", None, "s_mov_b64 exec, 0xffff"),
                    ("v", "pf", f"buffer_load_dword v{V_E}, v{V_E+1}, s[{S_W2}:{S_W2+3}], s{S_T0} offen"),
                    ("v", "pf", f"buffer_load_dword v{V_E}, v{V_E+1}, s[{S_WO}:{S_WO+3}], s{S_T1} offen"),
                    ("s", None, "s_mov_b64 exec, -1")])
    else:
        ops.append([("s", None, f"s_lshl_b32 s{S_T0}, s{S_IDX}, 3"),
                    ("s", None, f"s_add_u32 s{S_T0}, s{S_T0}, s{S_WAVE}"),
                    ("s", None, f"s_mul_i32 s{S_T0}, s{S_T0}, {12*1024}"),
                    ("s", None, f"s_and_b32 s{S_T1}, s{S_XCD}, 1"),
                    ("s", None, f"s_lshl_b32 s{S_T1}, s{S_T1}, 9"),
                    ("s", None, f"s_add_u32 s{S_T0}, s{S_T0}, s{S_T1}"),
                    ("s", None, f"v_lshrrev_b32 v{V_E+1}, 2, v{V_LANE}"),
                    ("s", None, f"v_lshlrev_b32 v{V_E+1}, 10, v{V_E+1}"),
                    ("s", None, f"v_and_b32 v{V_E+2}, 3, v{V_LANE}"),
                    ("s", None, f"v_lshl_add_u32 v{V_E+1}, v{V_E+2}, 7, v{V_E+1}"),
                    ("s", None, f"v_add_u32 v{V_E+1}, s{S_T0}, v{V_E+1}"),
                    ("s", None, f"v_subrev_u32 v{V_E+2}, {1792*1024}, v{V_E+1}"),
                    ("s", None, "s_mov_b32 exec_hi, 0xffff"),
                    ("v", "pf", f"buffer_load_dword v{V_E}, v{V_E+1}, s[{S_W2}:{S_W2+3}], 0 offen"),
                    ("v", "pf", f"buffer_load_dword v{V_E}, v{V_E+2}, s[{S_WO}:{S_WO+3}], 0 offen"),
                    ("s", None, "s_mov_b64 exec, -1")])
    return ops


def k1_kv_head(a):
    a.i(f"s_lshl_b32 s{S_T0}, s{S_XCD}, 2")
    a.i(f"s_add_u32 s{S_T0}, s{S_T0}, s{S_CT}")
    a.i(f"s_lshl_b32 s{S_UNIT}, s{S_T0}, 2")
    a.i(f"s_mul_i32 s{S_ST}, s{S_T0}, {KVT_HEAD}")
    a.i(f"s_add_u32 s{S_ST}, s{S_ST}, {KVT_OFF}")
    a.i(f"s_or_b32 s{S_T0}, s{S_P}, s{S_PR}")
    a.i(f"s_cmp_lg_u32 s{S_T0}, 0")
    a.i("s_cbranch_scc1 K1_kv_nozero")
    a.i(f"v_lshlrev_b32 v{V_T}, 3, v{V_LANE}")
    for k in range(6):
        a.i(f"v_mov_b32 v{V_KV+k}, 0")
    a.i(f"buffer_atomic_swap_x2 v[{V_KV}:{V_KV+1}], v{V_T}, s[{S_WS}:{S_WS+3}], s{S_ST} offen sc0")
    a.i(f"buffer_atomic_swap_x2 v[{V_KV+2}:{V_KV+3}], v{V_T}, s[{S_WS}:{S_WS+3}], s{S_ST} offen offset:512 sc0")
    a.i("s_mov_b64 exec, 0xffff")
    a.i(f"buffer_atomic_swap_x2 v[{V_KV+4}:{V_KV+5}], v{V_T}, s[{S_WS}:{S_WS+3}], s{S_ST} offen offset:1024 sc0")
    a.i("s_mov_b64 exec, -1")
    a.label("K1_kv_nozero")


def k1_kv_tail(a):
    t = V_T
    B = V_ACC
    a.need_acc(V_KV, 16)
    for r in range(8):
        a.i(f"v_permlane16_swap_b32 v{V_KV+8+r}, v{t+r}")
    a.i(f"v_mov_b32 v{B}, v{V_ZS}")
    a.nop(2)
    a.i(f"v_permlane16_swap_b32 v{B}, v{V_ZS}")
    a.nop(1)
    a.i(f"v_add_f32 v{V_ZS}, v{V_ZS}, v{B}")
    a.i(f"v_mov_b32 v{B}, v{V_ZS}")
    a.nop(2)
    a.i(f"v_permlane32_swap_b32 v{B}, v{V_ZS}")
    a.nop(1)
    a.i(f"v_add_f32 v{V_ZS}, v{V_ZS}, v{B}")
    for r in range(8):
        a.i(f"v_add_f32 v{V_KV+r}, v{V_KV+r}, v{t+r}")
    a.i(f"s_mul_i32 s{S_T1}, s{S_WAVE}, {KVT_HEAD}")
    a.i(f"s_add_u32 s{S_T1}, s{S_T1}, {BUF[3]}")
    a.i(f"v_and_b32 v{B}, 15, v{V_LANE}")
    a.i(f"v_lshrrev_b32 v{B+1}, 5, v{V_LANE}")
    a.i(f"v_lshl_add_u32 v{B+1}, v{B+1}, 4, v{B}")
    a.i(f"v_lshlrev_b32 v{B+1}, 5, v{B+1}")
    a.i(f"v_add_u32 v{B+1}, s{S_T1}, v{B+1}")
    a.i(f"v_and_b32 v{B+2}, 3, v{B}")
    a.i(f"v_lshrrev_b32 v{B+3}, 3, v{B}")
    a.i(f"v_lshl_add_u32 v{B+2}, v{B+3}, 2, v{B+2}")
    a.i(f"v_bfe_u32 v{B+3}, v{B}, 2, 1")
    a.i(f"v_lshl_add_u32 v{B+2}, v{B+3}, 3, v{B+2}")
    a.i(f"v_lshlrev_b32 v{B+2}, 2, v{B+2}")
    a.i(f"v_add_u32 v{B+2}, s{S_T1}, v{B+2}")
    a.i(f"v_lshlrev_b32 v{B+4}, 2, v{V_LANE}")
    a.i(f"v_add_u32 v{B+3}, s{S_T1}, v{B+4}")
    a.i(f"s_mov_b32 s{S_MASK}, 0xffff")
    a.i(f"s_mov_b32 s{S_MASK+1}, 0xffff")
    a.i(f"s_mov_b64 exec, s[{S_MASK}:{S_MASK+1}]")
    a.i(f"ds_write_b128 v{B+1}, v[{V_KV}:{V_KV+3}]")
    a.i(f"ds_write_b128 v{B+1}, v[{V_KV+4}:{V_KV+7}] offset:16")
    a.i("s_mov_b64 exec, 0xffff")
    a.i(f"ds_write_b32 v{B+2}, v{V_ZS} offset:1024")
    a.i("s_mov_b64 exec, -1")
    a.i("s_waitcnt lgkmcnt(0)")
    for k in range(5):
        a.i(f"ds_read_b32 v{B+8+k}, v{B+3} offset:{256*k}")
    a.label("K1_kv_poll")
    a.i("s_mov_b64 exec, 1")
    a.i(f"v_mov_b32 v{t+1}, 0")
    a.i(f"buffer_load_dword v{t}, v{t+1}, s[{S_DBG}:{S_DBG+3}], s{S_UNIT} offen sc1")
    a.i("s_waitcnt vmcnt(0)")
    a.i(f"v_readfirstlane_b32 s{S_T0}, v{t}")
    a.i("s_mov_b64 exec, -1")
    a.i(f"s_cmp_lg_u32 s{S_T0}, 0")
    a.i("s_cbranch_scc1 K1_kv_go")
    a.i("s_sleep 8")
    a.i("s_branch K1_kv_poll")
    a.label("K1_kv_go")
    a.vm_done = len(a.vm)
    a.i("s_waitcnt lgkmcnt(0)")
    for k in range(5):
        if k == 4:
            a.i("s_mov_b64 exec, 0xffff")
        a.vmem("at", f"buffer_atomic_add_f32 v{B+8+k}, v{B+4}, s[{S_WS}:{S_WS+3}], s{S_ST} offen offset:{256*k}")
    a.i("s_mov_b64 exec, -1")


def k1_g_loads(a):
    a.i(f"s_lshl_b32 s{S_T0}, s{S_P}, 8")
    a.i(f"s_lshl_b32 s{S_T1}, s{S_XCD}, 5")
    a.i(f"s_add_u32 s{S_T0}, s{S_T0}, s{S_T1}")
    a.i(f"s_lshl_b32 s{S_T1}, s{S_WAVE}, 2")
    a.i(f"s_add_u32 s{S_T2}, s{S_T0}, s{S_T1}")
    a.i(f"s_lshl_b32 s{S_T0}, s{S_T2}, 10")
    e = V_XFR
    a.nop(4)
    a.vmem("g", f"buffer_load_dwordx4 v[{e}:{e+3}], v{V_STO}, s[{S_GW}:{S_GW+3}], 0 offen")
    for k in range(4):
        a.vmem("g", f"buffer_load_dwordx4 v[{e+4+4*k}:{e+7+4*k}], v{V_STO}, s[{S_X}:{S_X+3}], s{S_T0} offen offset:{1024*k}")


def k1_g_compute(a):
    e = V_XFR
    a.wait(vm=["g"])
    t = V_ACC + 16
    R = [V_ACC + 24 + k for k in range(4)]
    for j in range(4):
        for k in range(4):
            a.i(f"v_dot2_f32_bf16 v{R[k]}, v{e+4+4*k+j}, v{e+j}, " + ("0" if j == 0 else f"v{R[k]}"))
    a.nop(4)
    for mod in ("row_shr:1", "row_shr:2", "row_shr:4", "row_shr:8"):
        for r in R:
            a.i(f"v_add_f32_dpp v{r}, v{r}, v{r} {mod} row_mask:0xf bank_mask:0xf bound_ctrl:0")
    for r in R:
        a.i(f"v_add_f32_dpp v{r}, v{r}, v{r} row_bcast:15 row_mask:0xa bank_mask:0xf")
    for r in R:
        a.i(f"v_add_f32_dpp v{r}, v{r}, v{r} row_bcast:31 row_mask:0xc bank_mask:0xf")

    def rnd(regs):
        for r in regs:
            a.i(f"v_cvt_pk_bf16_f32 v{r}, v{r}, v{r}")
        for r in regs:
            a.i(f"v_and_b32 v{r}, 0xffff0000, v{r}")
    rnd(R)
    for r in R:
        a.i(f"v_mul_f32 v{r}, s{S_C2}, v{r}")
    for r in R:
        a.i(f"v_exp_f32 v{r}, v{r}")
    for r in R:
        a.i(f"v_add_f32 v{r}, 1.0, v{r}")
    for r in R:
        a.i(f"v_rcp_f32 v{r}, v{r}")
    a.nop(1)
    rnd(R)
    o = V_ACC + 32
    O = [o + 2 * k + 1 for k in range(4)]
    for k in range(4):
        a.i(f"v_sub_f32 v{O[k]}, 1.0, v{R[k]}")
    rnd(O)
    for k in range(4):
        a.i(f"v_max_f32 v{O[k]}, 0x30800000, v{O[k]}")
    for k in range(4):
        a.i(f"v_rcp_f32 v{t+k}, v{O[k]}")
    a.nop(1)
    for k in range(4):
        a.i(f"v_fma_f32 v{t+4+k}, -v{O[k]}, v{t+k}, 1.0")
    for k in range(4):
        a.i(f"v_fma_f32 v{t+k}, v{t+4+k}, v{t+k}, v{t+k}")
    for k in range(4):
        a.i(f"v_mul_f32 v{o+2*k}, v{R[k]}, v{t+k}")
    a.i(f"s_lshl_b32 s{S_T0}, s{S_T2}, 3")
    a.i(f"s_add_u32 s{S_T0}, s{S_T0}, {G_OFF}")
    a.i(f"v_mov_b32 v{t}, 0")
    a.i(f"s_mov_b32 s{S_SAVE}, 0")
    a.i(f"s_mov_b32 s{S_SAVE+1}, 0x80000000")
    a.i(f"s_mov_b64 exec, s[{S_SAVE}:{S_SAVE+1}]")
    a.vmem("gst", f"buffer_store_dwordx4 v[{o}:{o+3}], v{t}, s[{S_WS}:{S_WS+3}], s{S_T0} offen")
    a.vmem("gst", f"buffer_store_dwordx4 v[{o+4}:{o+7}], v{t}, s[{S_WS}:{S_WS+3}], s{S_T0} offen offset:16")
    a.i("s_mov_b64 exec, -1")


def gen_k1(cfg):
    import copy
    a = Asm()
    a.raw(".globl k1_kernel\n.p2align 8\n.type k1_kernel,@function\nk1_kernel:")
    k1_prologue(a)
    a.i("s_cmp_eq_u32 s3, 2")
    a.i("s_cbranch_scc1 K1_kv")
    st = k1_first_pass(a, cfg, False)
    snap = (list(a.vm), a.vm_done, list(a.ds), a.ds_done, dict(a.mfma_w), a.n)
    a.i("s_cmp_eq_u32 s3, 1")
    a.i("s_cbranch_scc1 K1_q")
    k1_later(a, cfg, st, "mlp")
    a.raw(".p2align 6")
    a.label("K1_q")
    a.vm, a.vm_done, a.ds, a.ds_done = list(snap[0]), snap[1], list(snap[2]), snap[3]
    a.mfma_w = {k: a.n - (snap[5] - v) for k, v in snap[4].items()}
    k1_later(a, cfg, st, "q")
    a.raw(".p2align 6")
    a.label("K1_kv")
    k1_kv_head(a)
    st = k1_first_pass(a, cfg, True)
    k1_later(a, cfg, st, "kv")
    a.label("K1_done")
    a.i("s_endpgm")
    return a.text()


class K2Cfg:
    depth = 6
    wdepth = 8
    mode = 1
    nw = 4
    sep = 1
    out_aux = 'sc0 sc1'


def gen_k2(cfg):
    a = Asm()
    D, DW, NW = cfg.depth, cfg.wdepth, cfg.nw
    NH, NA = 112 // NW, 32 // NW
    C_WS, C_W2, C_WO, C_OUT = 40, 44, 48, 52
    C_W, C_RB, C_CB, C_M0, T0, T1, T2, T3 = 4, 5, 6, 7, 8, 9, 10, 11
    S_HB, S_WB, S_QB, S_OB, S_KVB, C_EPS = 12, 13, 14, 15, 56, 57
    V_L = 1
    V_A0, V_A1, V_WD, V_TR0, V_TR1, V_KVA = 2, 3, 4, 5, 6, 7
    VT = 8
    V_G = 16
    V_RC = 20
    V_KVF = 24
    V_WF = 32
    V_OF = 48
    P = 56
    ACC = 64
    A_ND = 64
    assert 8 * D <= 64
    a.raw(".globl k2_kernel\n.p2align 8\n.type k2_kernel,@function\nk2_kernel:")
    a.i("s_cmp_ge_u32 s2, 256")
    a.i("s_cbranch_scc1 K2_done")
    if DIAG:
        a.i("s_memrealtime s[38:39]")
    a.i("s_load_dwordx2 s[16:17], s[0:1], 16")
    a.i("s_load_dwordx2 s[18:19], s[0:1], 48")
    a.i("s_load_dwordx2 s[20:21], s[0:1], 64")
    a.i("s_load_dwordx2 s[22:23], s[0:1], 80")
    a.i("s_getpc_b64 s[24:25]")
    a.label("K2_pc")
    a.i(f"s_and_b32 s{T0}, s2, 7")
    a.i(f"s_lshr_b32 s{T1}, s2, 3")
    a.i(f"v_and_b32 v{V_L}, 63, v0")
    a.i(f"v_lshrrev_b32 v{VT}, 6, v0")
    a.i(f"s_lshl_b32 s{T2}, s{T1}, 9")
    a.i(f"v_readfirstlane_b32 s{C_W}, v{VT}")
    a.i(f"v_lshlrev_b32 v{VT+1}, 7, v0")
    a.i(f"v_add_u32 v{VT+1}, s{T2}, v{VT+1}")
    a.i(f"v_min_u32 v{VT+1}, CODE_END-K2_pc-4, v{VT+1}")
    a.i("v_cmp_gt_u32 vcc, 4, v0")
    a.i("s_and_saveexec_b64 s[26:27], vcc")
    a.i("s_cbranch_execz K2_nopf")
    a.i(f"global_load_dword v{P+7}, v{VT+1}, s[24:25]")
    a.label("K2_nopf")
    a.i("s_mov_b64 exec, s[26:27]")
    a.vm.append("pf")
    if cfg.mode == 0:
        a.i(f"s_lshr_b32 s{C_RB}, s{T1}, 3")
        a.i(f"s_lshl_b32 s{T2}, s{T0}, 2")
        a.i(f"s_add_u32 s{C_RB}, s{C_RB}, s{T2}")
        a.i(f"s_and_b32 s{C_CB}, s{T1}, 7")
    else:
        a.i(f"s_lshr_b32 s{C_RB}, s{T0}, 1")
        a.i(f"s_lshl_b32 s{C_RB}, s{C_RB}, 3")
        a.i(f"s_lshr_b32 s{T2}, s{T1}, 2")
        a.i(f"s_add_u32 s{C_RB}, s{C_RB}, s{T2}")
        a.i(f"s_and_b32 s{C_CB}, s{T0}, 1")
        a.i(f"s_lshl_b32 s{C_CB}, s{C_CB}, 2")
        a.i(f"s_and_b32 s{T2}, s{T1}, 3")
        a.i(f"s_add_u32 s{C_CB}, s{C_CB}, s{T2}")
    t = VT
    a.i(f"s_mul_i32 s{T0}, s{C_RB}, {2*AF_TT}")
    a.i(f"v_lshlrev_b32 v{V_A0}, 4, v{V_L}")
    a.i(f"v_add_u32 v{V_A0}, s{T0}, v{V_A0}")
    a.i(f"v_add_u32 v{V_A1}, {AF_TT}, v{V_A0}")
    a.i(f"s_mul_i32 s{S_HB}, s{C_W}, {NH*1024}")
    a.i(f"s_mul_i32 s{S_WB}, s{C_W}, {NH*16384}")
    a.i(f"s_mul_i32 s{S_QB}, s{C_W}, {NA*1024}")
    a.i(f"s_add_u32 s{S_QB}, s{S_QB}, {112*1024}")
    a.i(f"s_mul_i32 s{S_OB}, s{C_W}, {NA*16384}")
    a.i(f"s_mul_i32 s{S_KVB}, s{C_W}, {NA*KVT_HEAD}")
    a.i(f"s_add_u32 s{S_KVB}, s{S_KVB}, {KVT_OFF}")
    a.i(f"s_mul_i32 s{C_M0}, s{C_W}, {DW*2048}")
    SEP = cfg.sep and NW * (DW * 2048 + 64 * 272) <= 163840
    if SEP:
        a.i(f"s_add_u32 s{C_M0}, s{C_M0}, {NW*64*272}")
    a.i(f"s_mov_b32 s{C_EPS}, {EPS:#x}")
    a.i(f"v_lshrrev_b32 v{t}, 3, v{V_L}")
    a.i(f"v_and_b32 v{t+1}, 7, v{V_L}")
    a.i(f"v_bfe_u32 v{t+2}, v{V_L}, 4, 1")
    a.i(f"v_lshlrev_b32 v{t+2}, 2, v{t+2}")
    a.i(f"v_xor_b32 v{t+1}, v{t+1}, v{t+2}")
    a.i(f"v_lshlrev_b32 v{t}, 10, v{t}")
    a.i(f"v_lshl_add_u32 v{V_WD}, v{t+1}, 4, v{t}")
    a.i(f"s_lshl_b32 s{T0}, s{C_CB}, 7")
    a.i(f"v_add_u32 v{V_WD}, s{T0}, v{V_WD}")
    a.i("s_waitcnt lgkmcnt(0)")
    srd(a, C_WS, 22, WS_USED)
    srd(a, C_W2, 18, 1792 * 1024)
    srd(a, C_WO, 16, 512 * 1024)

    seq = []
    hq, aq = list(range(NH)), list(range(NA))
    NS = NH + NA
    gap = max((NS - 3) // NA, 2)
    for n in range(NS):
        if aq and n % gap == gap - 1 and n < NS - 2:
            seq.append(("a", aq.pop(0)))
        elif hq:
            seq.append(("h", hq.pop(0)))
        else:
            seq.append(("a", aq.pop(0)))
    assert not hq and not aq

    def issue_w(n):
        kind, k = seq[n]
        d = n % DW
        wb, w = (S_WB, C_W2) if kind == "h" else (S_OB, C_WO)
        for b in range(2):
            a.i(f"s_add_u32 m0, s{C_M0}, {d*2048 + b*1024}")
            a.i(f"s_add_u32 s{T2}, s{wb}, {k*16384 + b*8192}")
            a.vmem(f"s{n}", f"buffer_load_dwordx4 v{V_WD}, s[{w}:{w+3}], s{T2} offen lds")

    def issue(n):
        kind, k = seq[n]
        d = n % D
        ab = S_HB if kind == "h" else S_QB
        a.i(f"s_add_u32 s{T1}, s{ab}, {k*1024}")
        a.vmem(f"s{n}", f"buffer_load_dwordx4 a[{8*d}:{8*d+3}], v{V_A0}, s[{C_WS}:{C_WS+3}], s{T1} offen")
        a.vmem(f"s{n}", f"buffer_load_dwordx4 a[{8*d+4}:{8*d+7}], v{V_A1}, s[{C_WS}:{C_WS+3}], s{T1} offen")

    def kv_issue(k):
        a.i(f"s_add_u32 s{T3}, s{S_KVB}, {k*KVT_HEAD}")
        a.vmem(f"kv{k}", f"buffer_load_dwordx4 v[{VT}:{VT+3}], v{V_KVA}, s[{C_WS}:{C_WS+3}], s{T3} offen")
        a.vmem(f"kv{k}", f"buffer_load_dwordx4 v[{VT+4}:{VT+7}], v{V_KVA}, s[{C_WS}:{C_WS+3}], s{T3} offen offset:16")

    def tr_reads(n):
        d = n % DW
        wf = V_WF + 8 * (n % 2)
        for ct, va in enumerate((V_TR0, V_TR1)):
            for rd in range(2):
                r = wf + 4 * ct + 2 * rd
                a.dsop(f"t{n}", f"ds_read_b64_tr_b16 v[{r}:{r+1}], v{va} offset:{d*2048 + rd*1024}")

    for n in range(max(D, DW)):
        if n < DW:
            issue_w(n)
        if n < D:
            issue(n)
    srd(a, C_OUT, 20, 2048 * 1024)
    u = P
    a.i(f"v_lshrrev_b32 v{u}, 5, v{V_L}")
    a.i(f"v_bfe_u32 v{u+1}, v{V_L}, 2, 2")
    a.i(f"v_lshl_add_u32 v{u}, v{u}, 2, v{u+1}")
    a.i(f"v_bfe_u32 v{u+1}, v{V_L}, 4, 1")
    a.i(f"v_bfe_u32 v{u+2}, v{V_L}, 1, 1")
    a.i(f"v_lshl_add_u32 v{u+1}, v{u+1}, 1, v{u+2}")
    a.i(f"v_bfe_u32 v{u+2}, v{V_L}, 3, 1")
    a.i(f"v_lshlrev_b32 v{u+2}, 2, v{u+2}")
    a.i(f"v_xor_b32 v{u+1}, v{u+1}, v{u+2}")
    a.i(f"v_lshlrev_b32 v{u}, 7, v{u}")
    a.i(f"v_lshl_add_u32 v{u}, v{u+1}, 4, v{u}")
    a.i(f"v_and_b32 v{u+1}, 1, v{V_L}")
    a.i(f"v_lshl_add_u32 v{u}, v{u+1}, 3, v{u}")
    a.i(f"v_add_u32 v{V_TR0}, s{C_M0}, v{u}")
    a.i(f"v_xor_b32 v{u}, 64, v{u}")
    a.i(f"v_add_u32 v{V_TR1}, s{C_M0}, v{u}")
    a.i(f"v_and_b32 v{u}, 31, v{V_L}")
    a.i(f"v_lshrrev_b32 v{u+1}, 5, v{V_L}")
    a.i(f"v_lshl_add_u32 v{u+2}, v{u+1}, 4, v{u}")
    a.i(f"v_add_u32 v{u+1}, 32, v{u+1}")
    a.i(f"v_cmp_gt_u32 vcc, 16, v{u}")
    a.i(f"v_lshlrev_b32 v{V_G+2}, 3, v{u}")
    a.i(f"s_lshl_b32 s{T0}, s{C_RB}, 9")
    a.i(f"s_add_u32 s{T0}, s{T0}, {G_OFF}")
    a.i(f"v_cndmask_b32 v{u+2}, v{u+1}, v{u+2}, vcc")
    a.i(f"v_lshlrev_b32 v{V_KVA}, 5, v{u+2}")
    a.vmem("kv0", f"buffer_load_dword v{V_G}, v{V_G+2}, s[{C_WS}:{C_WS+3}], s{T0} offen")
    a.vmem("kv0", f"buffer_load_dword v{V_G+1}, v{V_G+2}, s[{C_WS}:{C_WS+3}], s{T0} offen offset:256")
    kv_issue(0)
    stamp(a, 1, 60)
    a.wait(vm=["s0"])
    stamp(a, 2, 60)
    tr_reads(0)
    nd_w = {}
    for n in range(NS):
        kind, k = seq[n]
        d = n % D
        if kind == "a":
            a.wait(vm=[f"kv{k}"])
            for j in range(4):
                a.i(f"v_cvt_pk_bf16_f32 v{V_KVF+j}, v{VT+2*j}, v{VT+2*j+1}")
            a.nop(2)
            for tt in range(2):
                b = A_ND + 16 * tt
                a.i(f"v_mfma_f32_32x32x16_bf16 a[{b}:{b+15}], v[{V_KVF}:{V_KVF+3}], a[{8*d+4*tt}:{8*d+4*tt+3}], 0")
                nd_w[tt] = a.n
            if k + 1 < NA:
                kv_issue(k + 1)
        if n + 1 < NS:
            a.wait(vm=[f"s{n+1}"])
            tr_reads(n + 1)
        if kind == "a":
            for tt in range(2):
                g_ = a.n - nd_w[tt]
                if g_ < 13:
                    a.nop(13 - g_)
                a.i(f"v_accvgpr_read_b32 v{V_RC+tt}, a{A_ND+16*tt+8}")
            for tt in range(2):
                a.i(f"v_add_f32 v{V_RC+tt}, s{C_EPS}, v{V_RC+tt}")
            for tt in range(2):
                a.i(f"v_rcp_f32 v{V_RC+tt}, v{V_RC+tt}")
            a.nop(1)
            for tt in range(2):
                a.i(f"v_mul_f32 v{V_RC+tt}, v{V_RC+tt}, v{V_G+tt}")
            for tt in range(2):
                for j in range(8):
                    a.i(f"v_accvgpr_read_b32 v{P+j}, a{A_ND+16*tt+j}")
                for j in range(8):
                    a.i(f"v_mul_f32 v{P+j}, v{P+j}, v{V_RC+tt}")
                for j in range(4):
                    a.i(f"v_cvt_pk_bf16_f32 v{V_OF+4*tt+j}, v{P+2*j}, v{P+2*j+1}")
            a.nop(2)
        a.wait(ds=[f"t{n}"])
        wf = V_WF + 8 * (n % 2)
        for ct in range(2):
            for tt in range(2):
                blk = ACC + 16 * (ct * 2 + tt)
                B = f"v[{V_OF+4*tt}:{V_OF+4*tt+3}]" if kind == "a" else f"a[{8*d+4*tt}:{8*d+4*tt+3}]"
                a.mfma(blk, f"v[{wf+4*ct}:{wf+4*ct+3}]", B, blk if n else None)
        if n + DW < NS:
            issue_w(n + DW)
        if n + D < NS:
            issue(n + D)
    stamp(a, 3, 60)
    PITCH = 272
    WSZ = 64 * PITCH
    TPW = 64 // NW
    a.i(f"v_lshrrev_b32 v{t+1}, 3, v{V_L}")
    a.i(f"s_mul_i32 s{T0}, s{C_W}, {TPW}")
    a.i(f"v_add_u32 v{t+1}, s{T0}, v{t+1}")
    a.i(f"v_lshlrev_b32 v{t+5}, 3, v{t+1}")
    a.i(f"s_lshl_b32 s{T0}, s{C_RB}, 9")
    a.i(f"s_add_u32 s{T0}, s{T0}, {G_OFF + 4}")
    for hf in range(TPW // 8):
        a.i(f"buffer_load_dword v{V_RC+hf}, v{t+5}, s[{C_WS}:{C_WS+3}], s{T0} offen offset:{64*hf}")
    a.i(f"v_and_b32 v{t}, 31, v{V_L}")
    a.i(f"v_lshrrev_b32 v{t+2}, 5, v{V_L}")
    a.i(f"v_mul_u32_u24 v{t}, {PITCH}, v{t}")
    a.i(f"v_lshl_add_u32 v{t}, v{t+2}, 4, v{t}")
    a.i(f"s_mul_i32 s{T0}, s{C_W}, {WSZ}")
    a.i(f"v_add_u32 v{t}, s{T0}, v{t}")
    a.i(f"v_and_b32 v{t+2}, 7, v{V_L}")
    a.i(f"v_mul_u32_u24 v{t+3}, {PITCH}, v{t+1}")
    a.i(f"v_lshl_add_u32 v{t+3}, v{t+2}, 5, v{t+3}")
    a.i(f"v_add_u32 v{t+6}, {3*WSZ}, v{t+3}")
    a.i(f"v_add_u32 v{t+7}, {6*WSZ}, v{t+3}")
    a.i(f"v_lshlrev_b32 v{t+4}, 10, v{t+1}")
    a.i(f"v_lshl_add_u32 v{t+4}, v{t+2}, 4, v{t+4}")
    a.i(f"s_lshl_b32 s{T0}, s{C_RB}, 16")
    a.i(f"s_lshl_b32 s{T1}, s{C_CB}, 7")
    a.i(f"s_add_u32 s{T0}, s{T0}, s{T1}")
    if not SEP:
        a.i("s_waitcnt lgkmcnt(0)")
        a.i("s_barrier")
    for blk in range(4):
        a.need_acc(ACC + 16 * blk, 16)
    for blk in range(4):
        ct, tt = blk >> 1, blk & 1
        for q in range(4):
            r = ACC + 16 * blk + 4 * q
            off = tt * 32 * PITCH + (ct * 32 + 8 * q) * 4
            a.i(f"ds_write_b128 v{t}, v[{r}:{r+3}] offset:{off}")
    a.i("s_waitcnt lgkmcnt(0)")
    a.i("s_barrier")
    R = ACC
    for hf in range(TPW // 8):
        for w in range(NW):
            for p in range(2):
                r = R + hf * 32 + w * 8 + p * 4
                va = (t + 3, t + 6, t + 7)[w // 3]
                a.i(f"ds_read_b128 v[{r}:{r+3}], v{va} offset:{(w % 3) * WSZ + hf * 8 * PITCH + p * 16}")
    a.i("s_waitcnt lgkmcnt(0) vmcnt(0)")
    for hf in range(TPW // 8):
        b = R + hf * 32
        step = 8
        while step < NW * 8:
            for w in range(0, NW * 8, 2 * step):
                for j in range(8):
                    a.i(f"v_add_f32 v{b+w+j}, v{b+w+j}, v{b+w+step+j}")
            step *= 2
        for j in range(8):
            a.i(f"v_mul_f32 v{b+j}, v{b+j}, v{V_RC+hf}")
        for j in range(4):
            a.i(f"v_cvt_pk_bf16_f32 v{b+8+j}, v{b+2*j}, v{b+2*j+1}")
        if hf:
            a.i(f"s_add_u32 s{T0}, s{T0}, 8192")
        a.i(f"buffer_store_dwordx4 v[{b+8}:{b+11}], v{t+4}, s[{C_OUT}:{C_OUT+3}], s{T0} offen {cfg.out_aux}")
    stamp(a, 4, 60)
    stamp_flush(a, 1, 6, C_WS, 60)
    a.label("K2_done")
    a.i("s_endpgm")
    lds = NW * (DW * 2048 + WSZ) if SEP else max(NW * DW * 2048, NW * WSZ)
    return a.text(), lds, NW


def kd(name, nv, accum, nsgpr=102):
    return f""".p2align 6
.amdhsa_kernel {name}
  .amdhsa_next_free_vgpr {nv}
  .amdhsa_next_free_sgpr {nsgpr}
  .amdhsa_accum_offset {accum}
  .amdhsa_group_segment_fixed_size 0
  .amdhsa_kernarg_size 88
  .amdhsa_user_sgpr_count 2
  .amdhsa_user_sgpr_kernarg_segment_ptr 1
  .amdhsa_system_sgpr_workgroup_id_x 1
  .amdhsa_float_denorm_mode_32 3
.end_amdhsa_kernel"""


def build(c1=None, c2=None):
    c1 = c1 or K1Cfg()
    c2 = c2 or K2Cfg()
    k1 = gen_k1(c1)
    k2, lds2, nw2 = gen_k2(c2)
    hdr = f"""; gated_mix: linear attention block + SwiGLU block, gated mix.  Generated by gen/gen8.py
; @launch kernel=k1_kernel grid=(256,1,1) block=(512,1,1) lds={K1_LDS}
; @launch kernel=k2_kernel grid=(256,1,1) block=({nw2*64},1,1) lds={lds2}
.amdgcn_target "amdgcn-amd-amdhsa--gfx950"
.text
"""
    tail = """
.p2align 8
CODE_END:
    s_endpgm
.section .rodata,"a"
"""
    return hdr + k1 + "\n" + k2 + tail + kd("k1_kernel", 256, 128) + "\n" + kd("k2_kernel", 224, 128) + "\n"


if __name__ == "__main__":
    if "--diag" in sys.argv:
        DIAG = True
        sys.argv.remove("--diag")
    c1, c2 = K1Cfg(), K2Cfg()
    for arg in list(sys.argv[1:]):
        if "=" in arg:
            k, v = arg.split("=")
            c = c2 if k.startswith("k2_") else c1
            k = k[3:] if k.startswith("k2_") else k
            setattr(c, k, v if k.endswith("_aux") else int(v))
            sys.argv.remove(arg)
    KROT, NM, SHIFT, TOUCHX = c1.krot, c1.nm, c1.shift, c1.touch_x
    out = sys.argv[1] if len(sys.argv) > 1 else f"cdna_kernels/{NAME}.s"
    open(out, "w").write(build(c1, c2))
    print("wrote", out)
```

```python
import sys

NAME = "gated_mix__linear_attn_block__glu_gated_swiglu__prompt"

AF_OFF = 0
AF_TT = 144 * 1024
AF_SIZE = 64 * AF_TT
KVT_OFF = AF_SIZE
KVT_HEAD = 1152
KVT_SIZE = 32 * KVT_HEAD
G_OFF = KVT_OFF + KVT_SIZE
G_SIZE = 2048 * 8
WS_USED = G_OFF + G_SIZE

STAMP_OFF = 16 << 20
DIAG = False

LOG2E = 0x3FB8AA3B
NLOG2E = 0xBFB8AA3B
EPS = 0x358637BD


class Asm:
    def __init__(self):
        self.L = []
        self.n = 0
        self.vm = []
        self.vm_done = 0
        self.ds = []
        self.ds_done = 0
        self.mfma_w = {}

    def raw(self, s):
        self.L.append(s)

    def i(self, s):
        self.L.append("    " + s)
        self.n += 1

    def label(self, s):
        self.L.append(s + ":")

    def vmem(self, tag, s):
        self.i(s)
        self.vm.append(tag)

    def dsop(self, tag, s):
        self.i(s)
        self.ds.append(tag)

    def _need(self, lst, tags):
        last = -1
        for k, t in enumerate(lst):
            if t in tags:
                last = k
        return last

    def wait(self, vm=(), ds=(), vm_all=False, ds_all=False):
        parts = []
        if vm_all:
            lv = len(self.vm) - 1
        else:
            lv = self._need(self.vm, set(vm)) if vm else -1
        if lv >= self.vm_done:
            n = len(self.vm) - 1 - lv
            assert n <= 63, n
            parts.append(f"vmcnt({n})")
            self.vm_done = lv + 1
        if ds_all:
            ld = len(self.ds) - 1
        else:
            ld = self._need(self.ds, set(ds)) if ds else -1
        if ld >= self.ds_done:
            n = len(self.ds) - 1 - ld
            if n > 15:
                n = 15
                ld = len(self.ds) - 1 - 15
            parts.append(f"lgkmcnt({n})")
            self.ds_done = ld + 1
        if parts:
            self.i("s_waitcnt " + " ".join(parts))

    def nop(self, k):
        while k > 0:
            c = min(k, 16)
            self.L.append(f"    s_nop {c-1}")
            self.n += c
            k -= c

    def mfma(self, d, a, b, c):
        cs = "0" if c is None else f"v[{c}:{c+15}]"
        self.i(f"v_mfma_f32_32x32x16_bf16 v[{d}:{d+15}], {a}, {b}, {cs}")
        self.mfma_w[d] = self.n

    def need_acc(self, d, dist=13):
        if d in self.mfma_w:
            gap = self.n - self.mfma_w[d]
            if gap < dist:
                self.nop(dist - gap)

    def text(self):
        return "\n".join(self.L)


def stamp(a, k, base=16):
    if DIAG:
        a.i(f"s_memrealtime s[{base+2*k}:{base+2*k+1}]")


def stamp_flush(a, kern, nst, ws_ptr_srd, base=16, t0=38):
    if not DIAG:
        return
    a.i("s_waitcnt vmcnt(0)")
    stamp(a, nst - 1, base)
    a.i("s_waitcnt lgkmcnt(0)")
    a.i("v_cmp_eq_u32 vcc, 0, v0")
    a.i("s_and_saveexec_b64 s[94:95], vcc")
    a.i(f"s_cbranch_execz STAMP_skip_{a.n}")
    lbl = f"STAMP_skip_{a.n-1}"
    a.L[-1] = f"    s_cbranch_execz {lbl}"
    a.i(f"s_mov_b32 s{ws_ptr_srd+2}, {STAMP_OFF + 65536}")
    a.i(f"s_lshl_b32 s3, s2, 6")
    a.i(f"s_add_u32 s3, s3, {STAMP_OFF + kern*16384}")
    a.i("v_mov_b32 v2, 0")
    for k in range(nst):
        src = t0 if k == 0 else base + 2 * k
        a.i(f"v_mov_b32 v4, s{src}")
        a.i(f"v_mov_b32 v5, s{src+1}")
        a.i(f"buffer_store_dwordx2 v[4:5], v2, s[{ws_ptr_srd}:{ws_ptr_srd+3}], s3 offen offset:{8*k}")
        a.i("s_nop 1")
    a.label(lbl)


def srd(a, s, ptr, size):
    a.i(f"s_mov_b32 s{s}, s{ptr}")
    a.i(f"s_and_b32 s{s+1}, s{ptr+1}, 0xffff")
    a.i(f"s_mov_b32 s{s+2}, {size}")
    a.i(f"s_mov_b32 s{s+3}, 0x20000")


class K1Cfg:
    store_aux = "sc1"
    fill_per_gap = 28
    ahead = 5
    pf_w2 = True
    krot = 1
    nm = 2
    fill_last = 20
    pf_mode = 1
    pf_round = 1
    shift = 1
    touch_x = 1


S_X, S_A, S_B, S_WS, S_GW, S_DBG, S_W2, S_WO = 40, 44, 48, 52, 56, 60, 64, 68
S_XCD, S_IDX, S_WAVE, S_TILE0, S_PITCH, S_COLA, S_COLB, S_UNIT = 4, 5, 6, 7, 8, 9, 10, 11
S_T0, S_T1, S_T2, S_T3 = 12, 13, 14, 15
S_XKF = 72
S_WK = 80
S_M0X = 88
S_M0W = 89
S_ST = 90
S_C1, S_C2, S_C3 = 91, 92, 93
S_MASK = 94
S_TMP = 96
S_P = 97
S_SAVE = 98
S_PR, S_CT = 100, 101
S_XKP = 30
S_LB = 34

V_LANE = 1
V_WA, V_WB, V_XD = 2, 3, 4
V_WT = 5
V_STO = 6
V_ZS = 7
V_XF = 8
V_T = 12
V_XFR = 20
V_E = 44
V_KV = 48
V_ACC = 64

SLOT = 40960
BUF = [0, SLOT, 2 * SLOT, 3 * SLOT]
K1_LDS = 3 * SLOT + 32768


def dma_stage_ops(i, nm):
    slot = BUF[i % 3]
    ops = []
    for seg, (va, sr) in enumerate(((V_WA, S_A), (V_WB, S_B))):
        ops.append([("s", None, f"s_add_u32 m0, s{S_M0W}, {slot + seg*8192}"),
                    ("s", None, "s_nop 0"),
                    ("v", f"S{i}", f"buffer_load_dwordx4 v{va}, s[{sr}:{sr+3}], s{S_WK+i} offen lds")])
    for m in range(nm):
        ops.append([("s", None, f"s_add_u32 m0, s{S_M0X}, {slot + 16384 + m*8192}"),
                    ("s", None, f"s_add_u32 s{S_TMP}, s{S_TBP}, {m*65536}"),
                    ("s", None, f"s_and_b32 s{S_TMP}, s{S_TMP}, 0x1fffff"),
                    ("s", None, f"s_add_u32 s{S_TMP}, s{S_TMP}, s{S_XKF+i}"),
                    ("v", f"S{i}", f"buffer_load_dwordx4 v{V_XD}, s[{S_X}:{S_X+3}], s{S_TMP} offen lds")])
    return ops


def dma_tile_ops(lj, tile, buf):
    ops = []
    for m in range(4):
        ops.append([("s", None, f"s_add_u32 m0, s{S_M0X}, {buf + m*8192}"),
                    ("s", None, f"s_add_u32 s{S_TMP}, s{S_TB0}, {tile*32768}"),
                    ("s", None, f"s_and_b32 s{S_TMP}, s{S_TMP}, 0x1fffff"),
                    ("s", None, f"s_add_u32 s{S_TMP}, s{S_TMP}, s{S_XKP+m}"),
                    ("v", f"L{lj}", f"buffer_load_dwordx4 v{V_XD}, s[{S_X}:{S_X+3}], s{S_TMP} offen lds")])
    return ops


def emit_group(a, grp):
    for kind, tag, text in grp:
        if kind == "v":
            a.vmem(tag, text)
        else:
            a.i(text)


KROT = 1
NM = 3
SHIFT = 1
TOUCHX = 1
S_TBP, S_TB0, S_TP = 9, 10, 8
S_KR = 39


def k1_prologue(a):
    a.i("s_cmp_ge_u32 s2, 256")
    a.i("s_cbranch_scc1 K1_done")
    if DIAG:
        a.i("s_memrealtime s[38:39]")
    a.i("s_load_dwordx16 s[16:31], s[0:1], 0")
    a.i("s_load_dwordx4 s[32:35], s[0:1], 64")
    a.i("s_load_dwordx2 s[36:37], s[0:1], 80")
    a.i("s_getpc_b64 s[98:99]")
    a.label("K1_pc")
    a.i(f"s_and_b32 s{S_XCD}, s2, 7")
    a.i(f"s_lshr_b32 s{S_IDX}, s2, 3")
    a.i(f"v_and_b32 v{V_LANE}, 63, v0")
    a.i(f"v_lshrrev_b32 v{V_T}, 6, v0")
    a.i(f"s_lshl_b32 s{S_T0}, s{S_IDX}, 11")
    a.i(f"v_readfirstlane_b32 s{S_WAVE}, v{V_T}")
    a.i(f"v_lshlrev_b32 v{V_T+1}, 7, v0")
    a.i(f"v_add_u32 v{V_T+1}, s{S_T0}, v{V_T+1}")
    a.i(f"v_min_u32 v{V_T+1}, CODE_END-K1_pc-4, v{V_T+1}")
    a.i("v_cmp_gt_u32 vcc, 16, v0")
    a.i("s_and_saveexec_b64 s[94:95], vcc")
    a.i("s_cbranch_execz K1_nopf")
    a.i(f"global_load_dword v{V_E}, v{V_T+1}, s[98:99]")
    a.label("K1_nopf")
    a.i("s_mov_b64 exec, s[94:95]")
    a.i(f"s_lshr_b32 s{S_PR}, s{S_WAVE}, 2")
    a.i(f"s_and_b32 s{S_CT}, s{S_WAVE}, 3")
    a.i(f"s_mul_i32 s{S_T0}, s{S_IDX}, 43")
    a.i(f"s_lshr_b32 s{S_T0}, s{S_T0}, 8")
    a.i(f"s_mul_i32 s{S_T1}, s{S_T0}, 6")
    a.i(f"s_sub_u32 s{S_P}, s{S_IDX}, s{S_T1}")
    a.i(f"s_lshl_b32 s{S_T0}, s{S_T0}, 3")
    a.i(f"s_add_u32 s{S_UNIT}, s{S_T0}, s{S_XCD}")
    a.i(f"s_mul_i32 s{S_TILE0}, s{S_P}, 11")
    a.i(f"s_max_u32 s{S_T0}, s{S_P}, 4")
    a.i(f"s_sub_u32 s{S_T0}, s{S_T0}, 4")
    a.i(f"s_sub_u32 s{S_TILE0}, s{S_TILE0}, s{S_T0}")
    a.i(f"s_lshl_b32 s{S_COLA}, s{S_UNIT}, 7")
    a.i(f"s_mov_b32 s{S_COLB}, s{S_COLA}")
    a.i(f"s_sub_u32 s{S_T0}, s{S_UNIT}, 28")
    a.i(f"s_lshl_b32 s{S_T0}, s{S_T0}, 8")
    a.i(f"s_add_u32 s{S_T1}, s{S_T0}, 128")
    a.i(f"s_cmp_ge_u32 s{S_UNIT}, 28")
    a.i(f"s_cselect_b32 s{S_COLA}, s{S_T0}, s{S_COLA}")
    a.i(f"s_cselect_b32 s{S_COLB}, s{S_T1}, s{S_COLB}")
    a.i("s_cselect_b32 s3, 1, 0")
    a.i(f"s_lshl_b32 s{S_T0}, s{S_XCD}, 7")
    a.i(f"s_add_u32 s{S_T1}, s{S_T0}, 2048")
    a.i(f"s_add_u32 s{S_T0}, s{S_T0}, 1024")
    a.i(f"s_sub_u32 s{S_T2}, s{S_IDX}, 24")
    a.i(f"s_lshl_b32 s{S_T3}, s{S_T2}, 3")
    a.i(f"s_cmp_ge_u32 s{S_IDX}, 24")
    a.i(f"s_cselect_b32 s{S_COLA}, s{S_T0}, s{S_COLA}")
    a.i(f"s_cselect_b32 s{S_COLB}, s{S_T1}, s{S_COLB}")
    a.i(f"s_cselect_b32 s{S_P}, s{S_T2}, s{S_P}")
    a.i(f"s_cselect_b32 s{S_TILE0}, s{S_T3}, s{S_TILE0}")
    a.i("s_cselect_b32 s3, 2, s3")
    a.i("s_cmp_eq_u32 s3, 0")
    a.i(f"s_movk_i32 s{S_T0}, 3584")
    a.i(f"s_movk_i32 s{S_T1}, 3072")
    a.i(f"s_cselect_b32 s{S_PITCH}, s{S_T0}, s{S_T1}")
    if SHIFT:
        a.i(f"s_mul_i32 s{S_T2}, s{S_XCD}, 11")
        a.i(f"s_lshr_b32 s{S_T2}, s{S_T2}, 3")
        a.i(f"s_add_u32 s{S_TILE0}, s{S_TILE0}, s{S_T2}")
    a.i(f"s_lshl_b32 s{S_T3}, s{S_PITCH}, 6")
    if KROT:
        a.i(f"s_add_u32 s{S_C1}, s{S_XCD}, s{S_IDX}")
    else:
        a.i(f"s_mov_b32 s{S_C1}, s{S_XCD}")
    for i in range(8):
        a.i(f"s_add_u32 s{S_T0}, s{S_C1}, {i}")
        a.i(f"s_and_b32 s{S_T0}, s{S_T0}, 7")
        a.i(f"s_lshl_b32 s{S_XKF+i}, s{S_T0}, 7")
        a.i(f"s_mul_i32 s{S_WK+i}, s{S_T0}, s{S_T3}")
    a.i(f"s_lshl_b32 s{S_M0W}, s{S_WAVE}, 10")
    a.i(f"s_lshl_b32 s{S_M0X}, s{S_PR}, 12")
    a.i(f"s_lshl_b32 s{S_T0}, s{S_CT}, 10")
    a.i(f"s_add_u32 s{S_M0X}, s{S_M0X}, s{S_T0}")
    t = V_T
    a.i(f"v_lshrrev_b32 v{t}, 3, v{V_LANE}")
    a.i(f"v_and_b32 v{t+1}, 7, v{V_LANE}")
    a.i(f"v_bfe_u32 v{t+2}, v{V_LANE}, 4, 1")
    a.i(f"v_lshlrev_b32 v{t+2}, 1, v{t+2}")
    a.i(f"v_xor_b32 v{t+3}, v{t+1}, v{t+2}")
    a.i(f"v_xor_b32 v{t+4}, 4, v{t+3}")
    a.i(f"s_lshl_b32 s{S_T0}, s{S_WAVE}, 3")
    a.i(f"v_add_u32 v{t+5}, s{S_T0}, v{t}")
    a.i(f"v_mul_lo_u32 v{t+5}, v{t+5}, s{S_PITCH}")
    a.i(f"v_lshl_add_u32 v{V_WA}, v{t+3}, 4, v{t+5}")
    a.i(f"v_add_u32 v{V_WA}, s{S_COLA}, v{V_WA}")
    a.i(f"v_lshl_add_u32 v{V_WB}, v{t+4}, 4, v{t+5}")
    a.i(f"v_add_u32 v{V_WB}, s{S_COLB}, v{V_WB}")
    a.i(f"s_lshl_b32 s{S_T0}, s{S_CT}, 3")
    a.i(f"v_add_u32 v{t+5}, s{S_T0}, v{t}")
    a.i(f"v_bfe_u32 v{t+6}, v{t+5}, 1, 3")
    a.i(f"v_xor_b32 v{t+6}, v{t+6}, v{t+1}")
    a.i(f"v_lshlrev_b32 v{t+5}, 10, v{t+5}")
    a.i(f"v_lshl_add_u32 v{V_XD}, v{t+6}, 4, v{t+5}")
    a.i("s_waitcnt lgkmcnt(0)")
    a.i("s_cmp_eq_u32 s3, 0")
    a.i(f"s_cselect_b32 s{S_A}, s24, s18")
    a.i(f"s_cselect_b32 s{S_A+1}, s25, s19")
    a.i(f"s_cselect_b32 s{S_B}, s26, s18")
    a.i(f"s_cselect_b32 s{S_B+1}, s27, s19")
    a.i(f"s_lshl_b32 s{S_A+2}, s{S_PITCH}, 9")
    a.i(f"s_and_b32 s{S_A+1}, s{S_A+1}, 0xffff")
    a.i(f"s_and_b32 s{S_B+1}, s{S_B+1}, 0xffff")
    a.i(f"s_mov_b32 s{S_B+2}, s{S_A+2}")
    a.i(f"s_mov_b32 s{S_A+3}, 0x20000")
    a.i(f"s_mov_b32 s{S_B+3}, 0x20000")
    srd(a, S_X, 16, 2048 * 1024)
    a.i(f"s_add_u32 s{S_TP}, s{S_TILE0}, s{S_PR}")
    a.i(f"s_lshl_b32 s{S_TBP}, s{S_TP}, 15")
    a.i(f"s_lshl_b32 s{S_TB0}, s{S_TILE0}, 15")
    for i in range(3):
        ops = dma_stage_ops(i, 3)
        for grp in ops[:-1]:
            emit_group(a, grp)
        if NM == 3:
            a.i("s_cmp_eq_u32 s3, 2")
            a.i(f"s_cbranch_scc1 K1_skip{i}")
            emit_group(a, ops[-1])
            a.label(f"K1_skip{i}")
    srd(a, S_WS, 36, WS_USED)
    srd(a, S_GW, 30, 1024)
    srd(a, S_DBG, 34, 256)
    srd(a, S_W2, 28, 1792 * 1024)
    srd(a, S_WO, 20, 512 * 1024)
    if TOUCHX:
        a.i(f"s_lshl_b32 s{S_T0}, s2, 3")
        a.i(f"s_add_u32 s{S_T0}, s{S_T0}, s{S_WAVE}")
        a.i(f"s_lshl_b32 s{S_T0}, s{S_T0}, 10")
        a.i(f"v_lshlrev_b32 v{V_E+1}, 7, v{V_LANE}")
        a.i("s_mov_b64 exec, 0xff")
        a.i(f"buffer_load_dword v{V_E+2}, v{V_E+1}, s[{S_X}:{S_X+3}], s{S_T0} offen")
        a.i("s_mov_b64 exec, -1")
    for m in range(4):
        a.i(f"s_add_u32 s{S_T0}, s{S_C1}, s{S_PR}")
        a.i(f"s_add_u32 s{S_T0}, s{S_T0}, {2*m}")
        a.i(f"s_and_b32 s{S_T0}, s{S_T0}, 7")
        a.i(f"s_lshl_b32 s{S_XKP+m}, s{S_T0}, 7")
    a.i(f"s_mov_b32 s{S_C1}, {LOG2E:#x}")
    a.i(f"s_mov_b32 s{S_C2}, {NLOG2E:#x}")
    a.i(f"s_mov_b32 s{S_C3}, {EPS:#x}")
    a.i(f"v_lshlrev_b32 v{V_STO}, 4, v{V_LANE}")
    a.i(f"v_and_b32 v{t}, 31, v{V_LANE}")
    a.i(f"v_lshrrev_b32 v{t+1}, 5, v{V_LANE}")
    a.i(f"v_bfe_u32 v{t+2}, v{t}, 1, 3")
    a.i(f"v_xor_b32 v{t+2}, v{t+2}, v{t+1}")
    a.i(f"v_lshlrev_b32 v{t}, 7, v{t}")
    a.i(f"s_lshl_b32 s{S_T0}, s{S_PR}, 12")
    a.i(f"v_add_u32 v{t}, s{S_T0}, v{t}")
    for s in range(4):
        a.i(f"v_xor_b32 v{t+3}, {2*s}, v{t+2}")
        a.i(f"v_lshl_add_u32 v{V_XF+s}, v{t+3}, 4, v{t}")
    a.i(f"v_bfe_u32 v{t}, v{V_LANE}, 4, 1")
    a.i(f"v_lshrrev_b32 v{t+1}, 5, v{V_LANE}")
    a.i(f"v_bfe_u32 v{t+2}, v{V_LANE}, 2, 2")
    a.i(f"v_bfe_u32 v{t+3}, v{V_LANE}, 1, 1")
    a.i(f"s_lshl_b32 s{S_T0}, s{S_CT}, 1")
    a.i(f"v_add_u32 v{t+3}, s{S_T0}, v{t+3}")
    a.i(f"v_bfe_u32 v{t+4}, v{V_LANE}, 3, 1")
    a.i(f"v_lshlrev_b32 v{t+4}, 1, v{t+4}")
    a.i(f"v_lshl_add_u32 v{t+4}, v{t}, 2, v{t+4}")
    a.i(f"v_xor_b32 v{t+3}, v{t+3}, v{t+4}")
    a.i(f"v_lshlrev_b32 v{t+5}, 13, v{t}")
    a.i(f"v_lshl_add_u32 v{t+5}, v{t+1}, 10, v{t+5}")
    a.i(f"v_lshl_add_u32 v{t+5}, v{t+2}, 7, v{t+5}")
    a.i(f"v_lshl_add_u32 v{t+5}, v{t+3}, 4, v{t+5}")
    a.i(f"v_and_b32 v{t+6}, 1, v{V_LANE}")
    a.i(f"v_lshl_add_u32 v{V_WT}, v{t+6}, 3, v{t+5}")
    cur0, cur1 = BUF[1], BUF[1] + 4096
    b0 = [BUF[3], BUF[0], BUF[3], BUF[0]]
    b1 = [BUF[2], BUF[1], BUF[2], BUF[1]]
    a.i(f"s_cmp_eq_u32 s{S_PR}, 0")
    for r in range(4):
        d0 = (b0[r] - cur0) & 0xffffffff
        d1 = (b1[r] - cur1) & 0xffffffff
        cur0, cur1 = b0[r], b1[r]
        a.i(f"s_mov_b32 s{S_T0}, {d0:#x}")
        a.i(f"s_mov_b32 s{S_T1}, {d1:#x}")
        a.i(f"s_cselect_b32 s{S_LB+r}, s{S_T0}, s{S_T1}")


def mk_ops(chk_blks):
    ops = []

    def V(cost, s, chk=False):
        def f(a, s=s, chk=chk):
            if chk:
                for b in chk_blks:
                    a.need_acc(b)
            a.i(s)
        ops.append((cost, f))
    return ops, V


def epi_mlp(cfg, acc, m):
    ops, V = mk_ops([acc])
    for r in range(8):
        V(4, f"v_mul_f32 v{acc+8+r}, v{acc+r}, v{acc+8+r}", chk=True)
    for r in range(8):
        V(4, f"v_mul_f32 v{acc+r}, s{S_C2}, v{acc+r}")
    for r in range(8):
        V(8, f"v_exp_f32 v{acc+r}, v{acc+r}")
    for r in range(8):
        V(4, f"v_add_f32 v{acc+r}, 1.0, v{acc+r}")
    for r in range(8):
        V(8, f"v_rcp_f32 v{acc+r}, v{acc+r}")
    for r in range(8):
        V(4, f"v_mul_f32 v{acc+8+r}, v{acc+r}, v{acc+8+r}")
    for j in range(4):
        V(4, f"v_cvt_pk_bf16_f32 v{acc+j}, v{acc+8+2*j}, v{acc+9+2*j}")

    def st(a):
        a.i(f"s_add_u32 s{S_TMP}, s{S_TP}, {2*m}")
        a.i(f"s_and_b32 s{S_TMP}, s{S_TMP}, 63")
        a.i(f"s_mul_i32 s{S_TMP}, s{S_TMP}, {AF_TT}")
        a.i(f"s_add_u32 s{S_TMP}, s{S_TMP}, s{S_ST}")
        a.vmem("st", f"buffer_store_dwordx4 v[{acc}:{acc+3}], v{V_STO}, s[{S_WS}:{S_WS+3}], s{S_TMP} offen {cfg.store_aux}")
        a.nop(1)
    ops.append((12, st))
    return ops


def phi_ops(V, regs, tmp):
    for k, r in enumerate(regs):
        V(4, f"v_mul_f32 v{tmp+k}, s{S_C1}, v{r}", chk=True)
    for k, r in enumerate(regs):
        V(8, f"v_exp_f32_e64 v{tmp+k}, v{tmp+k} clamp")
    for k, r in enumerate(regs):
        V(4, f"v_max_f32 v{r}, 0, v{r}")
    for k, r in enumerate(regs):
        V(4, f"v_add_f32 v{r}, v{r}, v{tmp+k}")
    for k, r in enumerate(regs):
        V(4, f"v_add_f32 v{r}, s{S_C3}, v{r}")


def epi_q(cfg, acc, m):
    ops, V = mk_ops([acc])
    for half in range(2):
        regs = [acc + 8 * half + r for r in range(8)]
        phi_ops(V, regs, V_T)
        o = acc + 8 * half
        for j in range(4):
            V(4, f"v_cvt_pk_bf16_f32 v{o+j}, v{regs[2*j]}, v{regs[2*j+1]}")

        def st(a, o=o, half=half):
            a.i(f"s_add_u32 s{S_TMP}, s{S_TP}, {2*m}")
            a.i(f"s_and_b32 s{S_TMP}, s{S_TMP}, 63")
            a.i(f"s_mul_i32 s{S_TMP}, s{S_TMP}, {AF_TT}")
            a.i(f"s_add_u32 s{S_TMP}, s{S_TMP}, s{S_ST}")
            if half:
                a.i(f"s_add_u32 s{S_TMP}, s{S_TMP}, 4096")
            a.vmem("st", f"buffer_store_dwordx4 v[{o}:{o+3}], v{V_STO}, s[{S_WS}:{S_WS+3}], s{S_TMP} offen {cfg.store_aux}")
            a.nop(1)
        ops.append((12, st))
    return ops


def epi_kv(cfg, acc0, acc1, first):
    ops, V = mk_ops([acc0, acc1])
    for r in range(16):
        V(4, f"v_permlane16_swap_b32 v{acc0+r}, v{acc1+r}", chk=True)
    for half in range(2):
        phi_ops(V, [acc0 + 8 * half + r for r in range(8)], V_T)
    for j in range(8):
        V(4, f"v_cvt_pk_bf16_f32 v{acc1+j}, v{acc1+2*j}, v{acc1+2*j+1}")
    for r in range(16):
        if first and r == 0:
            V(4, f"v_mov_b32 v{V_ZS}, v{acc0}")
        else:
            V(4, f"v_add_f32 v{V_ZS}, v{V_ZS}, v{acc0+r}")
    for j in range(8):
        V(4, f"v_cvt_pk_bf16_f32 v{acc0+j}, v{acc0+2*j}, v{acc0+2*j+1}")

    def mm(a):
        a.nop(2)
        a.mfma(V_KV, f"v[{acc0}:{acc0+3}]", f"v[{acc1}:{acc1+3}]", None if first else V_KV)
        a.mfma(V_KV, f"v[{acc0+4}:{acc0+7}]", f"v[{acc1+4}:{acc1+7}]", V_KV)
    ops.append((24, mm))
    return ops


class K1State:
    pass


def k1_first_pass(a, cfg, kv):
    nm = 2 if kv else NM
    nl = 4 if kv else 11 - 2 * NM
    n1 = 2 * nm
    acc_blk = [V_ACC + 16 * k for k in range(4)]
    lbuf = [BUF[3], BUF[2], BUF[0], BUF[1], BUF[3], BUF[2], BUF[0]]
    a.vm, a.vm_done, a.ds, a.ds_done, a.mfma_w = ["pf"], 0, [], 0, {}
    for i in range(3):
        for grp in dma_stage_ops(i, nm):
            a.vm.append(f"S{i}")

    def opnds(q, xf):
        w = f"a[{4*q}:{4*q+3}]"
        x = f"v[{xf}:{xf+3}]"
        return (x, w) if kv else (w, x)

    def fp_reads(n):
        i, s = divmod(n, 4)
        L = []
        for rd in range(2):
            L.append((f"w{n}", f"ds_read_b64_tr_b16 a[{4*n+2*rd}:{4*n+2*rd+1}], v{V_WT} offset:{s*2048 + rd*512}"))
        for m in range(nm):
            xf = V_XFR + (n % 2) * 12 + 4 * m
            L.append((f"x{n}_{m}", f"ds_read_b128 v[{xf}:{xf+3}], v{V_XF+s} offset:{16384 + m*8192}"))
        return L

    st = K1State()
    st.nm, st.nl, st.n1, st.acc_blk, st.lbuf, st.opnds, st.kv = nm, nl, n1, acc_blk, lbuf, opnds, kv
    stamp(a, 1)
    a.wait(vm=["S0"])
    a.i("s_barrier")
    stamp(a, 2)
    for tag, text in fp_reads(0):
        a.dsop(tag, text)
    dma_q = []
    for n in range(32):
        i, s = divmod(n, 4)
        pre = []
        if s == 3:
            a.wait(ds_all=True)
            tgs = [f"S{i+1}"] if i < 7 else ["L0", "L1"]
            for tg in tgs:
                assert not any(op[1] == tg for g in dma_q for op in g), tg
                assert tg in a.vm
            a.wait(vm=tgs)
            a.i("s_barrier")
            if kv and i == 2:
                a.i(f"s_or_b32 s{S_T0}, s{S_P}, s{S_PR}")
                a.i(f"s_cmp_lg_u32 s{S_T0}, 0")
                a.i("s_cbranch_scc1 K1_kv_noflag")
                a.i("s_mov_b64 exec, 1")
                a.i(f"v_mov_b32 v{V_T}, 1")
                a.i(f"v_mov_b32 v{V_T+1}, 0")
                a.i(f"buffer_store_dword v{V_T}, v{V_T+1}, s[{S_DBG}:{S_DBG+3}], s{S_UNIT} offen sc1")
                a.i("s_mov_b64 exec, -1")
                a.label("K1_kv_noflag")
            if i + 3 <= 7:
                dma_q += dma_stage_ops(i + 3, nm)
            if i == 4:
                dma_q += dma_tile_ops(0, n1, lbuf[0])
            if i >= 5:
                dma_q += dma_tile_ops(i - 4, n1 + i - 4, lbuf[i - 4])
            if i < 7:
                d = (BUF[(i + 1) % 3] - BUF[i % 3]) & 0xffffffff
                pre = [f"v_add_u32 v{r}, {d:#x}, v{r}" for r in (V_WT, V_XF, V_XF + 1, V_XF + 2, V_XF + 3)]
            else:
                pre = [f"v_add_u32 v{r}, s{S_LB}, v{r}" for r in (V_XF, V_XF + 1, V_XF + 2, V_XF + 3)]
        for p in pre:
            a.i(p)
        if n < 31:
            fill = fp_reads(n + 1)
        else:
            fill = [lp_read(0, q) for q in range(3)]
        for m in range(nm):
            a.wait(ds=[f"w{n}", f"x{n}_{m}"])
            A, B = opnds(n, V_XFR + (n % 2) * 12 + 4 * m)
            a.mfma(acc_blk[m], A, B, None if n == 0 else acc_blk[m])
            k = 0
            while fill and k < 2:
                tag, text = fill.pop(0)
                a.dsop(tag, text)
                k += 1
            if dma_q:
                emit_group(a, dma_q.pop(0))
        while fill:
            tag, text = fill.pop(0)
            a.dsop(tag, text)
    st.dma_q = dma_q
    stamp(a, 3)
    return st


RING = 6


def lp_read(rd, q):
    i, s = divmod(q, 4)
    xf = V_XFR + 4 * ((rd * 32 + q) % RING)
    return (f"l{rd}_{q}", f"ds_read_b128 v[{xf}:{xf+3}], v{V_XF+s} offset:{i*4096}")


def k1_later(a, cfg, st, typ):
    nm, nl, n1, acc_blk, lbuf, opnds = st.nm, st.nl, st.n1, st.acc_blk, st.lbuf, st.opnds
    dma_q = list(st.dma_q)
    AH = cfg.ahead
    if typ == "mlp":
        a.i(f"s_lshl_b32 s{S_T0}, s{S_UNIT}, 2")
        a.i(f"s_add_u32 s{S_T0}, s{S_T0}, s{S_CT}")
    elif typ == "q":
        a.i(f"s_lshl_b32 s{S_T0}, s{S_UNIT}, 3")
        a.i(f"s_add_u32 s{S_T0}, s{S_T0}, s{S_CT}")
        a.i(f"s_sub_u32 s{S_T0}, s{S_T0}, {28*8-112}")
    if typ != "kv":
        a.i(f"s_lshl_b32 s{S_ST}, s{S_T0}, 10")
        if AF_OFF:
            a.i(f"s_add_u32 s{S_ST}, s{S_ST}, {AF_OFF}")
    for q in range(3, AH):
        tag, text = lp_read(0, q)
        a.dsop(tag, text)
    epi = []
    free_blk = acc_blk[nm:]

    def push_epi(blks, m, first=False):
        if typ == "mlp":
            ops = epi_mlp(cfg, blks[0], m)
        elif typ == "q":
            ops = epi_q(cfg, blks[0], m)
        else:
            ops = epi_kv(cfg, blks[0], blks[1], first)

        def rel(a, blks=blks):
            free_blk.extend(blks)
        ops.append((0, rel))
        epi.extend(ops)

    if typ == "kv":
        push_epi([acc_blk[0], acc_blk[1]], 0, first=True)
    else:
        for m in range(nm):
            push_epi([acc_blk[m]], m)
    extra = []
    if cfg.pf_w2 and typ != "kv":
        extra = pf_w2_ops(cfg)
    nrounds = (nl + 1) // 2
    pend = []

    def drain():
        while epi:
            c, f = epi.pop(0)
            f(a)

    for rd in range(nrounds):
        last_odd = (2 * rd + 1 >= nl)
        if last_odd:
            snap = (list(a.vm), a.vm_done, list(a.ds), a.ds_done, dict(a.mfma_w), list(epi), list(free_blk), a.n)
            a.i(f"s_lshr_b32 s{S_T0}, s{S_P}, 2")
            a.i(f"s_or_b32 s{S_T0}, s{S_T0}, s{S_PR}")
            a.i(f"s_cmp_eq_u32 s{S_T0}, 0")
            a.i(f"s_cbranch_scc1 K1_{typ}_last")
            stamp(a, 4)
            drain()
            stamp(a, 5)
            stamp_flush(a, 0, 7, S_WS)
            a.i("s_endpgm")
            a.label(f"K1_{typ}_last")
            a.vm, a.vm_done, a.ds, a.ds_done, a.mfma_w = snap[0], snap[1], snap[2], snap[3], snap[4]
            epi[:] = snap[5]
            free_blk[:] = snap[6]
            a.mfma_w = {k: a.n - (snap[7] - v) for k, v in snap[4].items()}
        while not free_blk:
            c, f = epi.pop(0)
            f(a)
        blk = free_blk.pop(0)
        has_next = rd + 1 < nrounds
        for q in range(32):
            if q == 32 - AH and has_next:
                tgs = [f"L{j}" for j in (2 * rd + 2, 2 * rd + 3) if j < nl]
                for tg in tgs:
                    assert not any(op[1] == tg for g in dma_q for op in g), tg
                    assert tg in a.vm
                a.wait(vm=tgs, ds_all=True)
                a.i("s_barrier")
                for nxt in (2 * rd + 4, 2 * rd + 5):
                    if nxt < nl:
                        dma_q += dma_tile_ops(nxt, n1 + nxt, lbuf[nxt])
                for r in range(4):
                    a.i(f"v_add_u32 v{V_XF+r}, s{S_LB+rd+1}, v{V_XF+r}")
            a.wait(ds=[f"l{rd}_{q}"])
            A, B = opnds(q, V_XFR + 4 * ((rd * 32 + q) % RING))
            a.mfma(blk, A, B, None if q == 0 else blk)
            if q + AH < 32:
                tag, text = lp_read(rd, q + AH)
                a.dsop(tag, text)
            elif has_next:
                tag, text = lp_read(rd + 1, q + AH - 32)
                a.dsop(tag, text)
            budget = cfg.fill_last if last_odd else cfg.fill_per_gap
            if dma_q:
                emit_group(a, dma_q.pop(0))
                budget -= 16
            elif extra and rd == cfg.pf_round and q % 2 == 0:
                emit_group(a, extra.pop(0))
                budget -= 16
            while epi and budget > 0:
                c, f = epi[0]
                if c > budget and budget < 16:
                    break
                epi.pop(0)
                f(a)
                budget -= c
        pend.append(blk)
        if typ == "kv":
            if len(pend) == 2:
                push_epi(pend, 0)
                pend = []
        else:
            push_epi(pend, nm + rd)
            pend = []
    assert not dma_q and not extra
    stamp(a, 4)
    if typ == "kv":
        k1_g_loads(a)
    drain()
    if typ == "kv":
        k1_kv_tail(a)
        k1_g_compute(a)
    stamp(a, 5)
    stamp_flush(a, 0, 7, S_WS)
    a.i("s_endpgm")


def pf_w2_ops(cfg):
    ops = []
    if cfg.pf_mode == 0:
        ops.append([("s", None, f"s_lshl_b32 s{S_T0}, s2, 3"),
                    ("s", None, f"s_add_u32 s{S_T0}, s{S_T0}, s{S_WAVE}"),
                    ("s", None, f"s_lshl_b32 s{S_T0}, s{S_T0}, 11"),
                    ("s", None, f"v_lshlrev_b32 v{V_E+1}, 7, v{V_LANE}"),
                    ("s", None, f"s_sub_u32 s{S_T1}, s{S_T0}, {1792*1024}"),
                    ("s", None, "s_mov_b64 exec, 0xffff"),
                    ("v", "pf", f"buffer_load_dword v{V_E}, v{V_E+1}, s[{S_W2}:{S_W2+3}], s{S_T0} offen"),
                    ("v", "pf", f"buffer_load_dword v{V_E}, v{V_E+1}, s[{S_WO}:{S_WO+3}], s{S_T1} offen"),
                    ("s", None, "s_mov_b64 exec, -1")])
    else:
        ops.append([("s", None, f"s_lshl_b32 s{S_T0}, s{S_IDX}, 3"),
                    ("s", None, f"s_add_u32 s{S_T0}, s{S_T0}, s{S_WAVE}"),
                    ("s", None, f"s_mul_i32 s{S_T0}, s{S_T0}, {12*1024}"),
                    ("s", None, f"s_and_b32 s{S_T1}, s{S_XCD}, 1"),
                    ("s", None, f"s_lshl_b32 s{S_T1}, s{S_T1}, 9"),
                    ("s", None, f"s_add_u32 s{S_T0}, s{S_T0}, s{S_T1}"),
                    ("s", None, f"v_lshrrev_b32 v{V_E+1}, 2, v{V_LANE}"),
                    ("s", None, f"v_lshlrev_b32 v{V_E+1}, 10, v{V_E+1}"),
                    ("s", None, f"v_and_b32 v{V_E+2}, 3, v{V_LANE}"),
                    ("s", None, f"v_lshl_add_u32 v{V_E+1}, v{V_E+2}, 7, v{V_E+1}"),
                    ("s", None, f"v_add_u32 v{V_E+1}, s{S_T0}, v{V_E+1}"),
                    ("s", None, f"v_subrev_u32 v{V_E+2}, {1792*1024}, v{V_E+1}"),
                    ("s", None, "s_mov_b32 exec_hi, 0xffff"),
                    ("v", "pf", f"buffer_load_dword v{V_E}, v{V_E+1}, s[{S_W2}:{S_W2+3}], 0 offen"),
                    ("v", "pf", f"buffer_load_dword v{V_E}, v{V_E+2}, s[{S_WO}:{S_WO+3}], 0 offen"),
                    ("s", None, "s_mov_b64 exec, -1")])
    return ops


def k1_kv_head(a):
    a.i(f"s_lshl_b32 s{S_T0}, s{S_XCD}, 2")
    a.i(f"s_add_u32 s{S_T0}, s{S_T0}, s{S_CT}")
    a.i(f"s_lshl_b32 s{S_UNIT}, s{S_T0}, 2")
    a.i(f"s_mul_i32 s{S_ST}, s{S_T0}, {KVT_HEAD}")
    a.i(f"s_add_u32 s{S_ST}, s{S_ST}, {KVT_OFF}")
    a.i(f"s_or_b32 s{S_T0}, s{S_P}, s{S_PR}")
    a.i(f"s_cmp_lg_u32 s{S_T0}, 0")
    a.i("s_cbranch_scc1 K1_kv_nozero")
    a.i(f"v_lshlrev_b32 v{V_T}, 3, v{V_LANE}")
    for k in range(6):
        a.i(f"v_mov_b32 v{V_KV+k}, 0")
    a.i(f"buffer_atomic_swap_x2 v[{V_KV}:{V_KV+1}], v{V_T}, s[{S_WS}:{S_WS+3}], s{S_ST} offen sc0")
    a.i(f"buffer_atomic_swap_x2 v[{V_KV+2}:{V_KV+3}], v{V_T}, s[{S_WS}:{S_WS+3}], s{S_ST} offen offset:512 sc0")
    a.i("s_mov_b64 exec, 0xffff")
    a.i(f"buffer_atomic_swap_x2 v[{V_KV+4}:{V_KV+5}], v{V_T}, s[{S_WS}:{S_WS+3}], s{S_ST} offen offset:1024 sc0")
    a.i("s_mov_b64 exec, -1")
    a.label("K1_kv_nozero")


def k1_kv_tail(a):
    t = V_T
    B = V_ACC
    a.need_acc(V_KV, 16)
    for r in range(8):
        a.i(f"v_permlane16_swap_b32 v{V_KV+8+r}, v{t+r}")
    a.i(f"v_mov_b32 v{B}, v{V_ZS}")
    a.nop(2)
    a.i(f"v_permlane16_swap_b32 v{B}, v{V_ZS}")
    a.nop(1)
    a.i(f"v_add_f32 v{V_ZS}, v{V_ZS}, v{B}")
    a.i(f"v_mov_b32 v{B}, v{V_ZS}")
    a.nop(2)
    a.i(f"v_permlane32_swap_b32 v{B}, v{V_ZS}")
    a.nop(1)
    a.i(f"v_add_f32 v{V_ZS}, v{V_ZS}, v{B}")
    for r in range(8):
        a.i(f"v_add_f32 v{V_KV+r}, v{V_KV+r}, v{t+r}")
    a.i(f"s_mul_i32 s{S_T1}, s{S_WAVE}, {KVT_HEAD}")
    a.i(f"s_add_u32 s{S_T1}, s{S_T1}, {BUF[3]}")
    a.i(f"v_and_b32 v{B}, 15, v{V_LANE}")
    a.i(f"v_lshrrev_b32 v{B+1}, 5, v{V_LANE}")
    a.i(f"v_lshl_add_u32 v{B+1}, v{B+1}, 4, v{B}")
    a.i(f"v_lshlrev_b32 v{B+1}, 5, v{B+1}")
    a.i(f"v_add_u32 v{B+1}, s{S_T1}, v{B+1}")
    a.i(f"v_and_b32 v{B+2}, 3, v{B}")
    a.i(f"v_lshrrev_b32 v{B+3}, 3, v{B}")
    a.i(f"v_lshl_add_u32 v{B+2}, v{B+3}, 2, v{B+2}")
    a.i(f"v_bfe_u32 v{B+3}, v{B}, 2, 1")
    a.i(f"v_lshl_add_u32 v{B+2}, v{B+3}, 3, v{B+2}")
    a.i(f"v_lshlrev_b32 v{B+2}, 2, v{B+2}")
    a.i(f"v_add_u32 v{B+2}, s{S_T1}, v{B+2}")
    a.i(f"v_lshlrev_b32 v{B+4}, 2, v{V_LANE}")
    a.i(f"v_add_u32 v{B+3}, s{S_T1}, v{B+4}")
    a.i(f"s_mov_b32 s{S_MASK}, 0xffff")
    a.i(f"s_mov_b32 s{S_MASK+1}, 0xffff")
    a.i(f"s_mov_b64 exec, s[{S_MASK}:{S_MASK+1}]")
    a.i(f"ds_write_b128 v{B+1}, v[{V_KV}:{V_KV+3}]")
    a.i(f"ds_write_b128 v{B+1}, v[{V_KV+4}:{V_KV+7}] offset:16")
    a.i("s_mov_b64 exec, 0xffff")
    a.i(f"ds_write_b32 v{B+2}, v{V_ZS} offset:1024")
    a.i("s_mov_b64 exec, -1")
    a.i("s_waitcnt lgkmcnt(0)")
    for k in range(5):
        a.i(f"ds_read_b32 v{B+8+k}, v{B+3} offset:{256*k}")
    a.label("K1_kv_poll")
    a.i("s_mov_b64 exec, 1")
    a.i(f"v_mov_b32 v{t+1}, 0")
    a.i(f"buffer_load_dword v{t}, v{t+1}, s[{S_DBG}:{S_DBG+3}], s{S_UNIT} offen sc1")
    a.i("s_waitcnt vmcnt(0)")
    a.i(f"v_readfirstlane_b32 s{S_T0}, v{t}")
    a.i("s_mov_b64 exec, -1")
    a.i(f"s_cmp_lg_u32 s{S_T0}, 0")
    a.i("s_cbranch_scc1 K1_kv_go")
    a.i("s_sleep 8")
    a.i("s_branch K1_kv_poll")
    a.label("K1_kv_go")
    a.vm_done = len(a.vm)
    a.i("s_waitcnt lgkmcnt(0)")
    for k in range(5):
        if k == 4:
            a.i("s_mov_b64 exec, 0xffff")
        a.vmem("at", f"buffer_atomic_add_f32 v{B+8+k}, v{B+4}, s[{S_WS}:{S_WS+3}], s{S_ST} offen offset:{256*k}")
    a.i("s_mov_b64 exec, -1")


def k1_g_loads(a):
    a.i(f"s_lshl_b32 s{S_T0}, s{S_P}, 8")
    a.i(f"s_lshl_b32 s{S_T1}, s{S_XCD}, 5")
    a.i(f"s_add_u32 s{S_T0}, s{S_T0}, s{S_T1}")
    a.i(f"s_lshl_b32 s{S_T1}, s{S_WAVE}, 2")
    a.i(f"s_add_u32 s{S_T2}, s{S_T0}, s{S_T1}")
    a.i(f"s_lshl_b32 s{S_T0}, s{S_T2}, 10")
    e = V_XFR
    a.nop(4)
    a.vmem("g", f"buffer_load_dwordx4 v[{e}:{e+3}], v{V_STO}, s[{S_GW}:{S_GW+3}], 0 offen")
    for k in range(4):
        a.vmem("g", f"buffer_load_dwordx4 v[{e+4+4*k}:{e+7+4*k}], v{V_STO}, s[{S_X}:{S_X+3}], s{S_T0} offen offset:{1024*k}")


def k1_g_compute(a):
    e = V_XFR
    a.wait(vm=["g"])
    t = V_ACC + 16
    R = [V_ACC + 24 + k for k in range(4)]
    for j in range(4):
        for k in range(4):
            a.i(f"v_dot2_f32_bf16 v{R[k]}, v{e+4+4*k+j}, v{e+j}, " + ("0" if j == 0 else f"v{R[k]}"))
    a.nop(4)
    for mod in ("row_shr:1", "row_shr:2", "row_shr:4", "row_shr:8"):
        for r in R:
            a.i(f"v_add_f32_dpp v{r}, v{r}, v{r} {mod} row_mask:0xf bank_mask:0xf bound_ctrl:0")
    for r in R:
        a.i(f"v_add_f32_dpp v{r}, v{r}, v{r} row_bcast:15 row_mask:0xa bank_mask:0xf")
    for r in R:
        a.i(f"v_add_f32_dpp v{r}, v{r}, v{r} row_bcast:31 row_mask:0xc bank_mask:0xf")

    def rnd(regs):
        for r in regs:
            a.i(f"v_cvt_pk_bf16_f32 v{r}, v{r}, v{r}")
        for r in regs:
            a.i(f"v_and_b32 v{r}, 0xffff0000, v{r}")
    rnd(R)
    for r in R:
        a.i(f"v_mul_f32 v{r}, s{S_C2}, v{r}")
    for r in R:
        a.i(f"v_exp_f32 v{r}, v{r}")
    for r in R:
        a.i(f"v_add_f32 v{r}, 1.0, v{r}")
    for r in R:
        a.i(f"v_rcp_f32 v{r}, v{r}")
    a.nop(1)
    rnd(R)
    o = V_ACC + 32
    O = [o + 2 * k + 1 for k in range(4)]
    for k in range(4):
        a.i(f"v_sub_f32 v{O[k]}, 1.0, v{R[k]}")
    rnd(O)
    for k in range(4):
        a.i(f"v_max_f32 v{O[k]}, 0x30800000, v{O[k]}")
    for k in range(4):
        a.i(f"v_rcp_f32 v{t+k}, v{O[k]}")
    a.nop(1)
    for k in range(4):
        a.i(f"v_fma_f32 v{t+4+k}, -v{O[k]}, v{t+k}, 1.0")
    for k in range(4):
        a.i(f"v_fma_f32 v{t+k}, v{t+4+k}, v{t+k}, v{t+k}")
    for k in range(4):
        a.i(f"v_mul_f32 v{o+2*k}, v{R[k]}, v{t+k}")
    a.i(f"s_lshl_b32 s{S_T0}, s{S_T2}, 3")
    a.i(f"s_add_u32 s{S_T0}, s{S_T0}, {G_OFF}")
    a.i(f"v_mov_b32 v{t}, 0")
    a.i(f"s_mov_b32 s{S_SAVE}, 0")
    a.i(f"s_mov_b32 s{S_SAVE+1}, 0x80000000")
    a.i(f"s_mov_b64 exec, s[{S_SAVE}:{S_SAVE+1}]")
    a.vmem("gst", f"buffer_store_dwordx4 v[{o}:{o+3}], v{t}, s[{S_WS}:{S_WS+3}], s{S_T0} offen")
    a.vmem("gst", f"buffer_store_dwordx4 v[{o+4}:{o+7}], v{t}, s[{S_WS}:{S_WS+3}], s{S_T0} offen offset:16")
    a.i("s_mov_b64 exec, -1")


def gen_k1(cfg):
    import copy
    a = Asm()
    a.raw(".globl k1_kernel\n.p2align 8\n.type k1_kernel,@function\nk1_kernel:")
    k1_prologue(a)
    a.i("s_cmp_eq_u32 s3, 2")
    a.i("s_cbranch_scc1 K1_kv")
    st = k1_first_pass(a, cfg, False)
    snap = (list(a.vm), a.vm_done, list(a.ds), a.ds_done, dict(a.mfma_w), a.n)
    a.i("s_cmp_eq_u32 s3, 1")
    a.i("s_cbranch_scc1 K1_q")
    k1_later(a, cfg, st, "mlp")
    a.raw(".p2align 6")
    a.label("K1_q")
    a.vm, a.vm_done, a.ds, a.ds_done = list(snap[0]), snap[1], list(snap[2]), snap[3]
    a.mfma_w = {k: a.n - (snap[5] - v) for k, v in snap[4].items()}
    k1_later(a, cfg, st, "q")
    a.raw(".p2align 6")
    a.label("K1_kv")
    k1_kv_head(a)
    st = k1_first_pass(a, cfg, True)
    k1_later(a, cfg, st, "kv")
    a.label("K1_done")
    a.i("s_endpgm")
    return a.text()


class K2Cfg:
    depth = 6
    wdepth = 8
    mode = 1
    nw = 4
    sep = 1
    out_aux = 'sc0 sc1'


def gen_k2(cfg):
    a = Asm()
    D, DW, NW = cfg.depth, cfg.wdepth, cfg.nw
    NH, NA = 112 // NW, 32 // NW
    C_WS, C_W2, C_WO, C_OUT = 40, 44, 48, 52
    C_W, C_RB, C_CB, C_M0, T0, T1, T2, T3 = 4, 5, 6, 7, 8, 9, 10, 11
    S_HB, S_WB, S_QB, S_OB, S_KVB, C_EPS = 12, 13, 14, 15, 56, 57
    V_L = 1
    V_A0, V_A1, V_WD, V_TR0, V_TR1, V_KVA = 2, 3, 4, 5, 6, 7
    VT = 8
    V_G = 16
    V_RC = 20
    V_KVF = 24
    V_WF = 32
    V_OF = 48
    P = 56
    ACC = 64
    A_ND = 64
    assert 8 * D <= 64
    a.raw(".globl k2_kernel\n.p2align 8\n.type k2_kernel,@function\nk2_kernel:")
    a.i("s_cmp_ge_u32 s2, 256")
    a.i("s_cbranch_scc1 K2_done")
    if DIAG:
        a.i("s_memrealtime s[38:39]")
    a.i("s_load_dwordx2 s[16:17], s[0:1], 16")
    a.i("s_load_dwordx2 s[18:19], s[0:1], 48")
    a.i("s_load_dwordx2 s[20:21], s[0:1], 64")
    a.i("s_load_dwordx2 s[22:23], s[0:1], 80")
    a.i("s_getpc_b64 s[24:25]")
    a.label("K2_pc")
    a.i(f"s_and_b32 s{T0}, s2, 7")
    a.i(f"s_lshr_b32 s{T1}, s2, 3")
    a.i(f"v_and_b32 v{V_L}, 63, v0")
    a.i(f"v_lshrrev_b32 v{VT}, 6, v0")
    a.i(f"s_lshl_b32 s{T2}, s{T1}, 9")
    a.i(f"v_readfirstlane_b32 s{C_W}, v{VT}")
    a.i(f"v_lshlrev_b32 v{VT+1}, 7, v0")
    a.i(f"v_add_u32 v{VT+1}, s{T2}, v{VT+1}")
    a.i(f"v_min_u32 v{VT+1}, CODE_END-K2_pc-4, v{VT+1}")
    a.i("v_cmp_gt_u32 vcc, 4, v0")
    a.i("s_and_saveexec_b64 s[26:27], vcc")
    a.i("s_cbranch_execz K2_nopf")
    a.i(f"global_load_dword v{P+7}, v{VT+1}, s[24:25]")
    a.label("K2_nopf")
    a.i("s_mov_b64 exec, s[26:27]")
    a.vm.append("pf")
    if cfg.mode == 0:
        a.i(f"s_lshr_b32 s{C_RB}, s{T1}, 3")
        a.i(f"s_lshl_b32 s{T2}, s{T0}, 2")
        a.i(f"s_add_u32 s{C_RB}, s{C_RB}, s{T2}")
        a.i(f"s_and_b32 s{C_CB}, s{T1}, 7")
    else:
        a.i(f"s_lshr_b32 s{C_RB}, s{T0}, 1")
        a.i(f"s_lshl_b32 s{C_RB}, s{C_RB}, 3")
        a.i(f"s_lshr_b32 s{T2}, s{T1}, 2")
        a.i(f"s_add_u32 s{C_RB}, s{C_RB}, s{T2}")
        a.i(f"s_and_b32 s{C_CB}, s{T0}, 1")
        a.i(f"s_lshl_b32 s{C_CB}, s{C_CB}, 2")
        a.i(f"s_and_b32 s{T2}, s{T1}, 3")
        a.i(f"s_add_u32 s{C_CB}, s{C_CB}, s{T2}")
    t = VT
    a.i(f"s_mul_i32 s{T0}, s{C_RB}, {2*AF_TT}")
    a.i(f"v_lshlrev_b32 v{V_A0}, 4, v{V_L}")
    a.i(f"v_add_u32 v{V_A0}, s{T0}, v{V_A0}")
    a.i(f"v_add_u32 v{V_A1}, {AF_TT}, v{V_A0}")
    a.i(f"s_mul_i32 s{S_HB}, s{C_W}, {NH*1024}")
    a.i(f"s_mul_i32 s{S_WB}, s{C_W}, {NH*16384}")
    a.i(f"s_mul_i32 s{S_QB}, s{C_W}, {NA*1024}")
    a.i(f"s_add_u32 s{S_QB}, s{S_QB}, {112*1024}")
    a.i(f"s_mul_i32 s{S_OB}, s{C_W}, {NA*16384}")
    a.i(f"s_mul_i32 s{S_KVB}, s{C_W}, {NA*KVT_HEAD}")
    a.i(f"s_add_u32 s{S_KVB}, s{S_KVB}, {KVT_OFF}")
    a.i(f"s_mul_i32 s{C_M0}, s{C_W}, {DW*2048}")
    SEP = cfg.sep and NW * (DW * 2048 + 64 * 272) <= 163840
    if SEP:
        a.i(f"s_add_u32 s{C_M0}, s{C_M0}, {NW*64*272}")
    a.i(f"s_mov_b32 s{C_EPS}, {EPS:#x}")
    a.i(f"v_lshrrev_b32 v{t}, 3, v{V_L}")
    a.i(f"v_and_b32 v{t+1}, 7, v{V_L}")
    a.i(f"v_bfe_u32 v{t+2}, v{V_L}, 4, 1")
    a.i(f"v_lshlrev_b32 v{t+2}, 2, v{t+2}")
    a.i(f"v_xor_b32 v{t+1}, v{t+1}, v{t+2}")
    a.i(f"v_lshlrev_b32 v{t}, 10, v{t}")
    a.i(f"v_lshl_add_u32 v{V_WD}, v{t+1}, 4, v{t}")
    a.i(f"s_lshl_b32 s{T0}, s{C_CB}, 7")
    a.i(f"v_add_u32 v{V_WD}, s{T0}, v{V_WD}")
    a.i("s_waitcnt lgkmcnt(0)")
    srd(a, C_WS, 22, WS_USED)
    srd(a, C_W2, 18, 1792 * 1024)
    srd(a, C_WO, 16, 512 * 1024)

    seq = []
    hq, aq = list(range(NH)), list(range(NA))
    NS = NH + NA
    gap = max((NS - 3) // NA, 2)
    for n in range(NS):
        if aq and n % gap == gap - 1 and n < NS - 2:
            seq.append(("a", aq.pop(0)))
        elif hq:
            seq.append(("h", hq.pop(0)))
        else:
            seq.append(("a", aq.pop(0)))
    assert not hq and not aq

    def issue_w(n):
        kind, k = seq[n]
        d = n % DW
        wb, w = (S_WB, C_W2) if kind == "h" else (S_OB, C_WO)
        for b in range(2):
            a.i(f"s_add_u32 m0, s{C_M0}, {d*2048 + b*1024}")
            a.i(f"s_add_u32 s{T2}, s{wb}, {k*16384 + b*8192}")
            a.vmem(f"s{n}", f"buffer_load_dwordx4 v{V_WD}, s[{w}:{w+3}], s{T2} offen lds")

    def issue(n):
        kind, k = seq[n]
        d = n % D
        ab = S_HB if kind == "h" else S_QB
        a.i(f"s_add_u32 s{T1}, s{ab}, {k*1024}")
        a.vmem(f"s{n}", f"buffer_load_dwordx4 a[{8*d}:{8*d+3}], v{V_A0}, s[{C_WS}:{C_WS+3}], s{T1} offen")
        a.vmem(f"s{n}", f"buffer_load_dwordx4 a[{8*d+4}:{8*d+7}], v{V_A1}, s[{C_WS}:{C_WS+3}], s{T1} offen")

    def kv_issue(k):
        a.i(f"s_add_u32 s{T3}, s{S_KVB}, {k*KVT_HEAD}")
        a.vmem(f"kv{k}", f"buffer_load_dwordx4 v[{VT}:{VT+3}], v{V_KVA}, s[{C_WS}:{C_WS+3}], s{T3} offen")
        a.vmem(f"kv{k}", f"buffer_load_dwordx4 v[{VT+4}:{VT+7}], v{V_KVA}, s[{C_WS}:{C_WS+3}], s{T3} offen offset:16")

    def tr_reads(n):
        d = n % DW
        wf = V_WF + 8 * (n % 2)
        for ct, va in enumerate((V_TR0, V_TR1)):
            for rd in range(2):
                r = wf + 4 * ct + 2 * rd
                a.dsop(f"t{n}", f"ds_read_b64_tr_b16 v[{r}:{r+1}], v{va} offset:{d*2048 + rd*1024}")

    for n in range(max(D, DW)):
        if n < DW:
            issue_w(n)
        if n < D:
            issue(n)
    srd(a, C_OUT, 20, 2048 * 1024)
    u = P
    a.i(f"v_lshrrev_b32 v{u}, 5, v{V_L}")
    a.i(f"v_bfe_u32 v{u+1}, v{V_L}, 2, 2")
    a.i(f"v_lshl_add_u32 v{u}, v{u}, 2, v{u+1}")
    a.i(f"v_bfe_u32 v{u+1}, v{V_L}, 4, 1")
    a.i(f"v_bfe_u32 v{u+2}, v{V_L}, 1, 1")
    a.i(f"v_lshl_add_u32 v{u+1}, v{u+1}, 1, v{u+2}")
    a.i(f"v_bfe_u32 v{u+2}, v{V_L}, 3, 1")
    a.i(f"v_lshlrev_b32 v{u+2}, 2, v{u+2}")
    a.i(f"v_xor_b32 v{u+1}, v{u+1}, v{u+2}")
    a.i(f"v_lshlrev_b32 v{u}, 7, v{u}")
    a.i(f"v_lshl_add_u32 v{u}, v{u+1}, 4, v{u}")
    a.i(f"v_and_b32 v{u+1}, 1, v{V_L}")
    a.i(f"v_lshl_add_u32 v{u}, v{u+1}, 3, v{u}")
    a.i(f"v_add_u32 v{V_TR0}, s{C_M0}, v{u}")
    a.i(f"v_xor_b32 v{u}, 64, v{u}")
    a.i(f"v_add_u32 v{V_TR1}, s{C_M0}, v{u}")
    a.i(f"v_and_b32 v{u}, 31, v{V_L}")
    a.i(f"v_lshrrev_b32 v{u+1}, 5, v{V_L}")
    a.i(f"v_lshl_add_u32 v{u+2}, v{u+1}, 4, v{u}")
    a.i(f"v_add_u32 v{u+1}, 32, v{u+1}")
    a.i(f"v_cmp_gt_u32 vcc, 16, v{u}")
    a.i(f"v_lshlrev_b32 v{V_G+2}, 3, v{u}")
    a.i(f"s_lshl_b32 s{T0}, s{C_RB}, 9")
    a.i(f"s_add_u32 s{T0}, s{T0}, {G_OFF}")
    a.i(f"v_cndmask_b32 v{u+2}, v{u+1}, v{u+2}, vcc")
    a.i(f"v_lshlrev_b32 v{V_KVA}, 5, v{u+2}")
    a.vmem("kv0", f"buffer_load_dword v{V_G}, v{V_G+2}, s[{C_WS}:{C_WS+3}], s{T0} offen")
    a.vmem("kv0", f"buffer_load_dword v{V_G+1}, v{V_G+2}, s[{C_WS}:{C_WS+3}], s{T0} offen offset:256")
    kv_issue(0)
    stamp(a, 1, 60)
    a.wait(vm=["s0"])
    stamp(a, 2, 60)
    tr_reads(0)
    nd_w = {}
    for n in range(NS):
        kind, k = seq[n]
        d = n % D
        if kind == "a":
            a.wait(vm=[f"kv{k}"])
            for j in range(4):
                a.i(f"v_cvt_pk_bf16_f32 v{V_KVF+j}, v{VT+2*j}, v{VT+2*j+1}")
            a.nop(2)
            for tt in range(2):
                b = A_ND + 16 * tt
                a.i(f"v_mfma_f32_32x32x16_bf16 a[{b}:{b+15}], v[{V_KVF}:{V_KVF+3}], a[{8*d+4*tt}:{8*d+4*tt+3}], 0")
                nd_w[tt] = a.n
            if k + 1 < NA:
                kv_issue(k + 1)
        if n + 1 < NS:
            a.wait(vm=[f"s{n+1}"])
            tr_reads(n + 1)
        if kind == "a":
            for tt in range(2):
                g_ = a.n - nd_w[tt]
                if g_ < 13:
                    a.nop(13 - g_)
                a.i(f"v_accvgpr_read_b32 v{V_RC+tt}, a{A_ND+16*tt+8}")
            for tt in range(2):
                a.i(f"v_add_f32 v{V_RC+tt}, s{C_EPS}, v{V_RC+tt}")
            for tt in range(2):
                a.i(f"v_rcp_f32 v{V_RC+tt}, v{V_RC+tt}")
            a.nop(1)
            for tt in range(2):
                a.i(f"v_mul_f32 v{V_RC+tt}, v{V_RC+tt}, v{V_G+tt}")
            for tt in range(2):
                for j in range(8):
                    a.i(f"v_accvgpr_read_b32 v{P+j}, a{A_ND+16*tt+j}")
                for j in range(8):
                    a.i(f"v_mul_f32 v{P+j}, v{P+j}, v{V_RC+tt}")
                for j in range(4):
                    a.i(f"v_cvt_pk_bf16_f32 v{V_OF+4*tt+j}, v{P+2*j}, v{P+2*j+1}")
            a.nop(2)
        a.wait(ds=[f"t{n}"])
        wf = V_WF + 8 * (n % 2)
        for ct in range(2):
            for tt in range(2):
                blk = ACC + 16 * (ct * 2 + tt)
                B = f"v[{V_OF+4*tt}:{V_OF+4*tt+3}]" if kind == "a" else f"a[{8*d+4*tt}:{8*d+4*tt+3}]"
                a.mfma(blk, f"v[{wf+4*ct}:{wf+4*ct+3}]", B, blk if n else None)
        if n + DW < NS:
            issue_w(n + DW)
        if n + D < NS:
            issue(n + D)
    stamp(a, 3, 60)
    PITCH = 272
    WSZ = 64 * PITCH
    TPW = 64 // NW
    a.i(f"v_lshrrev_b32 v{t+1}, 3, v{V_L}")
    a.i(f"s_mul_i32 s{T0}, s{C_W}, {TPW}")
    a.i(f"v_add_u32 v{t+1}, s{T0}, v{t+1}")
    a.i(f"v_lshlrev_b32 v{t+5}, 3, v{t+1}")
    a.i(f"s_lshl_b32 s{T0}, s{C_RB}, 9")
    a.i(f"s_add_u32 s{T0}, s{T0}, {G_OFF + 4}")
    for hf in range(TPW // 8):
        a.i(f"buffer_load_dword v{V_RC+hf}, v{t+5}, s[{C_WS}:{C_WS+3}], s{T0} offen offset:{64*hf}")
    a.i(f"v_and_b32 v{t}, 31, v{V_L}")
    a.i(f"v_lshrrev_b32 v{t+2}, 5, v{V_L}")
    a.i(f"v_mul_u32_u24 v{t}, {PITCH}, v{t}")
    a.i(f"v_lshl_add_u32 v{t}, v{t+2}, 4, v{t}")
    a.i(f"s_mul_i32 s{T0}, s{C_W}, {WSZ}")
    a.i(f"v_add_u32 v{t}, s{T0}, v{t}")
    a.i(f"v_and_b32 v{t+2}, 7, v{V_L}")
    a.i(f"v_mul_u32_u24 v{t+3}, {PITCH}, v{t+1}")
    a.i(f"v_lshl_add_u32 v{t+3}, v{t+2}, 5, v{t+3}")
    a.i(f"v_add_u32 v{t+6}, {3*WSZ}, v{t+3}")
    a.i(f"v_add_u32 v{t+7}, {6*WSZ}, v{t+3}")
    a.i(f"v_lshlrev_b32 v{t+4}, 10, v{t+1}")
    a.i(f"v_lshl_add_u32 v{t+4}, v{t+2}, 4, v{t+4}")
    a.i(f"s_lshl_b32 s{T0}, s{C_RB}, 16")
    a.i(f"s_lshl_b32 s{T1}, s{C_CB}, 7")
    a.i(f"s_add_u32 s{T0}, s{T0}, s{T1}")
    if not SEP:
        a.i("s_waitcnt lgkmcnt(0)")
        a.i("s_barrier")
    for blk in range(4):
        a.need_acc(ACC + 16 * blk, 16)
    for blk in range(4):
        ct, tt = blk >> 1, blk & 1
        for q in range(4):
            r = ACC + 16 * blk + 4 * q
            off = tt * 32 * PITCH + (ct * 32 + 8 * q) * 4
            a.i(f"ds_write_b128 v{t}, v[{r}:{r+3}] offset:{off}")
    a.i("s_waitcnt lgkmcnt(0)")
    a.i("s_barrier")
    R = ACC
    for hf in range(TPW // 8):
        for w in range(NW):
            for p in range(2):
                r = R + hf * 32 + w * 8 + p * 4
                va = (t + 3, t + 6, t + 7)[w // 3]
                a.i(f"ds_read_b128 v[{r}:{r+3}], v{va} offset:{(w % 3) * WSZ + hf * 8 * PITCH + p * 16}")
    a.i("s_waitcnt lgkmcnt(0) vmcnt(0)")
    for hf in range(TPW // 8):
        b = R + hf * 32
        step = 8
        while step < NW * 8:
            for w in range(0, NW * 8, 2 * step):
                for j in range(8):
                    a.i(f"v_add_f32 v{b+w+j}, v{b+w+j}, v{b+w+step+j}")
            step *= 2
        for j in range(8):
            a.i(f"v_mul_f32 v{b+j}, v{b+j}, v{V_RC+hf}")
        for j in range(4):
            a.i(f"v_cvt_pk_bf16_f32 v{b+8+j}, v{b+2*j}, v{b+2*j+1}")
        if hf:
            a.i(f"s_add_u32 s{T0}, s{T0}, 8192")
        a.i(f"buffer_store_dwordx4 v[{b+8}:{b+11}], v{t+4}, s[{C_OUT}:{C_OUT+3}], s{T0} offen {cfg.out_aux}")
    stamp(a, 4, 60)
    stamp_flush(a, 1, 6, C_WS, 60)
    a.label("K2_done")
    a.i("s_endpgm")
    lds = NW * (DW * 2048 + WSZ) if SEP else max(NW * DW * 2048, NW * WSZ)
    return a.text(), lds, NW


def kd(name, nv, accum, nsgpr=102):
    return f""".p2align 6
.amdhsa_kernel {name}
  .amdhsa_next_free_vgpr {nv}
  .amdhsa_next_free_sgpr {nsgpr}
  .amdhsa_accum_offset {accum}
  .amdhsa_group_segment_fixed_size 0
  .amdhsa_kernarg_size 88
  .amdhsa_user_sgpr_count 2
  .amdhsa_user_sgpr_kernarg_segment_ptr 1
  .amdhsa_system_sgpr_workgroup_id_x 1
  .amdhsa_float_denorm_mode_32 3
.end_amdhsa_kernel"""


def build(c1=None, c2=None):
    c1 = c1 or K1Cfg()
    c2 = c2 or K2Cfg()
    k1 = gen_k1(c1)
    k2, lds2, nw2 = gen_k2(c2)
    hdr = f"""; gated_mix: linear attention block + SwiGLU block, gated mix.  Generated by gen/gen8.py
; @launch kernel=k1_kernel grid=(256,1,1) block=(512,1,1) lds={K1_LDS}
; @launch kernel=k2_kernel grid=(256,1,1) block=({nw2*64},1,1) lds={lds2}
.amdgcn_target "amdgcn-amd-amdhsa--gfx950"
.text
"""
    tail = """
.p2align 8
CODE_END:
    s_endpgm
.section .rodata,"a"
"""
    return hdr + k1 + "\n" + k2 + tail + kd("k1_kernel", 256, 128) + "\n" + kd("k2_kernel", 224, 128) + "\n"


if __name__ == "__main__":
    if "--diag" in sys.argv:
        DIAG = True
        sys.argv.remove("--diag")
    c1, c2 = K1Cfg(), K2Cfg()
    for arg in list(sys.argv[1:]):
        if "=" in arg:
            k, v = arg.split("=")
            c = c2 if k.startswith("k2_") else c1
            k = k[3:] if k.startswith("k2_") else k
            setattr(c, k, v if k.endswith("_aux") else int(v))
            sys.argv.remove(arg)
    KROT, NM, SHIFT, TOUCHX = c1.krot, c1.nm, c1.shift, c1.touch_x
    out = sys.argv[1] if len(sys.argv) > 1 else f"cdna_kernels/{NAME}.s"
    open(out, "w").write(build(c1, c2))
    print("wrote", out)
```

```python
import sys

NAME = "gated_mix__linear_attn_block__glu_gated_swiglu__prompt"

AF_OFF = 0
AF_TT = 144 * 1024
AF_SIZE = 64 * AF_TT
KVT_OFF = AF_SIZE
KVT_HEAD = 1152
KVT_SIZE = 32 * KVT_HEAD
G_OFF = KVT_OFF + KVT_SIZE
G_SIZE = 2048 * 8
WS_USED = G_OFF + G_SIZE

STAMP_OFF = 16 << 20
DIAG = False

LOG2E = 0x3FB8AA3B
NLOG2E = 0xBFB8AA3B
EPS = 0x358637BD


class Asm:
    def __init__(self):
        self.L = []
        self.n = 0
        self.vm = []
        self.vm_done = 0
        self.ds = []
        self.ds_done = 0
        self.mfma_w = {}

    def raw(self, s):
        self.L.append(s)

    def i(self, s):
        self.L.append("    " + s)
        self.n += 1

    def label(self, s):
        self.L.append(s + ":")

    def vmem(self, tag, s):
        self.i(s)
        self.vm.append(tag)

    def dsop(self, tag, s):
        self.i(s)
        self.ds.append(tag)

    def _need(self, lst, tags):
        last = -1
        for k, t in enumerate(lst):
            if t in tags:
                last = k
        return last

    def wait(self, vm=(), ds=(), vm_all=False, ds_all=False):
        parts = []
        if vm_all:
            lv = len(self.vm) - 1
        else:
            lv = self._need(self.vm, set(vm)) if vm else -1
        if lv >= self.vm_done:
            n = len(self.vm) - 1 - lv
            assert n <= 63, n
            parts.append(f"vmcnt({n})")
            self.vm_done = lv + 1
        if ds_all:
            ld = len(self.ds) - 1
        else:
            ld = self._need(self.ds, set(ds)) if ds else -1
        if ld >= self.ds_done:
            n = len(self.ds) - 1 - ld
            if n > 15:
                n = 15
                ld = len(self.ds) - 1 - 15
            parts.append(f"lgkmcnt({n})")
            self.ds_done = ld + 1
        if parts:
            self.i("s_waitcnt " + " ".join(parts))

    def nop(self, k):
        while k > 0:
            c = min(k, 16)
            self.L.append(f"    s_nop {c-1}")
            self.n += c
            k -= c

    def mfma(self, d, a, b, c):
        cs = "0" if c is None else f"v[{c}:{c+15}]"
        self.i(f"v_mfma_f32_32x32x16_bf16 v[{d}:{d+15}], {a}, {b}, {cs}")
        self.mfma_w[d] = self.n

    def need_acc(self, d, dist=13):
        if d in self.mfma_w:
            gap = self.n - self.mfma_w[d]
            if gap < dist:
                self.nop(dist - gap)

    def text(self):
        return "\n".join(self.L)


def stamp(a, k, base=16):
    if DIAG:
        a.i(f"s_memrealtime s[{base+2*k}:{base+2*k+1}]")


def stamp_flush(a, kern, nst, ws_ptr_srd, base=16, t0=38):
    if not DIAG:
        return
    a.i("s_waitcnt vmcnt(0)")
    stamp(a, nst - 1, base)
    a.i("s_waitcnt lgkmcnt(0)")
    a.i("v_cmp_eq_u32 vcc, 0, v0")
    a.i("s_and_saveexec_b64 s[94:95], vcc")
    a.i(f"s_cbranch_execz STAMP_skip_{a.n}")
    lbl = f"STAMP_skip_{a.n-1}"
    a.L[-1] = f"    s_cbranch_execz {lbl}"
    a.i(f"s_mov_b32 s{ws_ptr_srd+2}, {STAMP_OFF + 65536}")
    a.i(f"s_lshl_b32 s3, s2, 6")
    a.i(f"s_add_u32 s3, s3, {STAMP_OFF + kern*16384}")
    a.i("v_mov_b32 v2, 0")
    for k in range(nst):
        src = t0 if k == 0 else base + 2 * k
        a.i(f"v_mov_b32 v4, s{src}")
        a.i(f"v_mov_b32 v5, s{src+1}")
        a.i(f"buffer_store_dwordx2 v[4:5], v2, s[{ws_ptr_srd}:{ws_ptr_srd+3}], s3 offen offset:{8*k}")
        a.i("s_nop 1")
    a.label(lbl)


def srd(a, s, ptr, size):
    a.i(f"s_mov_b32 s{s}, s{ptr}")
    a.i(f"s_and_b32 s{s+1}, s{ptr+1}, 0xffff")
    a.i(f"s_mov_b32 s{s+2}, {size}")
    a.i(f"s_mov_b32 s{s+3}, 0x20000")


class K1Cfg:
    store_aux = "sc1"
    fill_per_gap = 28
    ahead = 5
    pf_w2 = True
    krot = 1
    nm = 2
    fill_last = 20
    pf_mode = 1
    pf_round = 1
    shift = 1
    touch_x = 1


S_X, S_A, S_B, S_WS, S_GW, S_DBG, S_W2, S_WO = 40, 44, 48, 52, 56, 60, 64, 68
S_XCD, S_IDX, S_WAVE, S_TILE0, S_PITCH, S_COLA, S_COLB, S_UNIT = 4, 5, 6, 7, 8, 9, 10, 11
S_T0, S_T1, S_T2, S_T3 = 12, 13, 14, 15
S_XKF = 72
S_WK = 80
S_M0X = 88
S_M0W = 89
S_ST = 90
S_C1, S_C2, S_C3 = 91, 92, 93
S_MASK = 94
S_TMP = 96
S_P = 97
S_SAVE = 98
S_PR, S_CT = 100, 101
S_XKP = 30
S_LB = 34

V_LANE = 1
V_WA, V_WB, V_XD = 2, 3, 4
V_WT = 5
V_STO = 6
V_ZS = 7
V_XF = 8
V_T = 12
V_XFR = 20
V_E = 44
V_KV = 48
V_ACC = 64

SLOT = 40960
BUF = [0, SLOT, 2 * SLOT, 3 * SLOT]
K1_LDS = 3 * SLOT + 32768


def dma_stage_ops(i, nm):
    slot = BUF[i % 3]
    ops = []
    for seg, (va, sr) in enumerate(((V_WA, S_A), (V_WB, S_B))):
        ops.append([("s", None, f"s_add_u32 m0, s{S_M0W}, {slot + seg*8192}"),
                    ("s", None, "s_nop 0"),
                    ("v", f"S{i}", f"buffer_load_dwordx4 v{va}, s[{sr}:{sr+3}], s{S_WK+i} offen lds")])
    for m in range(nm):
        ops.append([("s", None, f"s_add_u32 m0, s{S_M0X}, {slot + 16384 + m*8192}"),
                    ("s", None, f"s_add_u32 s{S_TMP}, s{S_TBP}, {m*65536}"),
                    ("s", None, f"s_and_b32 s{S_TMP}, s{S_TMP}, 0x1fffff"),
                    ("s", None, f"s_add_u32 s{S_TMP}, s{S_TMP}, s{S_XKF+i}"),
                    ("v", f"S{i}", f"buffer_load_dwordx4 v{V_XD}, s[{S_X}:{S_X+3}], s{S_TMP} offen lds")])
    return ops


def dma_tile_ops(lj, tile, buf):
    ops = []
    for m in range(4):
        ops.append([("s", None, f"s_add_u32 m0, s{S_M0X}, {buf + m*8192}"),
                    ("s", None, f"s_add_u32 s{S_TMP}, s{S_TB0}, {tile*32768}"),
                    ("s", None, f"s_and_b32 s{S_TMP}, s{S_TMP}, 0x1fffff"),
                    ("s", None, f"s_add_u32 s{S_TMP}, s{S_TMP}, s{S_XKP+m}"),
                    ("v", f"L{lj}", f"buffer_load_dwordx4 v{V_XD}, s[{S_X}:{S_X+3}], s{S_TMP} offen lds")])
    return ops


def emit_group(a, grp):
    for kind, tag, text in grp:
        if kind == "v":
            a.vmem(tag, text)
        else:
            a.i(text)


KROT = 1
NM = 3
SHIFT = 1
TOUCHX = 1
S_TBP, S_TB0, S_TP = 9, 10, 8
S_KR = 39


def k1_prologue(a):
    a.i("s_cmp_ge_u32 s2, 256")
    a.i("s_cbranch_scc1 K1_done")
    if DIAG:
        a.i("s_memrealtime s[38:39]")
    a.i("s_load_dwordx16 s[16:31], s[0:1], 0")
    a.i("s_load_dwordx4 s[32:35], s[0:1], 64")
    a.i("s_load_dwordx2 s[36:37], s[0:1], 80")
    a.i("s_getpc_b64 s[98:99]")
    a.label("K1_pc")
    a.i(f"s_and_b32 s{S_XCD}, s2, 7")
    a.i(f"s_lshr_b32 s{S_IDX}, s2, 3")
    a.i(f"v_and_b32 v{V_LANE}, 63, v0")
    a.i(f"v_lshrrev_b32 v{V_T}, 6, v0")
    a.i(f"s_lshl_b32 s{S_T0}, s{S_IDX}, 11")
    a.i(f"v_readfirstlane_b32 s{S_WAVE}, v{V_T}")
    a.i(f"v_lshlrev_b32 v{V_T+1}, 7, v0")
    a.i(f"v_add_u32 v{V_T+1}, s{S_T0}, v{V_T+1}")
    a.i(f"v_min_u32 v{V_T+1}, CODE_END-K1_pc-4, v{V_T+1}")
    a.i("v_cmp_gt_u32 vcc, 16, v0")
    a.i("s_and_saveexec_b64 s[94:95], vcc")
    a.i("s_cbranch_execz K1_nopf")
    a.i(f"global_load_dword v{V_E}, v{V_T+1}, s[98:99]")
    a.label("K1_nopf")
    a.i("s_mov_b64 exec, s[94:95]")
    a.i(f"s_lshr_b32 s{S_PR}, s{S_WAVE}, 2")
    a.i(f"s_and_b32 s{S_CT}, s{S_WAVE}, 3")
    a.i(f"s_mul_i32 s{S_T0}, s{S_IDX}, 43")
    a.i(f"s_lshr_b32 s{S_T0}, s{S_T0}, 8")
    a.i(f"s_mul_i32 s{S_T1}, s{S_T0}, 6")
    a.i(f"s_sub_u32 s{S_P}, s{S_IDX}, s{S_T1}")
    a.i(f"s_lshl_b32 s{S_T0}, s{S_T0}, 3")
    a.i(f"s_add_u32 s{S_UNIT}, s{S_T0}, s{S_XCD}")
    a.i(f"s_mul_i32 s{S_TILE0}, s{S_P}, 11")
    a.i(f"s_max_u32 s{S_T0}, s{S_P}, 4")
    a.i(f"s_sub_u32 s{S_T0}, s{S_T0}, 4")
    a.i(f"s_sub_u32 s{S_TILE0}, s{S_TILE0}, s{S_T0}")
    a.i(f"s_lshl_b32 s{S_COLA}, s{S_UNIT}, 7")
    a.i(f"s_mov_b32 s{S_COLB}, s{S_COLA}")
    a.i(f"s_sub_u32 s{S_T0}, s{S_UNIT}, 28")
    a.i(f"s_lshl_b32 s{S_T0}, s{S_T0}, 8")
    a.i(f"s_add_u32 s{S_T1}, s{S_T0}, 128")
    a.i(f"s_cmp_ge_u32 s{S_UNIT}, 28")
    a.i(f"s_cselect_b32 s{S_COLA}, s{S_T0}, s{S_COLA}")
    a.i(f"s_cselect_b32 s{S_COLB}, s{S_T1}, s{S_COLB}")
    a.i("s_cselect_b32 s3, 1, 0")
    a.i(f"s_lshl_b32 s{S_T0}, s{S_XCD}, 7")
    a.i(f"s_add_u32 s{S_T1}, s{S_T0}, 2048")
    a.i(f"s_add_u32 s{S_T0}, s{S_T0}, 1024")
    a.i(f"s_sub_u32 s{S_T2}, s{S_IDX}, 24")
    a.i(f"s_lshl_b32 s{S_T3}, s{S_T2}, 3")
    a.i(f"s_cmp_ge_u32 s{S_IDX}, 24")
    a.i(f"s_cselect_b32 s{S_COLA}, s{S_T0}, s{S_COLA}")
    a.i(f"s_cselect_b32 s{S_COLB}, s{S_T1}, s{S_COLB}")
    a.i(f"s_cselect_b32 s{S_P}, s{S_T2}, s{S_P}")
    a.i(f"s_cselect_b32 s{S_TILE0}, s{S_T3}, s{S_TILE0}")
    a.i("s_cselect_b32 s3, 2, s3")
    a.i("s_cmp_eq_u32 s3, 0")
    a.i(f"s_movk_i32 s{S_T0}, 3584")
    a.i(f"s_movk_i32 s{S_T1}, 3072")
    a.i(f"s_cselect_b32 s{S_PITCH}, s{S_T0}, s{S_T1}")
    if SHIFT:
        a.i(f"s_mul_i32 s{S_T2}, s{S_XCD}, 11")
        a.i(f"s_lshr_b32 s{S_T2}, s{S_T2}, 3")
        a.i(f"s_add_u32 s{S_TILE0}, s{S_TILE0}, s{S_T2}")
    a.i(f"s_lshl_b32 s{S_T3}, s{S_PITCH}, 6")
    if KROT:
        a.i(f"s_add_u32 s{S_C1}, s{S_XCD}, s{S_IDX}")
    else:
        a.i(f"s_mov_b32 s{S_C1}, s{S_XCD}")
    for i in range(8):
        a.i(f"s_add_u32 s{S_T0}, s{S_C1}, {i}")
        a.i(f"s_and_b32 s{S_T0}, s{S_T0}, 7")
        a.i(f"s_lshl_b32 s{S_XKF+i}, s{S_T0}, 7")
        a.i(f"s_mul_i32 s{S_WK+i}, s{S_T0}, s{S_T3}")
    a.i(f"s_lshl_b32 s{S_M0W}, s{S_WAVE}, 10")
    a.i(f"s_lshl_b32 s{S_M0X}, s{S_PR}, 12")
    a.i(f"s_lshl_b32 s{S_T0}, s{S_CT}, 10")
    a.i(f"s_add_u32 s{S_M0X}, s{S_M0X}, s{S_T0}")
    t = V_T
    a.i(f"v_lshrrev_b32 v{t}, 3, v{V_LANE}")
    a.i(f"v_and_b32 v{t+1}, 7, v{V_LANE}")
    a.i(f"v_bfe_u32 v{t+2}, v{V_LANE}, 4, 1")
    a.i(f"v_lshlrev_b32 v{t+2}, 1, v{t+2}")
    a.i(f"v_xor_b32 v{t+3}, v{t+1}, v{t+2}")
    a.i(f"v_xor_b32 v{t+4}, 4, v{t+3}")
    a.i(f"s_lshl_b32 s{S_T0}, s{S_WAVE}, 3")
    a.i(f"v_add_u32 v{t+5}, s{S_T0}, v{t}")
    a.i(f"v_mul_lo_u32 v{t+5}, v{t+5}, s{S_PITCH}")
    a.i(f"v_lshl_add_u32 v{V_WA}, v{t+3}, 4, v{t+5}")
    a.i(f"v_add_u32 v{V_WA}, s{S_COLA}, v{V_WA}")
    a.i(f"v_lshl_add_u32 v{V_WB}, v{t+4}, 4, v{t+5}")
    a.i(f"v_add_u32 v{V_WB}, s{S_COLB}, v{V_WB}")
    a.i(f"s_lshl_b32 s{S_T0}, s{S_CT}, 3")
    a.i(f"v_add_u32 v{t+5}, s{S_T0}, v{t}")
    a.i(f"v_bfe_u32 v{t+6}, v{t+5}, 1, 3")
    a.i(f"v_xor_b32 v{t+6}, v{t+6}, v{t+1}")
    a.i(f"v_lshlrev_b32 v{t+5}, 10, v{t+5}")
    a.i(f"v_lshl_add_u32 v{V_XD}, v{t+6}, 4, v{t+5}")
    a.i("s_waitcnt lgkmcnt(0)")
    a.i("s_cmp_eq_u32 s3, 0")
    a.i(f"s_cselect_b32 s{S_A}, s24, s18")
    a.i(f"s_cselect_b32 s{S_A+1}, s25, s19")
    a.i(f"s_cselect_b32 s{S_B}, s26, s18")
    a.i(f"s_cselect_b32 s{S_B+1}, s27, s19")
    a.i(f"s_lshl_b32 s{S_A+2}, s{S_PITCH}, 9")
    a.i(f"s_and_b32 s{S_A+1}, s{S_A+1}, 0xffff")
    a.i(f"s_and_b32 s{S_B+1}, s{S_B+1}, 0xffff")
    a.i(f"s_mov_b32 s{S_B+2}, s{S_A+2}")
    a.i(f"s_mov_b32 s{S_A+3}, 0x20000")
    a.i(f"s_mov_b32 s{S_B+3}, 0x20000")
    srd(a, S_X, 16, 2048 * 1024)
    a.i(f"s_add_u32 s{S_TP}, s{S_TILE0}, s{S_PR}")
    a.i(f"s_lshl_b32 s{S_TBP}, s{S_TP}, 15")
    a.i(f"s_lshl_b32 s{S_TB0}, s{S_TILE0}, 15")
    for i in range(3):
        ops = dma_stage_ops(i, 3)
        for grp in ops[:-1]:
            emit_group(a, grp)
        if NM == 3:
            a.i("s_cmp_eq_u32 s3, 2")
            a.i(f"s_cbranch_scc1 K1_skip{i}")
            emit_group(a, ops[-1])
            a.label(f"K1_skip{i}")
    srd(a, S_WS, 36, WS_USED)
    srd(a, S_GW, 30, 1024)
    srd(a, S_DBG, 34, 256)
    srd(a, S_W2, 28, 1792 * 1024)
    srd(a, S_WO, 20, 512 * 1024)
    if TOUCHX:
        a.i(f"s_lshl_b32 s{S_T0}, s2, 3")
        a.i(f"s_add_u32 s{S_T0}, s{S_T0}, s{S_WAVE}")
        a.i(f"s_lshl_b32 s{S_T0}, s{S_T0}, 10")
        a.i(f"v_lshlrev_b32 v{V_E+1}, 7, v{V_LANE}")
        a.i("s_mov_b64 exec, 0xff")
        a.i(f"buffer_load_dword v{V_E+2}, v{V_E+1}, s[{S_X}:{S_X+3}], s{S_T0} offen")
        a.i("s_mov_b64 exec, -1")
    for m in range(4):
        a.i(f"s_add_u32 s{S_T0}, s{S_C1}, s{S_PR}")
        a.i(f"s_add_u32 s{S_T0}, s{S_T0}, {2*m}")
        a.i(f"s_and_b32 s{S_T0}, s{S_T0}, 7")
        a.i(f"s_lshl_b32 s{S_XKP+m}, s{S_T0}, 7")
    a.i(f"s_mov_b32 s{S_C1}, {LOG2E:#x}")
    a.i(f"s_mov_b32 s{S_C2}, {NLOG2E:#x}")
    a.i(f"s_mov_b32 s{S_C3}, {EPS:#x}")
    a.i(f"v_lshlrev_b32 v{V_STO}, 4, v{V_LANE}")
    a.i(f"v_and_b32 v{t}, 31, v{V_LANE}")
    a.i(f"v_lshrrev_b32 v{t+1}, 5, v{V_LANE}")
    a.i(f"v_bfe_u32 v{t+2}, v{t}, 1, 3")
    a.i(f"v_xor_b32 v{t+2}, v{t+2}, v{t+1}")
    a.i(f"v_lshlrev_b32 v{t}, 7, v{t}")
    a.i(f"s_lshl_b32 s{S_T0}, s{S_PR}, 12")
    a.i(f"v_add_u32 v{t}, s{S_T0}, v{t}")
    for s in range(4):
        a.i(f"v_xor_b32 v{t+3}, {2*s}, v{t+2}")
        a.i(f"v_lshl_add_u32 v{V_XF+s}, v{t+3}, 4, v{t}")
    a.i(f"v_bfe_u32 v{t}, v{V_LANE}, 4, 1")
    a.i(f"v_lshrrev_b32 v{t+1}, 5, v{V_LANE}")
    a.i(f"v_bfe_u32 v{t+2}, v{V_LANE}, 2, 2")
    a.i(f"v_bfe_u32 v{t+3}, v{V_LANE}, 1, 1")
    a.i(f"s_lshl_b32 s{S_T0}, s{S_CT}, 1")
    a.i(f"v_add_u32 v{t+3}, s{S_T0}, v{t+3}")
    a.i(f"v_bfe_u32 v{t+4}, v{V_LANE}, 3, 1")
    a.i(f"v_lshlrev_b32 v{t+4}, 1, v{t+4}")
    a.i(f"v_lshl_add_u32 v{t+4}, v{t}, 2, v{t+4}")
    a.i(f"v_xor_b32 v{t+3}, v{t+3}, v{t+4}")
    a.i(f"v_lshlrev_b32 v{t+5}, 13, v{t}")
    a.i(f"v_lshl_add_u32 v{t+5}, v{t+1}, 10, v{t+5}")
    a.i(f"v_lshl_add_u32 v{t+5}, v{t+2}, 7, v{t+5}")
    a.i(f"v_lshl_add_u32 v{t+5}, v{t+3}, 4, v{t+5}")
    a.i(f"v_and_b32 v{t+6}, 1, v{V_LANE}")
    a.i(f"v_lshl_add_u32 v{V_WT}, v{t+6}, 3, v{t+5}")
    cur0, cur1 = BUF[1], BUF[1] + 4096
    b0 = [BUF[3], BUF[0], BUF[3], BUF[0]]
    b1 = [BUF[2], BUF[1], BUF[2], BUF[1]]
    a.i(f"s_cmp_eq_u32 s{S_PR}, 0")
    for r in range(4):
        d0 = (b0[r] - cur0) & 0xffffffff
        d1 = (b1[r] - cur1) & 0xffffffff
        cur0, cur1 = b0[r], b1[r]
        a.i(f"s_mov_b32 s{S_T0}, {d0:#x}")
        a.i(f"s_mov_b32 s{S_T1}, {d1:#x}")
        a.i(f"s_cselect_b32 s{S_LB+r}, s{S_T0}, s{S_T1}")


def mk_ops(chk_blks):
    ops = []

    def V(cost, s, chk=False):
        def f(a, s=s, chk=chk):
            if chk:
                for b in chk_blks:
                    a.need_acc(b)
            a.i(s)
        ops.append((cost, f))
    return ops, V


def epi_mlp(cfg, acc, m):
    ops, V = mk_ops([acc])
    for r in range(8):
        V(4, f"v_mul_f32 v{acc+8+r}, v{acc+r}, v{acc+8+r}", chk=True)
    for r in range(8):
        V(4, f"v_mul_f32 v{acc+r}, s{S_C2}, v{acc+r}")
    for r in range(8):
        V(8, f"v_exp_f32 v{acc+r}, v{acc+r}")
    for r in range(8):
        V(4, f"v_add_f32 v{acc+r}, 1.0, v{acc+r}")
    for r in range(8):
        V(8, f"v_rcp_f32 v{acc+r}, v{acc+r}")
    for r in range(8):
        V(4, f"v_mul_f32 v{acc+8+r}, v{acc+r}, v{acc+8+r}")
    for j in range(4):
        V(4, f"v_cvt_pk_bf16_f32 v{acc+j}, v{acc+8+2*j}, v{acc+9+2*j}")

    def st(a):
        a.i(f"s_add_u32 s{S_TMP}, s{S_TP}, {2*m}")
        a.i(f"s_and_b32 s{S_TMP}, s{S_TMP}, 63")
        a.i(f"s_mul_i32 s{S_TMP}, s{S_TMP}, {AF_TT}")
        a.i(f"s_add_u32 s{S_TMP}, s{S_TMP}, s{S_ST}")
        a.vmem("st", f"buffer_store_dwordx4 v[{acc}:{acc+3}], v{V_STO}, s[{S_WS}:{S_WS+3}], s{S_TMP} offen {cfg.store_aux}")
        a.nop(1)
    ops.append((12, st))
    return ops


def phi_ops(V, regs, tmp):
    for k, r in enumerate(regs):
        V(4, f"v_mul_f32 v{tmp+k}, s{S_C1}, v{r}", chk=True)
    for k, r in enumerate(regs):
        V(8, f"v_exp_f32_e64 v{tmp+k}, v{tmp+k} clamp")
    for k, r in enumerate(regs):
        V(4, f"v_max_f32 v{r}, 0, v{r}")
    for k, r in enumerate(regs):
        V(4, f"v_add_f32 v{r}, v{r}, v{tmp+k}")
    for k, r in enumerate(regs):
        V(4, f"v_add_f32 v{r}, s{S_C3}, v{r}")


def epi_q(cfg, acc, m):
    ops, V = mk_ops([acc])
    for half in range(2):
        regs = [acc + 8 * half + r for r in range(8)]
        phi_ops(V, regs, V_T)
        o = acc + 8 * half
        for j in range(4):
            V(4, f"v_cvt_pk_bf16_f32 v{o+j}, v{regs[2*j]}, v{regs[2*j+1]}")

        def st(a, o=o, half=half):
            a.i(f"s_add_u32 s{S_TMP}, s{S_TP}, {2*m}")
            a.i(f"s_and_b32 s{S_TMP}, s{S_TMP}, 63")
            a.i(f"s_mul_i32 s{S_TMP}, s{S_TMP}, {AF_TT}")
            a.i(f"s_add_u32 s{S_TMP}, s{S_TMP}, s{S_ST}")
            if half:
                a.i(f"s_add_u32 s{S_TMP}, s{S_TMP}, 4096")
            a.vmem("st", f"buffer_store_dwordx4 v[{o}:{o+3}], v{V_STO}, s[{S_WS}:{S_WS+3}], s{S_TMP} offen {cfg.store_aux}")
            a.nop(1)
        ops.append((12, st))
    return ops


def epi_kv(cfg, acc0, acc1, first):
    ops, V = mk_ops([acc0, acc1])
    for r in range(16):
        V(4, f"v_permlane16_swap_b32 v{acc0+r}, v{acc1+r}", chk=True)
    for half in range(2):
        phi_ops(V, [acc0 + 8 * half + r for r in range(8)], V_T)
    for j in range(8):
        V(4, f"v_cvt_pk_bf16_f32 v{acc1+j}, v{acc1+2*j}, v{acc1+2*j+1}")
    for r in range(16):
        if first and r == 0:
            V(4, f"v_mov_b32 v{V_ZS}, v{acc0}")
        else:
            V(4, f"v_add_f32 v{V_ZS}, v{V_ZS}, v{acc0+r}")
    for j in range(8):
        V(4, f"v_cvt_pk_bf16_f32 v{acc0+j}, v{acc0+2*j}, v{acc0+2*j+1}")

    def mm(a):
        a.nop(2)
        a.mfma(V_KV, f"v[{acc0}:{acc0+3}]", f"v[{acc1}:{acc1+3}]", None if first else V_KV)
        a.mfma(V_KV, f"v[{acc0+4}:{acc0+7}]", f"v[{acc1+4}:{acc1+7}]", V_KV)
    ops.append((24, mm))
    return ops


class K1State:
    pass


def k1_first_pass(a, cfg, kv):
    nm = 2 if kv else NM
    nl = 4 if kv else 11 - 2 * NM
    n1 = 2 * nm
    acc_blk = [V_ACC + 16 * k for k in range(4)]
    lbuf = [BUF[3], BUF[2], BUF[0], BUF[1], BUF[3], BUF[2], BUF[0]]
    a.vm, a.vm_done, a.ds, a.ds_done, a.mfma_w = ["pf"], 0, [], 0, {}
    for i in range(3):
        for grp in dma_stage_ops(i, nm):
            a.vm.append(f"S{i}")

    def opnds(q, xf):
        w = f"a[{4*q}:{4*q+3}]"
        x = f"v[{xf}:{xf+3}]"
        return (x, w) if kv else (w, x)

    def fp_reads(n):
        i, s = divmod(n, 4)
        L = []
        for rd in range(2):
            L.append((f"w{n}", f"ds_read_b64_tr_b16 a[{4*n+2*rd}:{4*n+2*rd+1}], v{V_WT} offset:{s*2048 + rd*512}"))
        for m in range(nm):
            xf = V_XFR + (n % 2) * 12 + 4 * m
            L.append((f"x{n}_{m}", f"ds_read_b128 v[{xf}:{xf+3}], v{V_XF+s} offset:{16384 + m*8192}"))
        return L

    st = K1State()
    st.nm, st.nl, st.n1, st.acc_blk, st.lbuf, st.opnds, st.kv = nm, nl, n1, acc_blk, lbuf, opnds, kv
    stamp(a, 1)
    a.wait(vm=["S0"])
    a.i("s_barrier")
    stamp(a, 2)
    for tag, text in fp_reads(0):
        a.dsop(tag, text)
    dma_q = []
    for n in range(32):
        i, s = divmod(n, 4)
        pre = []
        if s == 3:
            a.wait(ds_all=True)
            tgs = [f"S{i+1}"] if i < 7 else ["L0", "L1"]
            for tg in tgs:
                assert not any(op[1] == tg for g in dma_q for op in g), tg
                assert tg in a.vm
            a.wait(vm=tgs)
            a.i("s_barrier")
            if kv and i == 2:
                a.i(f"s_or_b32 s{S_T0}, s{S_P}, s{S_PR}")
                a.i(f"s_cmp_lg_u32 s{S_T0}, 0")
                a.i("s_cbranch_scc1 K1_kv_noflag")
                a.i("s_mov_b64 exec, 1")
                a.i(f"v_mov_b32 v{V_T}, 1")
                a.i(f"v_mov_b32 v{V_T+1}, 0")
                a.i(f"buffer_store_dword v{V_T}, v{V_T+1}, s[{S_DBG}:{S_DBG+3}], s{S_UNIT} offen sc1")
                a.i("s_mov_b64 exec, -1")
                a.label("K1_kv_noflag")
            if i + 3 <= 7:
                dma_q += dma_stage_ops(i + 3, nm)
            if i == 4:
                dma_q += dma_tile_ops(0, n1, lbuf[0])
            if i >= 5:
                dma_q += dma_tile_ops(i - 4, n1 + i - 4, lbuf[i - 4])
            if i < 7:
                d = (BUF[(i + 1) % 3] - BUF[i % 3]) & 0xffffffff
                pre = [f"v_add_u32 v{r}, {d:#x}, v{r}" for r in (V_WT, V_XF, V_XF + 1, V_XF + 2, V_XF + 3)]
            else:
                pre = [f"v_add_u32 v{r}, s{S_LB}, v{r}" for r in (V_XF, V_XF + 1, V_XF + 2, V_XF + 3)]
        for p in pre:
            a.i(p)
        if n < 31:
            fill = fp_reads(n + 1)
        else:
            fill = [lp_read(0, q) for q in range(3)]
        for m in range(nm):
            a.wait(ds=[f"w{n}", f"x{n}_{m}"])
            A, B = opnds(n, V_XFR + (n % 2) * 12 + 4 * m)
            a.mfma(acc_blk[m], A, B, None if n == 0 else acc_blk[m])
            k = 0
            while fill and k < 2:
                tag, text = fill.pop(0)
                a.dsop(tag, text)
                k += 1
            if dma_q:
                emit_group(a, dma_q.pop(0))
        while fill:
            tag, text = fill.pop(0)
            a.dsop(tag, text)
    st.dma_q = dma_q
    stamp(a, 3)
    return st


RING = 6


def lp_read(rd, q):
    i, s = divmod(q, 4)
    xf = V_XFR + 4 * ((rd * 32 + q) % RING)
    return (f"l{rd}_{q}", f"ds_read_b128 v[{xf}:{xf+3}], v{V_XF+s} offset:{i*4096}")


def k1_later(a, cfg, st, typ):
    nm, nl, n1, acc_blk, lbuf, opnds = st.nm, st.nl, st.n1, st.acc_blk, st.lbuf, st.opnds
    dma_q = list(st.dma_q)
    AH = cfg.ahead
    if typ == "mlp":
        a.i(f"s_lshl_b32 s{S_T0}, s{S_UNIT}, 2")
        a.i(f"s_add_u32 s{S_T0}, s{S_T0}, s{S_CT}")
    elif typ == "q":
        a.i(f"s_lshl_b32 s{S_T0}, s{S_UNIT}, 3")
        a.i(f"s_add_u32 s{S_T0}, s{S_T0}, s{S_CT}")
        a.i(f"s_sub_u32 s{S_T0}, s{S_T0}, {28*8-112}")
    if typ != "kv":
        a.i(f"s_lshl_b32 s{S_ST}, s{S_T0}, 10")
        if AF_OFF:
            a.i(f"s_add_u32 s{S_ST}, s{S_ST}, {AF_OFF}")
    for q in range(3, AH):
        tag, text = lp_read(0, q)
        a.dsop(tag, text)
    epi = []
    free_blk = acc_blk[nm:]

    def push_epi(blks, m, first=False):
        if typ == "mlp":
            ops = epi_mlp(cfg, blks[0], m)
        elif typ == "q":
            ops = epi_q(cfg, blks[0], m)
        else:
            ops = epi_kv(cfg, blks[0], blks[1], first)

        def rel(a, blks=blks):
            free_blk.extend(blks)
        ops.append((0, rel))
        epi.extend(ops)

    if typ == "kv":
        push_epi([acc_blk[0], acc_blk[1]], 0, first=True)
    else:
        for m in range(nm):
            push_epi([acc_blk[m]], m)
    extra = []
    if cfg.pf_w2 and typ != "kv":
        extra = pf_w2_ops(cfg)
    nrounds = (nl + 1) // 2
    pend = []

    def drain():
        while epi:
            c, f = epi.pop(0)
            f(a)

    for rd in range(nrounds):
        last_odd = (2 * rd + 1 >= nl)
        if last_odd:
            snap = (list(a.vm), a.vm_done, list(a.ds), a.ds_done, dict(a.mfma_w), list(epi), list(free_blk), a.n)
            a.i(f"s_lshr_b32 s{S_T0}, s{S_P}, 2")
            a.i(f"s_or_b32 s{S_T0}, s{S_T0}, s{S_PR}")
            a.i(f"s_cmp_eq_u32 s{S_T0}, 0")
            a.i(f"s_cbranch_scc1 K1_{typ}_last")
            stamp(a, 4)
            drain()
            stamp(a, 5)
            stamp_flush(a, 0, 7, S_WS)
            a.i("s_endpgm")
            a.label(f"K1_{typ}_last")
            a.vm, a.vm_done, a.ds, a.ds_done, a.mfma_w = snap[0], snap[1], snap[2], snap[3], snap[4]
            epi[:] = snap[5]
            free_blk[:] = snap[6]
            a.mfma_w = {k: a.n - (snap[7] - v) for k, v in snap[4].items()}
        while not free_blk:
            c, f = epi.pop(0)
            f(a)
        blk = free_blk.pop(0)
        has_next = rd + 1 < nrounds
        for q in range(32):
            if q == 32 - AH and has_next:
                tgs = [f"L{j}" for j in (2 * rd + 2, 2 * rd + 3) if j < nl]
                for tg in tgs:
                    assert not any(op[1] == tg for g in dma_q for op in g), tg
                    assert tg in a.vm
                a.wait(vm=tgs, ds_all=True)
                a.i("s_barrier")
                for nxt in (2 * rd + 4, 2 * rd + 5):
                    if nxt < nl:
                        dma_q += dma_tile_ops(nxt, n1 + nxt, lbuf[nxt])
                for r in range(4):
                    a.i(f"v_add_u32 v{V_XF+r}, s{S_LB+rd+1}, v{V_XF+r}")
            a.wait(ds=[f"l{rd}_{q}"])
            A, B = opnds(q, V_XFR + 4 * ((rd * 32 + q) % RING))
            a.mfma(blk, A, B, None if q == 0 else blk)
            if q + AH < 32:
                tag, text = lp_read(rd, q + AH)
                a.dsop(tag, text)
            elif has_next:
                tag, text = lp_read(rd + 1, q + AH - 32)
                a.dsop(tag, text)
            budget = cfg.fill_last if last_odd else cfg.fill_per_gap
            if dma_q:
                emit_group(a, dma_q.pop(0))
                budget -= 16
            elif extra and rd == cfg.pf_round and q % 2 == 0:
                emit_group(a, extra.pop(0))
                budget -= 16
            while epi and budget > 0:
                c, f = epi[0]
                if c > budget and budget < 16:
                    break
                epi.pop(0)
                f(a)
                budget -= c
        pend.append(blk)
        if typ == "kv":
            if len(pend) == 2:
                push_epi(pend, 0)
                pend = []
        else:
            push_epi(pend, nm + rd)
            pend = []
    assert not dma_q and not extra
    stamp(a, 4)
    if typ == "kv":
        k1_g_loads(a)
    drain()
    if typ == "kv":
        k1_kv_tail(a)
        k1_g_compute(a)
    stamp(a, 5)
    stamp_flush(a, 0, 7, S_WS)
    a.i("s_endpgm")


def pf_w2_ops(cfg):
    ops = []
    if cfg.pf_mode == 0:
        ops.append([("s", None, f"s_lshl_b32 s{S_T0}, s2, 3"),
                    ("s", None, f"s_add_u32 s{S_T0}, s{S_T0}, s{S_WAVE}"),
                    ("s", None, f"s_lshl_b32 s{S_T0}, s{S_T0}, 11"),
                    ("s", None, f"v_lshlrev_b32 v{V_E+1}, 7, v{V_LANE}"),
                    ("s", None, f"s_sub_u32 s{S_T1}, s{S_T0}, {1792*1024}"),
                    ("s", None, "s_mov_b64 exec, 0xffff"),
                    ("v", "pf", f"buffer_load_dword v{V_E}, v{V_E+1}, s[{S_W2}:{S_W2+3}], s{S_T0} offen"),
                    ("v", "pf", f"buffer_load_dword v{V_E}, v{V_E+1}, s[{S_WO}:{S_WO+3}], s{S_T1} offen"),
                    ("s", None, "s_mov_b64 exec, -1")])
    else:
        halves = [None] if cfg.pf_mode == 1 else [0, 1]
        for hv in halves:
            ops.append([("s", None, f"s_lshl_b32 s{S_T0}, s{S_IDX}, 3"),
                        ("s", None, f"s_add_u32 s{S_T0}, s{S_T0}, s{S_WAVE}"),
                        ("s", None, f"s_mul_i32 s{S_T0}, s{S_T0}, {12*1024}"),
                        ("s", None, f"s_and_b32 s{S_T1}, s{S_XCD}, 1" if hv is None else f"s_mov_b32 s{S_T1}, {hv}"),
                        ("s", None, f"s_lshl_b32 s{S_T1}, s{S_T1}, 9"),
                        ("s", None, f"s_add_u32 s{S_T0}, s{S_T0}, s{S_T1}"),
                        ("s", None, f"v_lshrrev_b32 v{V_E+1}, 2, v{V_LANE}"),
                        ("s", None, f"v_lshlrev_b32 v{V_E+1}, 10, v{V_E+1}"),
                        ("s", None, f"v_and_b32 v{V_E+2}, 3, v{V_LANE}"),
                        ("s", None, f"v_lshl_add_u32 v{V_E+1}, v{V_E+2}, 7, v{V_E+1}"),
                        ("s", None, f"v_add_u32 v{V_E+1}, s{S_T0}, v{V_E+1}"),
                        ("s", None, f"v_subrev_u32 v{V_E+2}, {1792*1024}, v{V_E+1}"),
                        ("s", None, "s_mov_b32 exec_hi, 0xffff"),
                        ("v", "pf", f"buffer_load_dword v{V_E}, v{V_E+1}, s[{S_W2}:{S_W2+3}], 0 offen"),
                        ("v", "pf", f"buffer_load_dword v{V_E}, v{V_E+2}, s[{S_WO}:{S_WO+3}], 0 offen"),
                        ("s", None, "s_mov_b64 exec, -1")])
    return ops


def k1_kv_head(a):
    a.i(f"s_lshl_b32 s{S_T0}, s{S_XCD}, 2")
    a.i(f"s_add_u32 s{S_T0}, s{S_T0}, s{S_CT}")
    a.i(f"s_lshl_b32 s{S_UNIT}, s{S_T0}, 2")
    a.i(f"s_mul_i32 s{S_ST}, s{S_T0}, {KVT_HEAD}")
    a.i(f"s_add_u32 s{S_ST}, s{S_ST}, {KVT_OFF}")
    a.i(f"s_or_b32 s{S_T0}, s{S_P}, s{S_PR}")
    a.i(f"s_cmp_lg_u32 s{S_T0}, 0")
    a.i("s_cbranch_scc1 K1_kv_nozero")
    a.i(f"v_lshlrev_b32 v{V_T}, 3, v{V_LANE}")
    for k in range(6):
        a.i(f"v_mov_b32 v{V_KV+k}, 0")
    a.i(f"buffer_atomic_swap_x2 v[{V_KV}:{V_KV+1}], v{V_T}, s[{S_WS}:{S_WS+3}], s{S_ST} offen sc0")
    a.i(f"buffer_atomic_swap_x2 v[{V_KV+2}:{V_KV+3}], v{V_T}, s[{S_WS}:{S_WS+3}], s{S_ST} offen offset:512 sc0")
    a.i("s_mov_b64 exec, 0xffff")
    a.i(f"buffer_atomic_swap_x2 v[{V_KV+4}:{V_KV+5}], v{V_T}, s[{S_WS}:{S_WS+3}], s{S_ST} offen offset:1024 sc0")
    a.i("s_mov_b64 exec, -1")
    a.label("K1_kv_nozero")


def k1_kv_tail(a):
    t = V_T
    B = V_ACC
    a.need_acc(V_KV, 16)
    for r in range(8):
        a.i(f"v_permlane16_swap_b32 v{V_KV+8+r}, v{t+r}")
    a.i(f"v_mov_b32 v{B}, v{V_ZS}")
    a.nop(2)
    a.i(f"v_permlane16_swap_b32 v{B}, v{V_ZS}")
    a.nop(1)
    a.i(f"v_add_f32 v{V_ZS}, v{V_ZS}, v{B}")
    a.i(f"v_mov_b32 v{B}, v{V_ZS}")
    a.nop(2)
    a.i(f"v_permlane32_swap_b32 v{B}, v{V_ZS}")
    a.nop(1)
    a.i(f"v_add_f32 v{V_ZS}, v{V_ZS}, v{B}")
    for r in range(8):
        a.i(f"v_add_f32 v{V_KV+r}, v{V_KV+r}, v{t+r}")
    a.i(f"s_mul_i32 s{S_T1}, s{S_WAVE}, {KVT_HEAD}")
    a.i(f"s_add_u32 s{S_T1}, s{S_T1}, {BUF[3]}")
    a.i(f"v_and_b32 v{B}, 15, v{V_LANE}")
    a.i(f"v_lshrrev_b32 v{B+1}, 5, v{V_LANE}")
    a.i(f"v_lshl_add_u32 v{B+1}, v{B+1}, 4, v{B}")
    a.i(f"v_lshlrev_b32 v{B+1}, 5, v{B+1}")
    a.i(f"v_add_u32 v{B+1}, s{S_T1}, v{B+1}")
    a.i(f"v_and_b32 v{B+2}, 3, v{B}")
    a.i(f"v_lshrrev_b32 v{B+3}, 3, v{B}")
    a.i(f"v_lshl_add_u32 v{B+2}, v{B+3}, 2, v{B+2}")
    a.i(f"v_bfe_u32 v{B+3}, v{B}, 2, 1")
    a.i(f"v_lshl_add_u32 v{B+2}, v{B+3}, 3, v{B+2}")
    a.i(f"v_lshlrev_b32 v{B+2}, 2, v{B+2}")
    a.i(f"v_add_u32 v{B+2}, s{S_T1}, v{B+2}")
    a.i(f"v_lshlrev_b32 v{B+4}, 2, v{V_LANE}")
    a.i(f"v_add_u32 v{B+3}, s{S_T1}, v{B+4}")
    a.i(f"s_mov_b32 s{S_MASK}, 0xffff")
    a.i(f"s_mov_b32 s{S_MASK+1}, 0xffff")
    a.i(f"s_mov_b64 exec, s[{S_MASK}:{S_MASK+1}]")
    a.i(f"ds_write_b128 v{B+1}, v[{V_KV}:{V_KV+3}]")
    a.i(f"ds_write_b128 v{B+1}, v[{V_KV+4}:{V_KV+7}] offset:16")
    a.i("s_mov_b64 exec, 0xffff")
    a.i(f"ds_write_b32 v{B+2}, v{V_ZS} offset:1024")
    a.i("s_mov_b64 exec, -1")
    a.i("s_waitcnt lgkmcnt(0)")
    for k in range(5):
        a.i(f"ds_read_b32 v{B+8+k}, v{B+3} offset:{256*k}")
    a.label("K1_kv_poll")
    a.i("s_mov_b64 exec, 1")
    a.i(f"v_mov_b32 v{t+1}, 0")
    a.i(f"buffer_load_dword v{t}, v{t+1}, s[{S_DBG}:{S_DBG+3}], s{S_UNIT} offen sc1")
    a.i("s_waitcnt vmcnt(0)")
    a.i(f"v_readfirstlane_b32 s{S_T0}, v{t}")
    a.i("s_mov_b64 exec, -1")
    a.i(f"s_cmp_lg_u32 s{S_T0}, 0")
    a.i("s_cbranch_scc1 K1_kv_go")
    a.i("s_sleep 8")
    a.i("s_branch K1_kv_poll")
    a.label("K1_kv_go")
    a.vm_done = len(a.vm)
    a.i("s_waitcnt lgkmcnt(0)")
    for k in range(5):
        if k == 4:
            a.i("s_mov_b64 exec, 0xffff")
        a.vmem("at", f"buffer_atomic_add_f32 v{B+8+k}, v{B+4}, s[{S_WS}:{S_WS+3}], s{S_ST} offen offset:{256*k}")
    a.i("s_mov_b64 exec, -1")


def k1_g_loads(a):
    a.i(f"s_lshl_b32 s{S_T0}, s{S_P}, 8")
    a.i(f"s_lshl_b32 s{S_T1}, s{S_XCD}, 5")
    a.i(f"s_add_u32 s{S_T0}, s{S_T0}, s{S_T1}")
    a.i(f"s_lshl_b32 s{S_T1}, s{S_WAVE}, 2")
    a.i(f"s_add_u32 s{S_T2}, s{S_T0}, s{S_T1}")
    a.i(f"s_lshl_b32 s{S_T0}, s{S_T2}, 10")
    e = V_XFR
    a.nop(4)
    a.vmem("g", f"buffer_load_dwordx4 v[{e}:{e+3}], v{V_STO}, s[{S_GW}:{S_GW+3}], 0 offen")
    for k in range(4):
        a.vmem("g", f"buffer_load_dwordx4 v[{e+4+4*k}:{e+7+4*k}], v{V_STO}, s[{S_X}:{S_X+3}], s{S_T0} offen offset:{1024*k}")


def k1_g_compute(a):
    e = V_XFR
    a.wait(vm=["g"])
    t = V_ACC + 16
    R = [V_ACC + 24 + k for k in range(4)]
    for j in range(4):
        for k in range(4):
            a.i(f"v_dot2_f32_bf16 v{R[k]}, v{e+4+4*k+j}, v{e+j}, " + ("0" if j == 0 else f"v{R[k]}"))
    a.nop(4)
    for mod in ("row_shr:1", "row_shr:2", "row_shr:4", "row_shr:8"):
        for r in R:
            a.i(f"v_add_f32_dpp v{r}, v{r}, v{r} {mod} row_mask:0xf bank_mask:0xf bound_ctrl:0")
    for r in R:
        a.i(f"v_add_f32_dpp v{r}, v{r}, v{r} row_bcast:15 row_mask:0xa bank_mask:0xf")
    for r in R:
        a.i(f"v_add_f32_dpp v{r}, v{r}, v{r} row_bcast:31 row_mask:0xc bank_mask:0xf")

    def rnd(regs):
        for r in regs:
            a.i(f"v_cvt_pk_bf16_f32 v{r}, v{r}, v{r}")
        for r in regs:
            a.i(f"v_and_b32 v{r}, 0xffff0000, v{r}")
    rnd(R)
    for r in R:
        a.i(f"v_mul_f32 v{r}, s{S_C2}, v{r}")
    for r in R:
        a.i(f"v_exp_f32 v{r}, v{r}")
    for r in R:
        a.i(f"v_add_f32 v{r}, 1.0, v{r}")
    for r in R:
        a.i(f"v_rcp_f32 v{r}, v{r}")
    a.nop(1)
    rnd(R)
    o = V_ACC + 32
    O = [o + 2 * k + 1 for k in range(4)]
    for k in range(4):
        a.i(f"v_sub_f32 v{O[k]}, 1.0, v{R[k]}")
    rnd(O)
    for k in range(4):
        a.i(f"v_max_f32 v{O[k]}, 0x30800000, v{O[k]}")
    for k in range(4):
        a.i(f"v_rcp_f32 v{t+k}, v{O[k]}")
    a.nop(1)
    for k in range(4):
        a.i(f"v_fma_f32 v{t+4+k}, -v{O[k]}, v{t+k}, 1.0")
    for k in range(4):
        a.i(f"v_fma_f32 v{t+k}, v{t+4+k}, v{t+k}, v{t+k}")
    for k in range(4):
        a.i(f"v_mul_f32 v{o+2*k}, v{R[k]}, v{t+k}")
    a.i(f"s_lshl_b32 s{S_T0}, s{S_T2}, 3")
    a.i(f"s_add_u32 s{S_T0}, s{S_T0}, {G_OFF}")
    a.i(f"v_mov_b32 v{t}, 0")
    a.i(f"s_mov_b32 s{S_SAVE}, 0")
    a.i(f"s_mov_b32 s{S_SAVE+1}, 0x80000000")
    a.i(f"s_mov_b64 exec, s[{S_SAVE}:{S_SAVE+1}]")
    a.vmem("gst", f"buffer_store_dwordx4 v[{o}:{o+3}], v{t}, s[{S_WS}:{S_WS+3}], s{S_T0} offen")
    a.vmem("gst", f"buffer_store_dwordx4 v[{o+4}:{o+7}], v{t}, s[{S_WS}:{S_WS+3}], s{S_T0} offen offset:16")
    a.i("s_mov_b64 exec, -1")


def gen_k1(cfg):
    import copy
    a = Asm()
    a.raw(".globl k1_kernel\n.p2align 8\n.type k1_kernel,@function\nk1_kernel:")
    k1_prologue(a)
    a.i("s_cmp_eq_u32 s3, 2")
    a.i("s_cbranch_scc1 K1_kv")
    st = k1_first_pass(a, cfg, False)
    snap = (list(a.vm), a.vm_done, list(a.ds), a.ds_done, dict(a.mfma_w), a.n)
    a.i("s_cmp_eq_u32 s3, 1")
    a.i("s_cbranch_scc1 K1_q")
    k1_later(a, cfg, st, "mlp")
    a.raw(".p2align 6")
    a.label("K1_q")
    a.vm, a.vm_done, a.ds, a.ds_done = list(snap[0]), snap[1], list(snap[2]), snap[3]
    a.mfma_w = {k: a.n - (snap[5] - v) for k, v in snap[4].items()}
    k1_later(a, cfg, st, "q")
    a.raw(".p2align 6")
    a.label("K1_kv")
    k1_kv_head(a)
    st = k1_first_pass(a, cfg, True)
    k1_later(a, cfg, st, "kv")
    a.label("K1_done")
    a.i("s_endpgm")
    return a.text()


class K2Cfg:
    depth = 6
    wdepth = 8
    mode = 1
    nw = 4
    sep = 1
    out_aux = 'sc0 sc1'


def gen_k2(cfg):
    a = Asm()
    D, DW, NW = cfg.depth, cfg.wdepth, cfg.nw
    NH, NA = 112 // NW, 32 // NW
    C_WS, C_W2, C_WO, C_OUT = 40, 44, 48, 52
    C_W, C_RB, C_CB, C_M0, T0, T1, T2, T3 = 4, 5, 6, 7, 8, 9, 10, 11
    S_HB, S_WB, S_QB, S_OB, S_KVB, C_EPS = 12, 13, 14, 15, 56, 57
    V_L = 1
    V_A0, V_A1, V_WD, V_TR0, V_TR1, V_KVA = 2, 3, 4, 5, 6, 7
    VT = 8
    V_G = 16
    V_RC = 20
    V_KVF = 24
    V_WF = 32
    V_OF = 48
    P = 56
    ACC = 64
    A_ND = 64
    assert 8 * D <= 64
    a.raw(".globl k2_kernel\n.p2align 8\n.type k2_kernel,@function\nk2_kernel:")
    a.i("s_cmp_ge_u32 s2, 256")
    a.i("s_cbranch_scc1 K2_done")
    if DIAG:
        a.i("s_memrealtime s[38:39]")
    a.i("s_load_dwordx2 s[16:17], s[0:1], 16")
    a.i("s_load_dwordx2 s[18:19], s[0:1], 48")
    a.i("s_load_dwordx2 s[20:21], s[0:1], 64")
    a.i("s_load_dwordx2 s[22:23], s[0:1], 80")
    a.i("s_getpc_b64 s[24:25]")
    a.label("K2_pc")
    a.i(f"s_and_b32 s{T0}, s2, 7")
    a.i(f"s_lshr_b32 s{T1}, s2, 3")
    a.i(f"v_and_b32 v{V_L}, 63, v0")
    a.i(f"v_lshrrev_b32 v{VT}, 6, v0")
    a.i(f"s_lshl_b32 s{T2}, s{T1}, 9")
    a.i(f"v_readfirstlane_b32 s{C_W}, v{VT}")
    a.i(f"v_lshlrev_b32 v{VT+1}, 7, v0")
    a.i(f"v_add_u32 v{VT+1}, s{T2}, v{VT+1}")
    a.i(f"v_min_u32 v{VT+1}, CODE_END-K2_pc-4, v{VT+1}")
    a.i("v_cmp_gt_u32 vcc, 4, v0")
    a.i("s_and_saveexec_b64 s[26:27], vcc")
    a.i("s_cbranch_execz K2_nopf")
    a.i(f"global_load_dword v{P+7}, v{VT+1}, s[24:25]")
    a.label("K2_nopf")
    a.i("s_mov_b64 exec, s[26:27]")
    a.vm.append("pf")
    if cfg.mode == 0:
        a.i(f"s_lshr_b32 s{C_RB}, s{T1}, 3")
        a.i(f"s_lshl_b32 s{T2}, s{T0}, 2")
        a.i(f"s_add_u32 s{C_RB}, s{C_RB}, s{T2}")
        a.i(f"s_and_b32 s{C_CB}, s{T1}, 7")
    else:
        a.i(f"s_lshr_b32 s{C_RB}, s{T0}, 1")
        a.i(f"s_lshl_b32 s{C_RB}, s{C_RB}, 3")
        a.i(f"s_lshr_b32 s{T2}, s{T1}, 2")
        a.i(f"s_add_u32 s{C_RB}, s{C_RB}, s{T2}")
        a.i(f"s_and_b32 s{C_CB}, s{T0}, 1")
        a.i(f"s_lshl_b32 s{C_CB}, s{C_CB}, 2")
        a.i(f"s_and_b32 s{T2}, s{T1}, 3")
        a.i(f"s_add_u32 s{C_CB}, s{C_CB}, s{T2}")
    t = VT
    a.i(f"s_mul_i32 s{T0}, s{C_RB}, {2*AF_TT}")
    a.i(f"v_lshlrev_b32 v{V_A0}, 4, v{V_L}")
    a.i(f"v_add_u32 v{V_A0}, s{T0}, v{V_A0}")
    a.i(f"v_add_u32 v{V_A1}, {AF_TT}, v{V_A0}")
    a.i(f"s_mul_i32 s{S_HB}, s{C_W}, {NH*1024}")
    a.i(f"s_mul_i32 s{S_WB}, s{C_W}, {NH*16384}")
    a.i(f"s_mul_i32 s{S_QB}, s{C_W}, {NA*1024}")
    a.i(f"s_add_u32 s{S_QB}, s{S_QB}, {112*1024}")
    a.i(f"s_mul_i32 s{S_OB}, s{C_W}, {NA*16384}")
    a.i(f"s_mul_i32 s{S_KVB}, s{C_W}, {NA*KVT_HEAD}")
    a.i(f"s_add_u32 s{S_KVB}, s{S_KVB}, {KVT_OFF}")
    a.i(f"s_mul_i32 s{C_M0}, s{C_W}, {DW*2048}")
    SEP = cfg.sep and NW * (DW * 2048 + 64 * 272) <= 163840
    if SEP:
        a.i(f"s_add_u32 s{C_M0}, s{C_M0}, {NW*64*272}")
    a.i(f"s_mov_b32 s{C_EPS}, {EPS:#x}")
    a.i(f"v_lshrrev_b32 v{t}, 3, v{V_L}")
    a.i(f"v_and_b32 v{t+1}, 7, v{V_L}")
    a.i(f"v_bfe_u32 v{t+2}, v{V_L}, 4, 1")
    a.i(f"v_lshlrev_b32 v{t+2}, 2, v{t+2}")
    a.i(f"v_xor_b32 v{t+1}, v{t+1}, v{t+2}")
    a.i(f"v_lshlrev_b32 v{t}, 10, v{t}")
    a.i(f"v_lshl_add_u32 v{V_WD}, v{t+1}, 4, v{t}")
    a.i(f"s_lshl_b32 s{T0}, s{C_CB}, 7")
    a.i(f"v_add_u32 v{V_WD}, s{T0}, v{V_WD}")
    a.i("s_waitcnt lgkmcnt(0)")
    srd(a, C_WS, 22, WS_USED)
    srd(a, C_W2, 18, 1792 * 1024)
    srd(a, C_WO, 16, 512 * 1024)

    seq = []
    hq, aq = list(range(NH)), list(range(NA))
    NS = NH + NA
    gap = max((NS - 3) // NA, 2)
    for n in range(NS):
        if aq and n % gap == gap - 1 and n < NS - 2:
            seq.append(("a", aq.pop(0)))
        elif hq:
            seq.append(("h", hq.pop(0)))
        else:
            seq.append(("a", aq.pop(0)))
    assert not hq and not aq

    def issue_w(n):
        kind, k = seq[n]
        d = n % DW
        wb, w = (S_WB, C_W2) if kind == "h" else (S_OB, C_WO)
        for b in range(2):
            a.i(f"s_add_u32 m0, s{C_M0}, {d*2048 + b*1024}")
            a.i(f"s_add_u32 s{T2}, s{wb}, {k*16384 + b*8192}")
            a.vmem(f"s{n}", f"buffer_load_dwordx4 v{V_WD}, s[{w}:{w+3}], s{T2} offen lds")

    def issue(n):
        kind, k = seq[n]
        d = n % D
        ab = S_HB if kind == "h" else S_QB
        a.i(f"s_add_u32 s{T1}, s{ab}, {k*1024}")
        a.vmem(f"s{n}", f"buffer_load_dwordx4 a[{8*d}:{8*d+3}], v{V_A0}, s[{C_WS}:{C_WS+3}], s{T1} offen")
        a.vmem(f"s{n}", f"buffer_load_dwordx4 a[{8*d+4}:{8*d+7}], v{V_A1}, s[{C_WS}:{C_WS+3}], s{T1} offen")

    def kv_issue(k):
        a.i(f"s_add_u32 s{T3}, s{S_KVB}, {k*KVT_HEAD}")
        a.vmem(f"kv{k}", f"buffer_load_dwordx4 v[{VT}:{VT+3}], v{V_KVA}, s[{C_WS}:{C_WS+3}], s{T3} offen")
        a.vmem(f"kv{k}", f"buffer_load_dwordx4 v[{VT+4}:{VT+7}], v{V_KVA}, s[{C_WS}:{C_WS+3}], s{T3} offen offset:16")

    def tr_reads(n):
        d = n % DW
        wf = V_WF + 8 * (n % 2)
        for ct, va in enumerate((V_TR0, V_TR1)):
            for rd in range(2):
                r = wf + 4 * ct + 2 * rd
                a.dsop(f"t{n}", f"ds_read_b64_tr_b16 v[{r}:{r+1}], v{va} offset:{d*2048 + rd*1024}")

    for n in range(max(D, DW)):
        if n < DW:
            issue_w(n)
        if n < D:
            issue(n)
    srd(a, C_OUT, 20, 2048 * 1024)
    u = P
    a.i(f"v_lshrrev_b32 v{u}, 5, v{V_L}")
    a.i(f"v_bfe_u32 v{u+1}, v{V_L}, 2, 2")
    a.i(f"v_lshl_add_u32 v{u}, v{u}, 2, v{u+1}")
    a.i(f"v_bfe_u32 v{u+1}, v{V_L}, 4, 1")
    a.i(f"v_bfe_u32 v{u+2}, v{V_L}, 1, 1")
    a.i(f"v_lshl_add_u32 v{u+1}, v{u+1}, 1, v{u+2}")
    a.i(f"v_bfe_u32 v{u+2}, v{V_L}, 3, 1")
    a.i(f"v_lshlrev_b32 v{u+2}, 2, v{u+2}")
    a.i(f"v_xor_b32 v{u+1}, v{u+1}, v{u+2}")
    a.i(f"v_lshlrev_b32 v{u}, 7, v{u}")
    a.i(f"v_lshl_add_u32 v{u}, v{u+1}, 4, v{u}")
    a.i(f"v_and_b32 v{u+1}, 1, v{V_L}")
    a.i(f"v_lshl_add_u32 v{u}, v{u+1}, 3, v{u}")
    a.i(f"v_add_u32 v{V_TR0}, s{C_M0}, v{u}")
    a.i(f"v_xor_b32 v{u}, 64, v{u}")
    a.i(f"v_add_u32 v{V_TR1}, s{C_M0}, v{u}")
    a.i(f"v_and_b32 v{u}, 31, v{V_L}")
    a.i(f"v_lshrrev_b32 v{u+1}, 5, v{V_L}")
    a.i(f"v_lshl_add_u32 v{u+2}, v{u+1}, 4, v{u}")
    a.i(f"v_add_u32 v{u+1}, 32, v{u+1}")
    a.i(f"v_cmp_gt_u32 vcc, 16, v{u}")
    a.i(f"v_lshlrev_b32 v{V_G+2}, 3, v{u}")
    a.i(f"s_lshl_b32 s{T0}, s{C_RB}, 9")
    a.i(f"s_add_u32 s{T0}, s{T0}, {G_OFF}")
    a.i(f"v_cndmask_b32 v{u+2}, v{u+1}, v{u+2}, vcc")
    a.i(f"v_lshlrev_b32 v{V_KVA}, 5, v{u+2}")
    a.vmem("kv0", f"buffer_load_dword v{V_G}, v{V_G+2}, s[{C_WS}:{C_WS+3}], s{T0} offen")
    a.vmem("kv0", f"buffer_load_dword v{V_G+1}, v{V_G+2}, s[{C_WS}:{C_WS+3}], s{T0} offen offset:256")
    kv_issue(0)
    stamp(a, 1, 60)
    a.wait(vm=["s0"])
    stamp(a, 2, 60)
    tr_reads(0)
    nd_w = {}
    for n in range(NS):
        kind, k = seq[n]
        d = n % D
        if kind == "a":
            a.wait(vm=[f"kv{k}"])
            for j in range(4):
                a.i(f"v_cvt_pk_bf16_f32 v{V_KVF+j}, v{VT+2*j}, v{VT+2*j+1}")
            a.nop(2)
            for tt in range(2):
                b = A_ND + 16 * tt
                a.i(f"v_mfma_f32_32x32x16_bf16 a[{b}:{b+15}], v[{V_KVF}:{V_KVF+3}], a[{8*d+4*tt}:{8*d+4*tt+3}], 0")
                nd_w[tt] = a.n
            if k + 1 < NA:
                kv_issue(k + 1)
        if n + 1 < NS:
            a.wait(vm=[f"s{n+1}"])
            tr_reads(n + 1)
        if kind == "a":
            for tt in range(2):
                g_ = a.n - nd_w[tt]
                if g_ < 13:
                    a.nop(13 - g_)
                a.i(f"v_accvgpr_read_b32 v{V_RC+tt}, a{A_ND+16*tt+8}")
            for tt in range(2):
                a.i(f"v_add_f32 v{V_RC+tt}, s{C_EPS}, v{V_RC+tt}")
            for tt in range(2):
                a.i(f"v_rcp_f32 v{V_RC+tt}, v{V_RC+tt}")
            a.nop(1)
            for tt in range(2):
                a.i(f"v_mul_f32 v{V_RC+tt}, v{V_RC+tt}, v{V_G+tt}")
            for tt in range(2):
                for j in range(8):
                    a.i(f"v_accvgpr_read_b32 v{P+j}, a{A_ND+16*tt+j}")
                for j in range(8):
                    a.i(f"v_mul_f32 v{P+j}, v{P+j}, v{V_RC+tt}")
                for j in range(4):
                    a.i(f"v_cvt_pk_bf16_f32 v{V_OF+4*tt+j}, v{P+2*j}, v{P+2*j+1}")
            a.nop(2)
        a.wait(ds=[f"t{n}"])
        wf = V_WF + 8 * (n % 2)
        for ct in range(2):
            for tt in range(2):
                blk = ACC + 16 * (ct * 2 + tt)
                B = f"v[{V_OF+4*tt}:{V_OF+4*tt+3}]" if kind == "a" else f"a[{8*d+4*tt}:{8*d+4*tt+3}]"
                a.mfma(blk, f"v[{wf+4*ct}:{wf+4*ct+3}]", B, blk if n else None)
        if n + DW < NS:
            issue_w(n + DW)
        if n + D < NS:
            issue(n + D)
    stamp(a, 3, 60)
    PITCH = 272
    WSZ = 64 * PITCH
    TPW = 64 // NW
    a.i(f"v_lshrrev_b32 v{t+1}, 3, v{V_L}")
    a.i(f"s_mul_i32 s{T0}, s{C_W}, {TPW}")
    a.i(f"v_add_u32 v{t+1}, s{T0}, v{t+1}")
    a.i(f"v_lshlrev_b32 v{t+5}, 3, v{t+1}")
    a.i(f"s_lshl_b32 s{T0}, s{C_RB}, 9")
    a.i(f"s_add_u32 s{T0}, s{T0}, {G_OFF + 4}")
    for hf in range(TPW // 8):
        a.i(f"buffer_load_dword v{V_RC+hf}, v{t+5}, s[{C_WS}:{C_WS+3}], s{T0} offen offset:{64*hf}")
    a.i(f"v_and_b32 v{t}, 31, v{V_L}")
    a.i(f"v_lshrrev_b32 v{t+2}, 5, v{V_L}")
    a.i(f"v_mul_u32_u24 v{t}, {PITCH}, v{t}")
    a.i(f"v_lshl_add_u32 v{t}, v{t+2}, 4, v{t}")
    a.i(f"s_mul_i32 s{T0}, s{C_W}, {WSZ}")
    a.i(f"v_add_u32 v{t}, s{T0}, v{t}")
    a.i(f"v_and_b32 v{t+2}, 7, v{V_L}")
    a.i(f"v_mul_u32_u24 v{t+3}, {PITCH}, v{t+1}")
    a.i(f"v_lshl_add_u32 v{t+3}, v{t+2}, 5, v{t+3}")
    a.i(f"v_add_u32 v{t+6}, {3*WSZ}, v{t+3}")
    a.i(f"v_add_u32 v{t+7}, {6*WSZ}, v{t+3}")
    a.i(f"v_lshlrev_b32 v{t+4}, 10, v{t+1}")
    a.i(f"v_lshl_add_u32 v{t+4}, v{t+2}, 4, v{t+4}")
    a.i(f"s_lshl_b32 s{T0}, s{C_RB}, 16")
    a.i(f"s_lshl_b32 s{T1}, s{C_CB}, 7")
    a.i(f"s_add_u32 s{T0}, s{T0}, s{T1}")
    if not SEP:
        a.i("s_waitcnt lgkmcnt(0)")
        a.i("s_barrier")
    for blk in range(4):
        a.need_acc(ACC + 16 * blk, 16)
    for blk in range(4):
        ct, tt = blk >> 1, blk & 1
        for q in range(4):
            r = ACC + 16 * blk + 4 * q
            off = tt * 32 * PITCH + (ct * 32 + 8 * q) * 4
            a.i(f"ds_write_b128 v{t}, v[{r}:{r+3}] offset:{off}")
    a.i("s_waitcnt lgkmcnt(0)")
    a.i("s_barrier")
    R = ACC
    for hf in range(TPW // 8):
        for w in range(NW):
            for p in range(2):
                r = R + hf * 32 + w * 8 + p * 4
                va = (t + 3, t + 6, t + 7)[w // 3]
                a.i(f"ds_read_b128 v[{r}:{r+3}], v{va} offset:{(w % 3) * WSZ + hf * 8 * PITCH + p * 16}")
    a.i("s_waitcnt lgkmcnt(0) vmcnt(0)")
    for hf in range(TPW // 8):
        b = R + hf * 32
        step = 8
        while step < NW * 8:
            for w in range(0, NW * 8, 2 * step):
                for j in range(8):
                    a.i(f"v_add_f32 v{b+w+j}, v{b+w+j}, v{b+w+step+j}")
            step *= 2
        for j in range(8):
            a.i(f"v_mul_f32 v{b+j}, v{b+j}, v{V_RC+hf}")
        for j in range(4):
            a.i(f"v_cvt_pk_bf16_f32 v{b+8+j}, v{b+2*j}, v{b+2*j+1}")
        if hf:
            a.i(f"s_add_u32 s{T0}, s{T0}, 8192")
        a.i(f"buffer_store_dwordx4 v[{b+8}:{b+11}], v{t+4}, s[{C_OUT}:{C_OUT+3}], s{T0} offen {cfg.out_aux}")
    stamp(a, 4, 60)
    stamp_flush(a, 1, 6, C_WS, 60)
    a.label("K2_done")
    a.i("s_endpgm")
    lds = NW * (DW * 2048 + WSZ) if SEP else max(NW * DW * 2048, NW * WSZ)
    return a.text(), lds, NW


def kd(name, nv, accum, nsgpr=102):
    return f""".p2align 6
.amdhsa_kernel {name}
  .amdhsa_next_free_vgpr {nv}
  .amdhsa_next_free_sgpr {nsgpr}
  .amdhsa_accum_offset {accum}
  .amdhsa_group_segment_fixed_size 0
  .amdhsa_kernarg_size 88
  .amdhsa_user_sgpr_count 2
  .amdhsa_user_sgpr_kernarg_segment_ptr 1
  .amdhsa_system_sgpr_workgroup_id_x 1
  .amdhsa_float_denorm_mode_32 3
.end_amdhsa_kernel"""


def build(c1=None, c2=None):
    c1 = c1 or K1Cfg()
    c2 = c2 or K2Cfg()
    k1 = gen_k1(c1)
    k2, lds2, nw2 = gen_k2(c2)
    hdr = f"""; gated_mix: linear attention block + SwiGLU block, gated mix.  Generated by gen/gen8.py
; @launch kernel=k1_kernel grid=(256,1,1) block=(512,1,1) lds={K1_LDS}
; @launch kernel=k2_kernel grid=(256,1,1) block=({nw2*64},1,1) lds={lds2}
.amdgcn_target "amdgcn-amd-amdhsa--gfx950"
.text
"""
    tail = """
.p2align 8
CODE_END:
    s_endpgm
.section .rodata,"a"
"""
    return hdr + k1 + "\n" + k2 + tail + kd("k1_kernel", 256, 128) + "\n" + kd("k2_kernel", 224, 128) + "\n"


if __name__ == "__main__":
    if "--diag" in sys.argv:
        DIAG = True
        sys.argv.remove("--diag")
    c1, c2 = K1Cfg(), K2Cfg()
    for arg in list(sys.argv[1:]):
        if "=" in arg:
            k, v = arg.split("=")
            c = c2 if k.startswith("k2_") else c1
            k = k[3:] if k.startswith("k2_") else k
            setattr(c, k, v if k.endswith("_aux") else int(v))
            sys.argv.remove(arg)
    KROT, NM, SHIFT, TOUCHX = c1.krot, c1.nm, c1.shift, c1.touch_x
    out = sys.argv[1] if len(sys.argv) > 1 else f"cdna_kernels/{NAME}.s"
    open(out, "w").write(build(c1, c2))
    print("wrote", out)
```

```python
import sys

NAME = "gated_mix__linear_attn_block__glu_gated_swiglu__prompt"

AF_OFF = 0
AF_TT = 144 * 1024
AF_SIZE = 64 * AF_TT
KVT_OFF = AF_SIZE
KVT_HEAD = 1152
KVT_SIZE = 32 * KVT_HEAD
G_OFF = KVT_OFF + KVT_SIZE
G_SIZE = 2048 * 8
WS_USED = G_OFF + G_SIZE

STAMP_OFF = 16 << 20
DIAG = False

LOG2E = 0x3FB8AA3B
NLOG2E = 0xBFB8AA3B
EPS = 0x358637BD


class Asm:
    def __init__(self):
        self.L = []
        self.n = 0
        self.vm = []
        self.vm_done = 0
        self.ds = []
        self.ds_done = 0
        self.mfma_w = {}

    def raw(self, s):
        self.L.append(s)

    def i(self, s):
        self.L.append("    " + s)
        self.n += 1

    def label(self, s):
        self.L.append(s + ":")

    def vmem(self, tag, s):
        self.i(s)
        self.vm.append(tag)

    def dsop(self, tag, s):
        self.i(s)
        self.ds.append(tag)

    def _need(self, lst, tags):
        last = -1
        for k, t in enumerate(lst):
            if t in tags:
                last = k
        return last

    def wait(self, vm=(), ds=(), vm_all=False, ds_all=False):
        parts = []
        if vm_all:
            lv = len(self.vm) - 1
        else:
            lv = self._need(self.vm, set(vm)) if vm else -1
        if lv >= self.vm_done:
            n = len(self.vm) - 1 - lv
            assert n <= 63, n
            parts.append(f"vmcnt({n})")
            self.vm_done = lv + 1
        if ds_all:
            ld = len(self.ds) - 1
        else:
            ld = self._need(self.ds, set(ds)) if ds else -1
        if ld >= self.ds_done:
            n = len(self.ds) - 1 - ld
            if n > 15:
                n = 15
                ld = len(self.ds) - 1 - 15
            parts.append(f"lgkmcnt({n})")
            self.ds_done = ld + 1
        if parts:
            self.i("s_waitcnt " + " ".join(parts))

    def nop(self, k):
        while k > 0:
            c = min(k, 16)
            self.L.append(f"    s_nop {c-1}")
            self.n += c
            k -= c

    def mfma(self, d, a, b, c):
        cs = "0" if c is None else f"v[{c}:{c+15}]"
        self.i(f"v_mfma_f32_32x32x16_bf16 v[{d}:{d+15}], {a}, {b}, {cs}")
        self.mfma_w[d] = self.n

    def need_acc(self, d, dist=13):
        if d in self.mfma_w:
            gap = self.n - self.mfma_w[d]
            if gap < dist:
                self.nop(dist - gap)

    def text(self):
        return "\n".join(self.L)


def stamp(a, k, base=16):
    if DIAG:
        a.i(f"s_memrealtime s[{base+2*k}:{base+2*k+1}]")


def stamp_flush(a, kern, nst, ws_ptr_srd, base=16, t0=38):
    if not DIAG:
        return
    a.i("s_waitcnt vmcnt(0)")
    stamp(a, nst - 1, base)
    a.i("s_waitcnt lgkmcnt(0)")
    a.i("v_cmp_eq_u32 vcc, 0, v0")
    a.i("s_and_saveexec_b64 s[94:95], vcc")
    a.i(f"s_cbranch_execz STAMP_skip_{a.n}")
    lbl = f"STAMP_skip_{a.n-1}"
    a.L[-1] = f"    s_cbranch_execz {lbl}"
    a.i(f"s_mov_b32 s{ws_ptr_srd+2}, {STAMP_OFF + 65536}")
    a.i(f"s_lshl_b32 s3, s2, 6")
    a.i(f"s_add_u32 s3, s3, {STAMP_OFF + kern*16384}")
    a.i("v_mov_b32 v2, 0")
    for k in range(nst):
        src = t0 if k == 0 else base + 2 * k
        a.i(f"v_mov_b32 v4, s{src}")
        a.i(f"v_mov_b32 v5, s{src+1}")
        a.i(f"buffer_store_dwordx2 v[4:5], v2, s[{ws_ptr_srd}:{ws_ptr_srd+3}], s3 offen offset:{8*k}")
        a.i("s_nop 1")
    a.label(lbl)


def srd(a, s, ptr, size):
    a.i(f"s_mov_b32 s{s}, s{ptr}")
    a.i(f"s_and_b32 s{s+1}, s{ptr+1}, 0xffff")
    a.i(f"s_mov_b32 s{s+2}, {size}")
    a.i(f"s_mov_b32 s{s+3}, 0x20000")


class K1Cfg:
    store_aux = "sc1"
    fill_per_gap = 28
    ahead = 5
    pf_w2 = True
    krot = 1
    nm = 2
    fill_last = 20
    pf_mode = 1
    pf_round = 1
    shift = 1
    touch_x = 1


S_X, S_A, S_B, S_WS, S_GW, S_DBG, S_W2, S_WO = 40, 44, 48, 52, 56, 60, 64, 68
S_XCD, S_IDX, S_WAVE, S_TILE0, S_PITCH, S_COLA, S_COLB, S_UNIT = 4, 5, 6, 7, 8, 9, 10, 11
S_T0, S_T1, S_T2, S_T3 = 12, 13, 14, 15
S_XKF = 72
S_WK = 80
S_M0X = 88
S_M0W = 89
S_ST = 90
S_C1, S_C2, S_C3 = 91, 92, 93
S_MASK = 94
S_TMP = 96
S_P = 97
S_SAVE = 98
S_PR, S_CT = 100, 101
S_XKP = 30
S_LB = 34

V_LANE = 1
V_WA, V_WB, V_XD = 2, 3, 4
V_WT = 5
V_STO = 6
V_ZS = 7
V_XF = 8
V_T = 12
V_XFR = 20
V_E = 44
V_KV = 48
V_ACC = 64

SLOT = 40960
BUF = [0, SLOT, 2 * SLOT, 3 * SLOT]
K1_LDS = 3 * SLOT + 32768


def dma_stage_ops(i, nm):
    slot = BUF[i % 3]
    ops = []
    for seg, (va, sr) in enumerate(((V_WA, S_A), (V_WB, S_B))):
        ops.append([("s", None, f"s_add_u32 m0, s{S_M0W}, {slot + seg*8192}"),
                    ("s", None, "s_nop 0"),
                    ("v", f"S{i}", f"buffer_load_dwordx4 v{va}, s[{sr}:{sr+3}], s{S_WK+i} offen lds")])
    for m in range(nm):
        ops.append([("s", None, f"s_add_u32 m0, s{S_M0X}, {slot + 16384 + m*8192}"),
                    ("s", None, f"s_add_u32 s{S_TMP}, s{S_TBP}, {m*65536}"),
                    ("s", None, f"s_and_b32 s{S_TMP}, s{S_TMP}, 0x1fffff"),
                    ("s", None, f"s_add_u32 s{S_TMP}, s{S_TMP}, s{S_XKF+i}"),
                    ("v", f"S{i}", f"buffer_load_dwordx4 v{V_XD}, s[{S_X}:{S_X+3}], s{S_TMP} offen lds")])
    return ops


def dma_tile_ops(lj, tile, buf):
    ops = []
    for m in range(4):
        ops.append([("s", None, f"s_add_u32 m0, s{S_M0X}, {buf + m*8192}"),
                    ("s", None, f"s_add_u32 s{S_TMP}, s{S_TB0}, {tile*32768}"),
                    ("s", None, f"s_and_b32 s{S_TMP}, s{S_TMP}, 0x1fffff"),
                    ("s", None, f"s_add_u32 s{S_TMP}, s{S_TMP}, s{S_XKP+m}"),
                    ("v", f"L{lj}", f"buffer_load_dwordx4 v{V_XD}, s[{S_X}:{S_X+3}], s{S_TMP} offen lds")])
    return ops


def emit_group(a, grp):
    for kind, tag, text in grp:
        if kind == "v":
            a.vmem(tag, text)
        else:
            a.i(text)


KROT = 1
NM = 3
SHIFT = 1
TOUCHX = 1
S_TBP, S_TB0, S_TP = 9, 10, 8
S_KR = 39


def k1_prologue(a):
    a.i("s_cmp_ge_u32 s2, 256")
    a.i("s_cbranch_scc1 K1_done")
    if DIAG:
        a.i("s_memrealtime s[38:39]")
    a.i("s_load_dwordx16 s[16:31], s[0:1], 0")
    a.i("s_load_dwordx4 s[32:35], s[0:1], 64")
    a.i("s_load_dwordx2 s[36:37], s[0:1], 80")
    a.i("s_getpc_b64 s[98:99]")
    a.label("K1_pc")
    a.i(f"s_and_b32 s{S_XCD}, s2, 7")
    a.i(f"s_lshr_b32 s{S_IDX}, s2, 3")
    a.i(f"v_and_b32 v{V_LANE}, 63, v0")
    a.i(f"v_lshrrev_b32 v{V_T}, 6, v0")
    a.i(f"s_lshl_b32 s{S_T0}, s{S_IDX}, 11")
    a.i(f"v_readfirstlane_b32 s{S_WAVE}, v{V_T}")
    a.i(f"v_lshlrev_b32 v{V_T+1}, 7, v0")
    a.i(f"v_add_u32 v{V_T+1}, s{S_T0}, v{V_T+1}")
    a.i(f"v_min_u32 v{V_T+1}, CODE_END-K1_pc-4, v{V_T+1}")
    a.i("v_cmp_gt_u32 vcc, 16, v0")
    a.i("s_and_saveexec_b64 s[94:95], vcc")
    a.i("s_cbranch_execz K1_nopf")
    a.i(f"global_load_dword v{V_E}, v{V_T+1}, s[98:99]")
    a.label("K1_nopf")
    a.i("s_mov_b64 exec, s[94:95]")
    a.i(f"s_lshr_b32 s{S_PR}, s{S_WAVE}, 2")
    a.i(f"s_and_b32 s{S_CT}, s{S_WAVE}, 3")
    a.i(f"s_mul_i32 s{S_T0}, s{S_IDX}, 43")
    a.i(f"s_lshr_b32 s{S_T0}, s{S_T0}, 8")
    a.i(f"s_mul_i32 s{S_T1}, s{S_T0}, 6")
    a.i(f"s_sub_u32 s{S_P}, s{S_IDX}, s{S_T1}")
    a.i(f"s_lshl_b32 s{S_T0}, s{S_T0}, 3")
    a.i(f"s_add_u32 s{S_UNIT}, s{S_T0}, s{S_XCD}")
    a.i(f"s_mul_i32 s{S_TILE0}, s{S_P}, 11")
    a.i(f"s_max_u32 s{S_T0}, s{S_P}, 4")
    a.i(f"s_sub_u32 s{S_T0}, s{S_T0}, 4")
    a.i(f"s_sub_u32 s{S_TILE0}, s{S_TILE0}, s{S_T0}")
    a.i(f"s_lshl_b32 s{S_COLA}, s{S_UNIT}, 7")
    a.i(f"s_mov_b32 s{S_COLB}, s{S_COLA}")
    a.i(f"s_sub_u32 s{S_T0}, s{S_UNIT}, 28")
    a.i(f"s_lshl_b32 s{S_T0}, s{S_T0}, 8")
    a.i(f"s_add_u32 s{S_T1}, s{S_T0}, 128")
    a.i(f"s_cmp_ge_u32 s{S_UNIT}, 28")
    a.i(f"s_cselect_b32 s{S_COLA}, s{S_T0}, s{S_COLA}")
    a.i(f"s_cselect_b32 s{S_COLB}, s{S_T1}, s{S_COLB}")
    a.i("s_cselect_b32 s3, 1, 0")
    a.i(f"s_lshl_b32 s{S_T0}, s{S_XCD}, 7")
    a.i(f"s_add_u32 s{S_T1}, s{S_T0}, 2048")
    a.i(f"s_add_u32 s{S_T0}, s{S_T0}, 1024")
    a.i(f"s_sub_u32 s{S_T2}, s{S_IDX}, 24")
    a.i(f"s_lshl_b32 s{S_T3}, s{S_T2}, 3")
    a.i(f"s_cmp_ge_u32 s{S_IDX}, 24")
    a.i(f"s_cselect_b32 s{S_COLA}, s{S_T0}, s{S_COLA}")
    a.i(f"s_cselect_b32 s{S_COLB}, s{S_T1}, s{S_COLB}")
    a.i(f"s_cselect_b32 s{S_P}, s{S_T2}, s{S_P}")
    a.i(f"s_cselect_b32 s{S_TILE0}, s{S_T3}, s{S_TILE0}")
    a.i("s_cselect_b32 s3, 2, s3")
    a.i("s_cmp_eq_u32 s3, 0")
    a.i(f"s_movk_i32 s{S_T0}, 3584")
    a.i(f"s_movk_i32 s{S_T1}, 3072")
    a.i(f"s_cselect_b32 s{S_PITCH}, s{S_T0}, s{S_T1}")
    if SHIFT:
        a.i(f"s_mul_i32 s{S_T2}, s{S_XCD}, 11")
        a.i(f"s_lshr_b32 s{S_T2}, s{S_T2}, 3")
        a.i(f"s_add_u32 s{S_TILE0}, s{S_TILE0}, s{S_T2}")
    a.i(f"s_lshl_b32 s{S_T3}, s{S_PITCH}, 6")
    if KROT:
        a.i(f"s_add_u32 s{S_C1}, s{S_XCD}, s{S_IDX}")
    else:
        a.i(f"s_mov_b32 s{S_C1}, s{S_XCD}")
    for i in range(8):
        a.i(f"s_add_u32 s{S_T0}, s{S_C1}, {i}")
        a.i(f"s_and_b32 s{S_T0}, s{S_T0}, 7")
        a.i(f"s_lshl_b32 s{S_XKF+i}, s{S_T0}, 7")
        a.i(f"s_mul_i32 s{S_WK+i}, s{S_T0}, s{S_T3}")
    a.i(f"s_lshl_b32 s{S_M0W}, s{S_WAVE}, 10")
    a.i(f"s_lshl_b32 s{S_M0X}, s{S_PR}, 12")
    a.i(f"s_lshl_b32 s{S_T0}, s{S_CT}, 10")
    a.i(f"s_add_u32 s{S_M0X}, s{S_M0X}, s{S_T0}")
    t = V_T
    a.i(f"v_lshrrev_b32 v{t}, 3, v{V_LANE}")
    a.i(f"v_and_b32 v{t+1}, 7, v{V_LANE}")
    a.i(f"v_bfe_u32 v{t+2}, v{V_LANE}, 4, 1")
    a.i(f"v_lshlrev_b32 v{t+2}, 1, v{t+2}")
    a.i(f"v_xor_b32 v{t+3}, v{t+1}, v{t+2}")
    a.i(f"v_xor_b32 v{t+4}, 4, v{t+3}")
    a.i(f"s_lshl_b32 s{S_T0}, s{S_WAVE}, 3")
    a.i(f"v_add_u32 v{t+5}, s{S_T0}, v{t}")
    a.i(f"v_mul_lo_u32 v{t+5}, v{t+5}, s{S_PITCH}")
    a.i(f"v_lshl_add_u32 v{V_WA}, v{t+3}, 4, v{t+5}")
    a.i(f"v_add_u32 v{V_WA}, s{S_COLA}, v{V_WA}")
    a.i(f"v_lshl_add_u32 v{V_WB}, v{t+4}, 4, v{t+5}")
    a.i(f"v_add_u32 v{V_WB}, s{S_COLB}, v{V_WB}")
    a.i(f"s_lshl_b32 s{S_T0}, s{S_CT}, 3")
    a.i(f"v_add_u32 v{t+5}, s{S_T0}, v{t}")
    a.i(f"v_bfe_u32 v{t+6}, v{t+5}, 1, 3")
    a.i(f"v_xor_b32 v{t+6}, v{t+6}, v{t+1}")
    a.i(f"v_lshlrev_b32 v{t+5}, 10, v{t+5}")
    a.i(f"v_lshl_add_u32 v{V_XD}, v{t+6}, 4, v{t+5}")
    a.i("s_waitcnt lgkmcnt(0)")
    a.i("s_cmp_eq_u32 s3, 0")
    a.i(f"s_cselect_b32 s{S_A}, s24, s18")
    a.i(f"s_cselect_b32 s{S_A+1}, s25, s19")
    a.i(f"s_cselect_b32 s{S_B}, s26, s18")
    a.i(f"s_cselect_b32 s{S_B+1}, s27, s19")
    a.i(f"s_lshl_b32 s{S_A+2}, s{S_PITCH}, 9")
    a.i(f"s_and_b32 s{S_A+1}, s{S_A+1}, 0xffff")
    a.i(f"s_and_b32 s{S_B+1}, s{S_B+1}, 0xffff")
    a.i(f"s_mov_b32 s{S_B+2}, s{S_A+2}")
    a.i(f"s_mov_b32 s{S_A+3}, 0x20000")
    a.i(f"s_mov_b32 s{S_B+3}, 0x20000")
    srd(a, S_X, 16, 2048 * 1024)
    a.i(f"s_add_u32 s{S_TP}, s{S_TILE0}, s{S_PR}")
    a.i(f"s_lshl_b32 s{S_TBP}, s{S_TP}, 15")
    a.i(f"s_lshl_b32 s{S_TB0}, s{S_TILE0}, 15")
    for i in range(3):
        ops = dma_stage_ops(i, 3)
        for grp in ops[:-1]:
            emit_group(a, grp)
        if NM == 3:
            a.i("s_cmp_eq_u32 s3, 2")
            a.i(f"s_cbranch_scc1 K1_skip{i}")
            emit_group(a, ops[-1])
            a.label(f"K1_skip{i}")
    srd(a, S_WS, 36, WS_USED)
    srd(a, S_GW, 30, 1024)
    srd(a, S_DBG, 34, 256)
    srd(a, S_W2, 28, 1792 * 1024)
    srd(a, S_WO, 20, 512 * 1024)
    if TOUCHX:
        a.i(f"s_lshl_b32 s{S_T0}, s2, 3")
        a.i(f"s_add_u32 s{S_T0}, s{S_T0}, s{S_WAVE}")
        a.i(f"s_lshl_b32 s{S_T0}, s{S_T0}, 10")
        a.i(f"v_lshlrev_b32 v{V_E+1}, 7, v{V_LANE}")
        a.i("s_mov_b64 exec, 0xff")
        a.i(f"buffer_load_dword v{V_E+2}, v{V_E+1}, s[{S_X}:{S_X+3}], s{S_T0} offen")
        a.i("s_mov_b64 exec, -1")
    for m in range(4):
        a.i(f"s_add_u32 s{S_T0}, s{S_C1}, s{S_PR}")
        a.i(f"s_add_u32 s{S_T0}, s{S_T0}, {2*m}")
        a.i(f"s_and_b32 s{S_T0}, s{S_T0}, 7")
        a.i(f"s_lshl_b32 s{S_XKP+m}, s{S_T0}, 7")
    a.i(f"s_mov_b32 s{S_C1}, {LOG2E:#x}")
    a.i(f"s_mov_b32 s{S_C2}, {NLOG2E:#x}")
    a.i(f"s_mov_b32 s{S_C3}, {EPS:#x}")
    a.i(f"v_lshlrev_b32 v{V_STO}, 4, v{V_LANE}")
    a.i(f"v_and_b32 v{t}, 31, v{V_LANE}")
    a.i(f"v_lshrrev_b32 v{t+1}, 5, v{V_LANE}")
    a.i(f"v_bfe_u32 v{t+2}, v{t}, 1, 3")
    a.i(f"v_xor_b32 v{t+2}, v{t+2}, v{t+1}")
    a.i(f"v_lshlrev_b32 v{t}, 7, v{t}")
    a.i(f"s_lshl_b32 s{S_T0}, s{S_PR}, 12")
    a.i(f"v_add_u32 v{t}, s{S_T0}, v{t}")
    for s in range(4):
        a.i(f"v_xor_b32 v{t+3}, {2*s}, v{t+2}")
        a.i(f"v_lshl_add_u32 v{V_XF+s}, v{t+3}, 4, v{t}")
    a.i(f"v_bfe_u32 v{t}, v{V_LANE}, 4, 1")
    a.i(f"v_lshrrev_b32 v{t+1}, 5, v{V_LANE}")
    a.i(f"v_bfe_u32 v{t+2}, v{V_LANE}, 2, 2")
    a.i(f"v_bfe_u32 v{t+3}, v{V_LANE}, 1, 1")
    a.i(f"s_lshl_b32 s{S_T0}, s{S_CT}, 1")
    a.i(f"v_add_u32 v{t+3}, s{S_T0}, v{t+3}")
    a.i(f"v_bfe_u32 v{t+4}, v{V_LANE}, 3, 1")
    a.i(f"v_lshlrev_b32 v{t+4}, 1, v{t+4}")
    a.i(f"v_lshl_add_u32 v{t+4}, v{t}, 2, v{t+4}")
    a.i(f"v_xor_b32 v{t+3}, v{t+3}, v{t+4}")
    a.i(f"v_lshlrev_b32 v{t+5}, 13, v{t}")
    a.i(f"v_lshl_add_u32 v{t+5}, v{t+1}, 10, v{t+5}")
    a.i(f"v_lshl_add_u32 v{t+5}, v{t+2}, 7, v{t+5}")
    a.i(f"v_lshl_add_u32 v{t+5}, v{t+3}, 4, v{t+5}")
    a.i(f"v_and_b32 v{t+6}, 1, v{V_LANE}")
    a.i(f"v_lshl_add_u32 v{V_WT}, v{t+6}, 3, v{t+5}")
    cur0, cur1 = BUF[1], BUF[1] + 4096
    b0 = [BUF[3], BUF[0], BUF[3], BUF[0]]
    b1 = [BUF[2], BUF[1], BUF[2], BUF[1]]
    a.i(f"s_cmp_eq_u32 s{S_PR}, 0")
    for r in range(4):
        d0 = (b0[r] - cur0) & 0xffffffff
        d1 = (b1[r] - cur1) & 0xffffffff
        cur0, cur1 = b0[r], b1[r]
        a.i(f"s_mov_b32 s{S_T0}, {d0:#x}")
        a.i(f"s_mov_b32 s{S_T1}, {d1:#x}")
        a.i(f"s_cselect_b32 s{S_LB+r}, s{S_T0}, s{S_T1}")


def mk_ops(chk_blks):
    ops = []

    def V(cost, s, chk=False):
        def f(a, s=s, chk=chk):
            if chk:
                for b in chk_blks:
                    a.need_acc(b)
            a.i(s)
        ops.append((cost, f))
    return ops, V


def epi_mlp(cfg, acc, m):
    ops, V = mk_ops([acc])
    for r in range(8):
        V(4, f"v_mul_f32 v{acc+8+r}, v{acc+r}, v{acc+8+r}", chk=True)
    for r in range(8):
        V(4, f"v_mul_f32 v{acc+r}, s{S_C2}, v{acc+r}")
    for r in range(8):
        V(8, f"v_exp_f32 v{acc+r}, v{acc+r}")
    for r in range(8):
        V(4, f"v_add_f32 v{acc+r}, 1.0, v{acc+r}")
    for r in range(8):
        V(8, f"v_rcp_f32 v{acc+r}, v{acc+r}")
    for r in range(8):
        V(4, f"v_mul_f32 v{acc+8+r}, v{acc+r}, v{acc+8+r}")
    for j in range(4):
        V(4, f"v_cvt_pk_bf16_f32 v{acc+j}, v{acc+8+2*j}, v{acc+9+2*j}")

    def st(a):
        a.i(f"s_add_u32 s{S_TMP}, s{S_TP}, {2*m}")
        a.i(f"s_and_b32 s{S_TMP}, s{S_TMP}, 63")
        a.i(f"s_mul_i32 s{S_TMP}, s{S_TMP}, {AF_TT}")
        a.i(f"s_add_u32 s{S_TMP}, s{S_TMP}, s{S_ST}")
        a.vmem("st", f"buffer_store_dwordx4 v[{acc}:{acc+3}], v{V_STO}, s[{S_WS}:{S_WS+3}], s{S_TMP} offen {cfg.store_aux}")
        a.nop(1)
    ops.append((12, st))
    return ops


def phi_ops(V, regs, tmp):
    for k, r in enumerate(regs):
        V(4, f"v_mul_f32 v{tmp+k}, s{S_C1}, v{r}", chk=True)
    for k, r in enumerate(regs):
        V(8, f"v_exp_f32_e64 v{tmp+k}, v{tmp+k} clamp")
    for k, r in enumerate(regs):
        V(4, f"v_max_f32 v{r}, 0, v{r}")
    for k, r in enumerate(regs):
        V(4, f"v_add_f32 v{r}, v{r}, v{tmp+k}")
    for k, r in enumerate(regs):
        V(4, f"v_add_f32 v{r}, s{S_C3}, v{r}")


def epi_q(cfg, acc, m):
    ops, V = mk_ops([acc])
    for half in range(2):
        regs = [acc + 8 * half + r for r in range(8)]
        phi_ops(V, regs, V_T)
        o = acc + 8 * half
        for j in range(4):
            V(4, f"v_cvt_pk_bf16_f32 v{o+j}, v{regs[2*j]}, v{regs[2*j+1]}")

        def st(a, o=o, half=half):
            a.i(f"s_add_u32 s{S_TMP}, s{S_TP}, {2*m}")
            a.i(f"s_and_b32 s{S_TMP}, s{S_TMP}, 63")
            a.i(f"s_mul_i32 s{S_TMP}, s{S_TMP}, {AF_TT}")
            a.i(f"s_add_u32 s{S_TMP}, s{S_TMP}, s{S_ST}")
            if half:
                a.i(f"s_add_u32 s{S_TMP}, s{S_TMP}, 4096")
            a.vmem("st", f"buffer_store_dwordx4 v[{o}:{o+3}], v{V_STO}, s[{S_WS}:{S_WS+3}], s{S_TMP} offen {cfg.store_aux}")
            a.nop(1)
        ops.append((12, st))
    return ops


def epi_kv(cfg, acc0, acc1, first):
    ops, V = mk_ops([acc0, acc1])
    for r in range(16):
        V(4, f"v_permlane16_swap_b32 v{acc0+r}, v{acc1+r}", chk=True)
    for half in range(2):
        phi_ops(V, [acc0 + 8 * half + r for r in range(8)], V_T)
    for j in range(8):
        V(4, f"v_cvt_pk_bf16_f32 v{acc1+j}, v{acc1+2*j}, v{acc1+2*j+1}")
    for r in range(16):
        if first and r == 0:
            V(4, f"v_mov_b32 v{V_ZS}, v{acc0}")
        else:
            V(4, f"v_add_f32 v{V_ZS}, v{V_ZS}, v{acc0+r}")
    for j in range(8):
        V(4, f"v_cvt_pk_bf16_f32 v{acc0+j}, v{acc0+2*j}, v{acc0+2*j+1}")

    def mm(a):
        a.nop(2)
        a.mfma(V_KV, f"v[{acc0}:{acc0+3}]", f"v[{acc1}:{acc1+3}]", None if first else V_KV)
        a.mfma(V_KV, f"v[{acc0+4}:{acc0+7}]", f"v[{acc1+4}:{acc1+7}]", V_KV)
    ops.append((24, mm))
    return ops


class K1State:
    pass


def k1_first_pass(a, cfg, kv):
    nm = 2 if kv else NM
    nl = 4 if kv else 11 - 2 * NM
    n1 = 2 * nm
    acc_blk = [V_ACC + 16 * k for k in range(4)]
    lbuf = [BUF[3], BUF[2], BUF[0], BUF[1], BUF[3], BUF[2], BUF[0]]
    a.vm, a.vm_done, a.ds, a.ds_done, a.mfma_w = ["pf"], 0, [], 0, {}
    for i in range(3):
        for grp in dma_stage_ops(i, nm):
            a.vm.append(f"S{i}")

    def opnds(q, xf):
        w = f"a[{4*q}:{4*q+3}]"
        x = f"v[{xf}:{xf+3}]"
        return (x, w) if kv else (w, x)

    def fp_reads(n):
        i, s = divmod(n, 4)
        L = []
        for rd in range(2):
            L.append((f"w{n}", f"ds_read_b64_tr_b16 a[{4*n+2*rd}:{4*n+2*rd+1}], v{V_WT} offset:{s*2048 + rd*512}"))
        for m in range(nm):
            xf = V_XFR + (n % 2) * 12 + 4 * m
            L.append((f"x{n}_{m}", f"ds_read_b128 v[{xf}:{xf+3}], v{V_XF+s} offset:{16384 + m*8192}"))
        return L

    st = K1State()
    st.nm, st.nl, st.n1, st.acc_blk, st.lbuf, st.opnds, st.kv = nm, nl, n1, acc_blk, lbuf, opnds, kv
    stamp(a, 1)
    a.wait(vm=["S0"])
    a.i("s_barrier")
    stamp(a, 2)
    for tag, text in fp_reads(0):
        a.dsop(tag, text)
    dma_q = []
    for n in range(32):
        i, s = divmod(n, 4)
        pre = []
        if s == 3:
            a.wait(ds_all=True)
            tgs = [f"S{i+1}"] if i < 7 else ["L0", "L1"]
            for tg in tgs:
                assert not any(op[1] == tg for g in dma_q for op in g), tg
                assert tg in a.vm
            a.wait(vm=tgs)
            a.i("s_barrier")
            if kv and i == 2:
                a.i(f"s_or_b32 s{S_T0}, s{S_P}, s{S_PR}")
                a.i(f"s_cmp_lg_u32 s{S_T0}, 0")
                a.i("s_cbranch_scc1 K1_kv_noflag")
                a.i("s_mov_b64 exec, 1")
                a.i(f"v_mov_b32 v{V_T}, 1")
                a.i(f"v_mov_b32 v{V_T+1}, 0")
                a.i(f"buffer_store_dword v{V_T}, v{V_T+1}, s[{S_DBG}:{S_DBG+3}], s{S_UNIT} offen sc1")
                a.i("s_mov_b64 exec, -1")
                a.label("K1_kv_noflag")
            if i + 3 <= 7:
                dma_q += dma_stage_ops(i + 3, nm)
            if i == 4:
                dma_q += dma_tile_ops(0, n1, lbuf[0])
            if i >= 5:
                dma_q += dma_tile_ops(i - 4, n1 + i - 4, lbuf[i - 4])
            if i < 7:
                d = (BUF[(i + 1) % 3] - BUF[i % 3]) & 0xffffffff
                pre = [f"v_add_u32 v{r}, {d:#x}, v{r}" for r in (V_WT, V_XF, V_XF + 1, V_XF + 2, V_XF + 3)]
            else:
                pre = [f"v_add_u32 v{r}, s{S_LB}, v{r}" for r in (V_XF, V_XF + 1, V_XF + 2, V_XF + 3)]
        for p in pre:
            a.i(p)
        if n < 31:
            fill = fp_reads(n + 1)
        else:
            fill = [lp_read(0, q) for q in range(3)]
        for m in range(nm):
            a.wait(ds=[f"w{n}", f"x{n}_{m}"])
            A, B = opnds(n, V_XFR + (n % 2) * 12 + 4 * m)
            a.mfma(acc_blk[m], A, B, None if n == 0 else acc_blk[m])
            k = 0
            while fill and k < 2:
                tag, text = fill.pop(0)
                a.dsop(tag, text)
                k += 1
            if dma_q:
                emit_group(a, dma_q.pop(0))
        while fill:
            tag, text = fill.pop(0)
            a.dsop(tag, text)
    st.dma_q = dma_q
    stamp(a, 3)
    return st


RING = 6


def lp_read(rd, q):
    i, s = divmod(q, 4)
    xf = V_XFR + 4 * ((rd * 32 + q) % RING)
    return (f"l{rd}_{q}", f"ds_read_b128 v[{xf}:{xf+3}], v{V_XF+s} offset:{i*4096}")


def k1_later(a, cfg, st, typ):
    nm, nl, n1, acc_blk, lbuf, opnds = st.nm, st.nl, st.n1, st.acc_blk, st.lbuf, st.opnds
    dma_q = list(st.dma_q)
    AH = cfg.ahead
    if typ == "mlp":
        a.i(f"s_lshl_b32 s{S_T0}, s{S_UNIT}, 2")
        a.i(f"s_add_u32 s{S_T0}, s{S_T0}, s{S_CT}")
    elif typ == "q":
        a.i(f"s_lshl_b32 s{S_T0}, s{S_UNIT}, 3")
        a.i(f"s_add_u32 s{S_T0}, s{S_T0}, s{S_CT}")
        a.i(f"s_sub_u32 s{S_T0}, s{S_T0}, {28*8-112}")
    if typ != "kv":
        a.i(f"s_lshl_b32 s{S_ST}, s{S_T0}, 10")
        if AF_OFF:
            a.i(f"s_add_u32 s{S_ST}, s{S_ST}, {AF_OFF}")
    for q in range(3, AH):
        tag, text = lp_read(0, q)
        a.dsop(tag, text)
    epi = []
    free_blk = acc_blk[nm:]

    def push_epi(blks, m, first=False):
        if typ == "mlp":
            ops = epi_mlp(cfg, blks[0], m)
        elif typ == "q":
            ops = epi_q(cfg, blks[0], m)
        else:
            ops = epi_kv(cfg, blks[0], blks[1], first)

        def rel(a, blks=blks):
            free_blk.extend(blks)
        ops.append((0, rel))
        epi.extend(ops)

    if typ == "kv":
        push_epi([acc_blk[0], acc_blk[1]], 0, first=True)
    else:
        for m in range(nm):
            push_epi([acc_blk[m]], m)
    extra = []
    if cfg.pf_w2 and typ != "kv":
        extra = pf_w2_ops(cfg)
    nrounds = (nl + 1) // 2
    pend = []

    def drain():
        while epi:
            c, f = epi.pop(0)
            f(a)

    for rd in range(nrounds):
        last_odd = (2 * rd + 1 >= nl)
        if last_odd:
            snap = (list(a.vm), a.vm_done, list(a.ds), a.ds_done, dict(a.mfma_w), list(epi), list(free_blk), a.n)
            a.i(f"s_lshr_b32 s{S_T0}, s{S_P}, 2")
            a.i(f"s_or_b32 s{S_T0}, s{S_T0}, s{S_PR}")
            a.i(f"s_cmp_eq_u32 s{S_T0}, 0")
            a.i(f"s_cbranch_scc1 K1_{typ}_last")
            stamp(a, 4)
            drain()
            stamp(a, 5)
            stamp_flush(a, 0, 7, S_WS)
            a.i("s_endpgm")
            a.label(f"K1_{typ}_last")
            a.vm, a.vm_done, a.ds, a.ds_done, a.mfma_w = snap[0], snap[1], snap[2], snap[3], snap[4]
            epi[:] = snap[5]
            free_blk[:] = snap[6]
            a.mfma_w = {k: a.n - (snap[7] - v) for k, v in snap[4].items()}
        while not free_blk:
            c, f = epi.pop(0)
            f(a)
        blk = free_blk.pop(0)
        has_next = rd + 1 < nrounds
        for q in range(32):
            if q == 32 - AH and has_next:
                tgs = [f"L{j}" for j in (2 * rd + 2, 2 * rd + 3) if j < nl]
                for tg in tgs:
                    assert not any(op[1] == tg for g in dma_q for op in g), tg
                    assert tg in a.vm
                a.wait(vm=tgs, ds_all=True)
                a.i("s_barrier")
                for nxt in (2 * rd + 4, 2 * rd + 5):
                    if nxt < nl:
                        dma_q += dma_tile_ops(nxt, n1 + nxt, lbuf[nxt])
                for r in range(4):
                    a.i(f"v_add_u32 v{V_XF+r}, s{S_LB+rd+1}, v{V_XF+r}")
            a.wait(ds=[f"l{rd}_{q}"])
            A, B = opnds(q, V_XFR + 4 * ((rd * 32 + q) % RING))
            a.mfma(blk, A, B, None if q == 0 else blk)
            if q + AH < 32:
                tag, text = lp_read(rd, q + AH)
                a.dsop(tag, text)
            elif has_next:
                tag, text = lp_read(rd + 1, q + AH - 32)
                a.dsop(tag, text)
            budget = cfg.fill_last if last_odd else cfg.fill_per_gap
            if dma_q:
                emit_group(a, dma_q.pop(0))
                budget -= 16
            elif extra and rd == cfg.pf_round and q % 2 == 0:
                emit_group(a, extra.pop(0))
                budget -= 16
            while epi and budget > 0:
                c, f = epi[0]
                if c > budget and budget < 16:
                    break
                epi.pop(0)
                f(a)
                budget -= c
        pend.append(blk)
        if typ == "kv":
            if len(pend) == 2:
                push_epi(pend, 0)
                pend = []
        else:
            push_epi(pend, nm + rd)
            pend = []
    assert not dma_q and not extra
    stamp(a, 4)
    if typ == "kv":
        k1_g_loads(a)
    drain()
    if typ == "kv":
        k1_kv_tail(a)
        k1_g_compute(a)
    stamp(a, 5)
    stamp_flush(a, 0, 7, S_WS)
    a.i("s_endpgm")


def pf_w2_ops(cfg):
    ops = []
    if cfg.pf_mode == 0:
        ops.append([("s", None, f"s_lshl_b32 s{S_T0}, s2, 3"),
                    ("s", None, f"s_add_u32 s{S_T0}, s{S_T0}, s{S_WAVE}"),
                    ("s", None, f"s_lshl_b32 s{S_T0}, s{S_T0}, 11"),
                    ("s", None, f"v_lshlrev_b32 v{V_E+1}, 7, v{V_LANE}"),
                    ("s", None, f"s_sub_u32 s{S_T1}, s{S_T0}, {1792*1024}"),
                    ("s", None, "s_mov_b64 exec, 0xffff"),
                    ("v", "pf", f"buffer_load_dword v{V_E}, v{V_E+1}, s[{S_W2}:{S_W2+3}], s{S_T0} offen"),
                    ("v", "pf", f"buffer_load_dword v{V_E}, v{V_E+1}, s[{S_WO}:{S_WO+3}], s{S_T1} offen"),
                    ("s", None, "s_mov_b64 exec, -1")])
    else:
        halves = [None] if cfg.pf_mode == 1 else [0, 1]
        for hv in halves:
            ops.append([("s", None, f"s_lshl_b32 s{S_T0}, s{S_IDX}, 3"),
                        ("s", None, f"s_add_u32 s{S_T0}, s{S_T0}, s{S_WAVE}"),
                        ("s", None, f"s_mul_i32 s{S_T0}, s{S_T0}, {12*1024}"),
                        ("s", None, f"s_and_b32 s{S_T1}, s{S_XCD}, 1" if hv is None else f"s_mov_b32 s{S_T1}, {hv}"),
                        ("s", None, f"s_lshl_b32 s{S_T1}, s{S_T1}, 9"),
                        ("s", None, f"s_add_u32 s{S_T0}, s{S_T0}, s{S_T1}"),
                        ("s", None, f"v_lshrrev_b32 v{V_E+1}, 2, v{V_LANE}"),
                        ("s", None, f"v_lshlrev_b32 v{V_E+1}, 10, v{V_E+1}"),
                        ("s", None, f"v_and_b32 v{V_E+2}, 3, v{V_LANE}"),
                        ("s", None, f"v_lshl_add_u32 v{V_E+1}, v{V_E+2}, 7, v{V_E+1}"),
                        ("s", None, f"v_add_u32 v{V_E+1}, s{S_T0}, v{V_E+1}"),
                        ("s", None, f"v_subrev_u32 v{V_E+2}, {1792*1024}, v{V_E+1}"),
                        ("s", None, "s_mov_b32 exec_hi, 0xffff"),
                        ("v", "pf", f"buffer_load_dword v{V_E}, v{V_E+1}, s[{S_W2}:{S_W2+3}], 0 offen"),
                        ("v", "pf", f"buffer_load_dword v{V_E}, v{V_E+2}, s[{S_WO}:{S_WO+3}], 0 offen"),
                        ("s", None, "s_mov_b64 exec, -1")])
    return ops


def k1_kv_head(a):
    a.i(f"s_lshl_b32 s{S_T0}, s{S_XCD}, 2")
    a.i(f"s_add_u32 s{S_T0}, s{S_T0}, s{S_CT}")
    a.i(f"s_lshl_b32 s{S_UNIT}, s{S_T0}, 2")
    a.i(f"s_mul_i32 s{S_ST}, s{S_T0}, {KVT_HEAD}")
    a.i(f"s_add_u32 s{S_ST}, s{S_ST}, {KVT_OFF}")
    a.i(f"s_or_b32 s{S_T0}, s{S_P}, s{S_PR}")
    a.i(f"s_cmp_lg_u32 s{S_T0}, 0")
    a.i("s_cbranch_scc1 K1_kv_nozero")
    a.i(f"v_lshlrev_b32 v{V_T}, 3, v{V_LANE}")
    for k in range(6):
        a.i(f"v_mov_b32 v{V_KV+k}, 0")
    a.i(f"buffer_atomic_swap_x2 v[{V_KV}:{V_KV+1}], v{V_T}, s[{S_WS}:{S_WS+3}], s{S_ST} offen sc0")
    a.i(f"buffer_atomic_swap_x2 v[{V_KV+2}:{V_KV+3}], v{V_T}, s[{S_WS}:{S_WS+3}], s{S_ST} offen offset:512 sc0")
    a.i("s_mov_b64 exec, 0xffff")
    a.i(f"buffer_atomic_swap_x2 v[{V_KV+4}:{V_KV+5}], v{V_T}, s[{S_WS}:{S_WS+3}], s{S_ST} offen offset:1024 sc0")
    a.i("s_mov_b64 exec, -1")
    a.label("K1_kv_nozero")


def k1_kv_tail(a):
    t = V_T
    B = V_ACC
    a.need_acc(V_KV, 16)
    for r in range(8):
        a.i(f"v_permlane16_swap_b32 v{V_KV+8+r}, v{t+r}")
    a.i(f"v_mov_b32 v{B}, v{V_ZS}")
    a.nop(2)
    a.i(f"v_permlane16_swap_b32 v{B}, v{V_ZS}")
    a.nop(1)
    a.i(f"v_add_f32 v{V_ZS}, v{V_ZS}, v{B}")
    a.i(f"v_mov_b32 v{B}, v{V_ZS}")
    a.nop(2)
    a.i(f"v_permlane32_swap_b32 v{B}, v{V_ZS}")
    a.nop(1)
    a.i(f"v_add_f32 v{V_ZS}, v{V_ZS}, v{B}")
    for r in range(8):
        a.i(f"v_add_f32 v{V_KV+r}, v{V_KV+r}, v{t+r}")
    a.i(f"s_mul_i32 s{S_T1}, s{S_WAVE}, {KVT_HEAD}")
    a.i(f"s_add_u32 s{S_T1}, s{S_T1}, {BUF[3]}")
    a.i(f"v_and_b32 v{B}, 15, v{V_LANE}")
    a.i(f"v_lshrrev_b32 v{B+1}, 5, v{V_LANE}")
    a.i(f"v_lshl_add_u32 v{B+1}, v{B+1}, 4, v{B}")
    a.i(f"v_lshlrev_b32 v{B+1}, 5, v{B+1}")
    a.i(f"v_add_u32 v{B+1}, s{S_T1}, v{B+1}")
    a.i(f"v_and_b32 v{B+2}, 3, v{B}")
    a.i(f"v_lshrrev_b32 v{B+3}, 3, v{B}")
    a.i(f"v_lshl_add_u32 v{B+2}, v{B+3}, 2, v{B+2}")
    a.i(f"v_bfe_u32 v{B+3}, v{B}, 2, 1")
    a.i(f"v_lshl_add_u32 v{B+2}, v{B+3}, 3, v{B+2}")
    a.i(f"v_lshlrev_b32 v{B+2}, 2, v{B+2}")
    a.i(f"v_add_u32 v{B+2}, s{S_T1}, v{B+2}")
    a.i(f"v_lshlrev_b32 v{B+4}, 2, v{V_LANE}")
    a.i(f"v_add_u32 v{B+3}, s{S_T1}, v{B+4}")
    a.i(f"s_mov_b32 s{S_MASK}, 0xffff")
    a.i(f"s_mov_b32 s{S_MASK+1}, 0xffff")
    a.i(f"s_mov_b64 exec, s[{S_MASK}:{S_MASK+1}]")
    a.i(f"ds_write_b128 v{B+1}, v[{V_KV}:{V_KV+3}]")
    a.i(f"ds_write_b128 v{B+1}, v[{V_KV+4}:{V_KV+7}] offset:16")
    a.i("s_mov_b64 exec, 0xffff")
    a.i(f"ds_write_b32 v{B+2}, v{V_ZS} offset:1024")
    a.i("s_mov_b64 exec, -1")
    a.i("s_waitcnt lgkmcnt(0)")
    for k in range(5):
        a.i(f"ds_read_b32 v{B+8+k}, v{B+3} offset:{256*k}")
    a.label("K1_kv_poll")
    a.i("s_mov_b64 exec, 1")
    a.i(f"v_mov_b32 v{t+1}, 0")
    a.i(f"buffer_load_dword v{t}, v{t+1}, s[{S_DBG}:{S_DBG+3}], s{S_UNIT} offen sc1")
    a.i("s_waitcnt vmcnt(0)")
    a.i(f"v_readfirstlane_b32 s{S_T0}, v{t}")
    a.i("s_mov_b64 exec, -1")
    a.i(f"s_cmp_lg_u32 s{S_T0}, 0")
    a.i("s_cbranch_scc1 K1_kv_go")
    a.i("s_sleep 8")
    a.i("s_branch K1_kv_poll")
    a.label("K1_kv_go")
    a.vm_done = len(a.vm)
    a.i("s_waitcnt lgkmcnt(0)")
    for k in range(5):
        if k == 4:
            a.i("s_mov_b64 exec, 0xffff")
        a.vmem("at", f"buffer_atomic_add_f32 v{B+8+k}, v{B+4}, s[{S_WS}:{S_WS+3}], s{S_ST} offen offset:{256*k}")
    a.i("s_mov_b64 exec, -1")


def k1_g_loads(a):
    a.i(f"s_lshl_b32 s{S_T0}, s{S_P}, 8")
    a.i(f"s_lshl_b32 s{S_T1}, s{S_XCD}, 5")
    a.i(f"s_add_u32 s{S_T0}, s{S_T0}, s{S_T1}")
    a.i(f"s_lshl_b32 s{S_T1}, s{S_WAVE}, 2")
    a.i(f"s_add_u32 s{S_T2}, s{S_T0}, s{S_T1}")
    a.i(f"s_lshl_b32 s{S_T0}, s{S_T2}, 10")
    e = V_XFR
    a.nop(4)
    a.vmem("g", f"buffer_load_dwordx4 v[{e}:{e+3}], v{V_STO}, s[{S_GW}:{S_GW+3}], 0 offen")
    for k in range(4):
        a.vmem("g", f"buffer_load_dwordx4 v[{e+4+4*k}:{e+7+4*k}], v{V_STO}, s[{S_X}:{S_X+3}], s{S_T0} offen offset:{1024*k}")


def k1_g_compute(a):
    e = V_XFR
    a.wait(vm=["g"])
    t = V_ACC + 16
    R = [V_ACC + 24 + k for k in range(4)]
    gw = V_ACC + 40
    for j in range(4):
        a.i(f"v_lshlrev_b32 v{gw+2*j}, 16, v{e+j}")
        a.i(f"v_and_b32 v{gw+2*j+1}, 0xffff0000, v{e+j}")
    for row in range(4):
        xs = e + 4 + 4 * row
        acc = R[row]
        for j in range(4):
            a.i(f"v_lshlrev_b32 v{t}, 16, v{xs+j}")
            a.i(f"v_and_b32 v{t+1}, 0xffff0000, v{xs+j}")
            a.i(f"v_mul_f32 v{t}, v{t}, v{gw+2*j}")
            a.i(f"v_mul_f32 v{t+1}, v{t+1}, v{gw+2*j+1}")
            a.i(f"v_cvt_pk_bf16_f32 v{t+2}, v{t}, v{t+1}")
            a.i(f"v_lshlrev_b32 v{t}, 16, v{t+2}")
            a.i(f"v_and_b32 v{t+1}, 0xffff0000, v{t+2}")
            if j == 0:
                a.i(f"v_add_f32 v{acc}, v{t}, v{t+1}")
            else:
                a.i(f"v_add_f32 v{acc}, v{acc}, v{t}")
                a.i(f"v_add_f32 v{acc}, v{acc}, v{t+1}")
    a.nop(2)
    for mod in ("row_shr:1", "row_shr:2", "row_shr:4", "row_shr:8"):
        for r in R:
            a.i(f"v_add_f32_dpp v{r}, v{r}, v{r} {mod} row_mask:0xf bank_mask:0xf bound_ctrl:0")
    for r in R:
        a.i(f"v_add_f32_dpp v{r}, v{r}, v{r} row_bcast:15 row_mask:0xa bank_mask:0xf")
    for r in R:
        a.i(f"v_add_f32_dpp v{r}, v{r}, v{r} row_bcast:31 row_mask:0xc bank_mask:0xf")

    def rnd(regs):
        for r in regs:
            a.i(f"v_cvt_pk_bf16_f32 v{r}, v{r}, v{r}")
        for r in regs:
            a.i(f"v_and_b32 v{r}, 0xffff0000, v{r}")
    rnd(R)
    for r in R:
        a.i(f"v_mul_f32 v{r}, s{S_C2}, v{r}")
    for r in R:
        a.i(f"v_exp_f32 v{r}, v{r}")
    for r in R:
        a.i(f"v_add_f32 v{r}, 1.0, v{r}")
    for r in R:
        a.i(f"v_rcp_f32 v{r}, v{r}")
    a.nop(1)
    rnd(R)
    o = V_ACC + 32
    O = [o + 2 * k + 1 for k in range(4)]
    for k in range(4):
        a.i(f"v_sub_f32 v{O[k]}, 1.0, v{R[k]}")
    rnd(O)
    for k in range(4):
        a.i(f"v_max_f32 v{O[k]}, 0x30800000, v{O[k]}")
    for k in range(4):
        a.i(f"v_rcp_f32 v{t+k}, v{O[k]}")
    a.nop(1)
    for k in range(4):
        a.i(f"v_fma_f32 v{t+4+k}, -v{O[k]}, v{t+k}, 1.0")
    for k in range(4):
        a.i(f"v_fma_f32 v{t+k}, v{t+4+k}, v{t+k}, v{t+k}")
    for k in range(4):
        a.i(f"v_mul_f32 v{o+2*k}, v{R[k]}, v{t+k}")
    a.i(f"s_lshl_b32 s{S_T0}, s{S_T2}, 3")
    a.i(f"s_add_u32 s{S_T0}, s{S_T0}, {G_OFF}")
    a.i(f"v_mov_b32 v{t}, 0")
    a.i(f"s_mov_b32 s{S_SAVE}, 0")
    a.i(f"s_mov_b32 s{S_SAVE+1}, 0x80000000")
    a.i(f"s_mov_b64 exec, s[{S_SAVE}:{S_SAVE+1}]")
    a.vmem("gst", f"buffer_store_dwordx4 v[{o}:{o+3}], v{t}, s[{S_WS}:{S_WS+3}], s{S_T0} offen sc1")
    a.vmem("gst", f"buffer_store_dwordx4 v[{o+4}:{o+7}], v{t}, s[{S_WS}:{S_WS+3}], s{S_T0} offen offset:16 sc1")
    a.i("s_mov_b64 exec, -1")


def gen_k1(cfg):
    import copy
    a = Asm()
    a.raw(".globl k1_kernel\n.p2align 8\n.type k1_kernel,@function\nk1_kernel:")
    k1_prologue(a)
    a.i("s_cmp_eq_u32 s3, 2")
    a.i("s_cbranch_scc1 K1_kv")
    st = k1_first_pass(a, cfg, False)
    snap = (list(a.vm), a.vm_done, list(a.ds), a.ds_done, dict(a.mfma_w), a.n)
    a.i("s_cmp_eq_u32 s3, 1")
    a.i("s_cbranch_scc1 K1_q")
    k1_later(a, cfg, st, "mlp")
    a.raw(".p2align 6")
    a.label("K1_q")
    a.vm, a.vm_done, a.ds, a.ds_done = list(snap[0]), snap[1], list(snap[2]), snap[3]
    a.mfma_w = {k: a.n - (snap[5] - v) for k, v in snap[4].items()}
    k1_later(a, cfg, st, "q")
    a.raw(".p2align 6")
    a.label("K1_kv")
    k1_kv_head(a)
    st = k1_first_pass(a, cfg, True)
    k1_later(a, cfg, st, "kv")
    a.label("K1_done")
    a.i("s_endpgm")
    return a.text()


class K2Cfg:
    depth = 6
    wdepth = 8
    mode = 1
    nw = 4
    sep = 1
    out_aux = 'sc0 sc1'


def gen_k2(cfg):
    a = Asm()
    D, DW, NW = cfg.depth, cfg.wdepth, cfg.nw
    NH, NA = 112 // NW, 32 // NW
    C_WS, C_W2, C_WO, C_OUT = 40, 44, 48, 52
    C_W, C_RB, C_CB, C_M0, T0, T1, T2, T3 = 4, 5, 6, 7, 8, 9, 10, 11
    S_HB, S_WB, S_QB, S_OB, S_KVB, C_EPS = 12, 13, 14, 15, 56, 57
    V_L = 1
    V_A0, V_A1, V_WD, V_TR0, V_TR1, V_KVA = 2, 3, 4, 5, 6, 7
    VT = 8
    V_G = 16
    V_RC = 20
    V_KVF = 24
    V_WF = 32
    V_OF = 48
    P = 56
    ACC = 64
    A_ND = 64
    assert 8 * D <= 64
    a.raw(".globl k2_kernel\n.p2align 8\n.type k2_kernel,@function\nk2_kernel:")
    a.i("s_cmp_ge_u32 s2, 256")
    a.i("s_cbranch_scc1 K2_done")
    if DIAG:
        a.i("s_memrealtime s[38:39]")
    a.i("s_load_dwordx2 s[16:17], s[0:1], 16")
    a.i("s_load_dwordx2 s[18:19], s[0:1], 48")
    a.i("s_load_dwordx2 s[20:21], s[0:1], 64")
    a.i("s_load_dwordx2 s[22:23], s[0:1], 80")
    a.i("s_getpc_b64 s[24:25]")
    a.label("K2_pc")
    a.i(f"s_and_b32 s{T0}, s2, 7")
    a.i(f"s_lshr_b32 s{T1}, s2, 3")
    a.i(f"v_and_b32 v{V_L}, 63, v0")
    a.i(f"v_lshrrev_b32 v{VT}, 6, v0")
    a.i(f"s_lshl_b32 s{T2}, s{T1}, 9")
    a.i(f"v_readfirstlane_b32 s{C_W}, v{VT}")
    a.i(f"v_lshlrev_b32 v{VT+1}, 7, v0")
    a.i(f"v_add_u32 v{VT+1}, s{T2}, v{VT+1}")
    a.i(f"v_min_u32 v{VT+1}, CODE_END-K2_pc-4, v{VT+1}")
    a.i("v_cmp_gt_u32 vcc, 4, v0")
    a.i("s_and_saveexec_b64 s[26:27], vcc")
    a.i("s_cbranch_execz K2_nopf")
    a.i(f"global_load_dword v{P+7}, v{VT+1}, s[24:25]")
    a.label("K2_nopf")
    a.i("s_mov_b64 exec, s[26:27]")
    a.vm.append("pf")
    if cfg.mode == 0:
        a.i(f"s_lshr_b32 s{C_RB}, s{T1}, 3")
        a.i(f"s_lshl_b32 s{T2}, s{T0}, 2")
        a.i(f"s_add_u32 s{C_RB}, s{C_RB}, s{T2}")
        a.i(f"s_and_b32 s{C_CB}, s{T1}, 7")
    else:
        a.i(f"s_lshr_b32 s{C_RB}, s{T0}, 1")
        a.i(f"s_lshl_b32 s{C_RB}, s{C_RB}, 3")
        a.i(f"s_lshr_b32 s{T2}, s{T1}, 2")
        a.i(f"s_add_u32 s{C_RB}, s{C_RB}, s{T2}")
        a.i(f"s_and_b32 s{C_CB}, s{T0}, 1")
        a.i(f"s_lshl_b32 s{C_CB}, s{C_CB}, 2")
        a.i(f"s_and_b32 s{T2}, s{T1}, 3")
        a.i(f"s_add_u32 s{C_CB}, s{C_CB}, s{T2}")
    t = VT
    a.i(f"s_mul_i32 s{T0}, s{C_RB}, {2*AF_TT}")
    a.i(f"v_lshlrev_b32 v{V_A0}, 4, v{V_L}")
    a.i(f"v_add_u32 v{V_A0}, s{T0}, v{V_A0}")
    a.i(f"v_add_u32 v{V_A1}, {AF_TT}, v{V_A0}")
    a.i(f"s_mul_i32 s{S_HB}, s{C_W}, {NH*1024}")
    a.i(f"s_mul_i32 s{S_WB}, s{C_W}, {NH*16384}")
    a.i(f"s_mul_i32 s{S_QB}, s{C_W}, {NA*1024}")
    a.i(f"s_add_u32 s{S_QB}, s{S_QB}, {112*1024}")
    a.i(f"s_mul_i32 s{S_OB}, s{C_W}, {NA*16384}")
    a.i(f"s_mul_i32 s{S_KVB}, s{C_W}, {NA*KVT_HEAD}")
    a.i(f"s_add_u32 s{S_KVB}, s{S_KVB}, {KVT_OFF}")
    a.i(f"s_mul_i32 s{C_M0}, s{C_W}, {DW*2048}")
    SEP = cfg.sep and NW * (DW * 2048 + 64 * 272) <= 163840
    if SEP:
        a.i(f"s_add_u32 s{C_M0}, s{C_M0}, {NW*64*272}")
    a.i(f"s_mov_b32 s{C_EPS}, {EPS:#x}")
    a.i(f"v_lshrrev_b32 v{t}, 3, v{V_L}")
    a.i(f"v_and_b32 v{t+1}, 7, v{V_L}")
    a.i(f"v_bfe_u32 v{t+2}, v{V_L}, 4, 1")
    a.i(f"v_lshlrev_b32 v{t+2}, 2, v{t+2}")
    a.i(f"v_xor_b32 v{t+1}, v{t+1}, v{t+2}")
    a.i(f"v_lshlrev_b32 v{t}, 10, v{t}")
    a.i(f"v_lshl_add_u32 v{V_WD}, v{t+1}, 4, v{t}")
    a.i(f"s_lshl_b32 s{T0}, s{C_CB}, 7")
    a.i(f"v_add_u32 v{V_WD}, s{T0}, v{V_WD}")
    a.i("s_waitcnt lgkmcnt(0)")
    srd(a, C_WS, 22, WS_USED)
    srd(a, C_W2, 18, 1792 * 1024)
    srd(a, C_WO, 16, 512 * 1024)

    seq = []
    hq, aq = list(range(NH)), list(range(NA))
    NS = NH + NA
    gap = max((NS - 3) // NA, 2)
    for n in range(NS):
        if aq and n % gap == gap - 1 and n < NS - 2:
            seq.append(("a", aq.pop(0)))
        elif hq:
            seq.append(("h", hq.pop(0)))
        else:
            seq.append(("a", aq.pop(0)))
    assert not hq and not aq

    def issue_w(n):
        kind, k = seq[n]
        d = n % DW
        wb, w = (S_WB, C_W2) if kind == "h" else (S_OB, C_WO)
        for b in range(2):
            a.i(f"s_add_u32 m0, s{C_M0}, {d*2048 + b*1024}")
            a.i(f"s_add_u32 s{T2}, s{wb}, {k*16384 + b*8192}")
            a.vmem(f"s{n}", f"buffer_load_dwordx4 v{V_WD}, s[{w}:{w+3}], s{T2} offen lds")

    def issue(n):
        kind, k = seq[n]
        d = n % D
        ab = S_HB if kind == "h" else S_QB
        a.i(f"s_add_u32 s{T1}, s{ab}, {k*1024}")
        a.vmem(f"s{n}", f"buffer_load_dwordx4 a[{8*d}:{8*d+3}], v{V_A0}, s[{C_WS}:{C_WS+3}], s{T1} offen")
        a.vmem(f"s{n}", f"buffer_load_dwordx4 a[{8*d+4}:{8*d+7}], v{V_A1}, s[{C_WS}:{C_WS+3}], s{T1} offen")

    def kv_issue(k):
        a.i(f"s_add_u32 s{T3}, s{S_KVB}, {k*KVT_HEAD}")
        a.vmem(f"kv{k}", f"buffer_load_dwordx4 v[{VT}:{VT+3}], v{V_KVA}, s[{C_WS}:{C_WS+3}], s{T3} offen")
        a.vmem(f"kv{k}", f"buffer_load_dwordx4 v[{VT+4}:{VT+7}], v{V_KVA}, s[{C_WS}:{C_WS+3}], s{T3} offen offset:16")

    def tr_reads(n):
        d = n % DW
        wf = V_WF + 8 * (n % 2)
        for ct, va in enumerate((V_TR0, V_TR1)):
            for rd in range(2):
                r = wf + 4 * ct + 2 * rd
                a.dsop(f"t{n}", f"ds_read_b64_tr_b16 v[{r}:{r+1}], v{va} offset:{d*2048 + rd*1024}")

    for n in range(max(D, DW)):
        if n < DW:
            issue_w(n)
        if n < D:
            issue(n)
    srd(a, C_OUT, 20, 2048 * 1024)
    u = P
    a.i(f"v_lshrrev_b32 v{u}, 5, v{V_L}")
    a.i(f"v_bfe_u32 v{u+1}, v{V_L}, 2, 2")
    a.i(f"v_lshl_add_u32 v{u}, v{u}, 2, v{u+1}")
    a.i(f"v_bfe_u32 v{u+1}, v{V_L}, 4, 1")
    a.i(f"v_bfe_u32 v{u+2}, v{V_L}, 1, 1")
    a.i(f"v_lshl_add_u32 v{u+1}, v{u+1}, 1, v{u+2}")
    a.i(f"v_bfe_u32 v{u+2}, v{V_L}, 3, 1")
    a.i(f"v_lshlrev_b32 v{u+2}, 2, v{u+2}")
    a.i(f"v_xor_b32 v{u+1}, v{u+1}, v{u+2}")
    a.i(f"v_lshlrev_b32 v{u}, 7, v{u}")
    a.i(f"v_lshl_add_u32 v{u}, v{u+1}, 4, v{u}")
    a.i(f"v_and_b32 v{u+1}, 1, v{V_L}")
    a.i(f"v_lshl_add_u32 v{u}, v{u+1}, 3, v{u}")
    a.i(f"v_add_u32 v{V_TR0}, s{C_M0}, v{u}")
    a.i(f"v_xor_b32 v{u}, 64, v{u}")
    a.i(f"v_add_u32 v{V_TR1}, s{C_M0}, v{u}")
    a.i(f"v_and_b32 v{u}, 31, v{V_L}")
    a.i(f"v_lshrrev_b32 v{u+1}, 5, v{V_L}")
    a.i(f"v_lshl_add_u32 v{u+2}, v{u+1}, 4, v{u}")
    a.i(f"v_add_u32 v{u+1}, 32, v{u+1}")
    a.i(f"v_cmp_gt_u32 vcc, 16, v{u}")
    a.i(f"v_lshlrev_b32 v{V_G+2}, 3, v{u}")
    a.i(f"s_lshl_b32 s{T0}, s{C_RB}, 9")
    a.i(f"s_add_u32 s{T0}, s{T0}, {G_OFF}")
    a.i(f"v_cndmask_b32 v{u+2}, v{u+1}, v{u+2}, vcc")
    a.i(f"v_lshlrev_b32 v{V_KVA}, 5, v{u+2}")
    a.vmem("kv0", f"buffer_load_dword v{V_G}, v{V_G+2}, s[{C_WS}:{C_WS+3}], s{T0} offen")
    a.vmem("kv0", f"buffer_load_dword v{V_G+1}, v{V_G+2}, s[{C_WS}:{C_WS+3}], s{T0} offen offset:256")
    kv_issue(0)
    stamp(a, 1, 60)
    a.wait(vm=["s0"])
    stamp(a, 2, 60)
    tr_reads(0)
    nd_w = {}
    for n in range(NS):
        kind, k = seq[n]
        d = n % D
        if kind == "a":
            a.wait(vm=[f"kv{k}"])
            for j in range(4):
                a.i(f"v_cvt_pk_bf16_f32 v{V_KVF+j}, v{VT+2*j}, v{VT+2*j+1}")
            a.nop(2)
            for tt in range(2):
                b = A_ND + 16 * tt
                a.i(f"v_mfma_f32_32x32x16_bf16 a[{b}:{b+15}], v[{V_KVF}:{V_KVF+3}], a[{8*d+4*tt}:{8*d+4*tt+3}], 0")
                nd_w[tt] = a.n
            if k + 1 < NA:
                kv_issue(k + 1)
        if n + 1 < NS:
            a.wait(vm=[f"s{n+1}"])
            tr_reads(n + 1)
        if kind == "a":
            for tt in range(2):
                g_ = a.n - nd_w[tt]
                if g_ < 13:
                    a.nop(13 - g_)
                a.i(f"v_accvgpr_read_b32 v{V_RC+tt}, a{A_ND+16*tt+8}")
            for tt in range(2):
                a.i(f"v_add_f32 v{V_RC+tt}, s{C_EPS}, v{V_RC+tt}")
            for tt in range(2):
                a.i(f"v_rcp_f32 v{V_RC+tt}, v{V_RC+tt}")
            a.nop(1)
            for tt in range(2):
                a.i(f"v_mul_f32 v{V_RC+tt}, v{V_RC+tt}, v{V_G+tt}")
            for tt in range(2):
                for j in range(8):
                    a.i(f"v_accvgpr_read_b32 v{P+j}, a{A_ND+16*tt+j}")
                for j in range(8):
                    a.i(f"v_mul_f32 v{P+j}, v{P+j}, v{V_RC+tt}")
                for j in range(4):
                    a.i(f"v_cvt_pk_bf16_f32 v{V_OF+4*tt+j}, v{P+2*j}, v{P+2*j+1}")
            a.nop(2)
        a.wait(ds=[f"t{n}"])
        wf = V_WF + 8 * (n % 2)
        for ct in range(2):
            for tt in range(2):
                blk = ACC + 16 * (ct * 2 + tt)
                B = f"v[{V_OF+4*tt}:{V_OF+4*tt+3}]" if kind == "a" else f"a[{8*d+4*tt}:{8*d+4*tt+3}]"
                a.mfma(blk, f"v[{wf+4*ct}:{wf+4*ct+3}]", B, blk if n else None)
        if n + DW < NS:
            issue_w(n + DW)
        if n + D < NS:
            issue(n + D)
    stamp(a, 3, 60)
    PITCH = 272
    WSZ = 64 * PITCH
    TPW = 64 // NW
    a.i(f"v_lshrrev_b32 v{t+1}, 3, v{V_L}")
    a.i(f"s_mul_i32 s{T0}, s{C_W}, {TPW}")
    a.i(f"v_add_u32 v{t+1}, s{T0}, v{t+1}")
    a.i(f"v_lshlrev_b32 v{t+5}, 3, v{t+1}")
    a.i(f"s_lshl_b32 s{T0}, s{C_RB}, 9")
    a.i(f"s_add_u32 s{T0}, s{T0}, {G_OFF + 4}")
    for hf in range(TPW // 8):
        a.i(f"buffer_load_dword v{V_RC+hf}, v{t+5}, s[{C_WS}:{C_WS+3}], s{T0} offen offset:{64*hf}")
    a.i(f"v_and_b32 v{t}, 31, v{V_L}")
    a.i(f"v_lshrrev_b32 v{t+2}, 5, v{V_L}")
    a.i(f"v_mul_u32_u24 v{t}, {PITCH}, v{t}")
    a.i(f"v_lshl_add_u32 v{t}, v{t+2}, 4, v{t}")
    a.i(f"s_mul_i32 s{T0}, s{C_W}, {WSZ}")
    a.i(f"v_add_u32 v{t}, s{T0}, v{t}")
    a.i(f"v_and_b32 v{t+2}, 7, v{V_L}")
    a.i(f"v_mul_u32_u24 v{t+3}, {PITCH}, v{t+1}")
    a.i(f"v_lshl_add_u32 v{t+3}, v{t+2}, 5, v{t+3}")
    a.i(f"v_add_u32 v{t+6}, {3*WSZ}, v{t+3}")
    a.i(f"v_add_u32 v{t+7}, {6*WSZ}, v{t+3}")
    a.i(f"v_lshlrev_b32 v{t+4}, 10, v{t+1}")
    a.i(f"v_lshl_add_u32 v{t+4}, v{t+2}, 4, v{t+4}")
    a.i(f"s_lshl_b32 s{T0}, s{C_RB}, 16")
    a.i(f"s_lshl_b32 s{T1}, s{C_CB}, 7")
    a.i(f"s_add_u32 s{T0}, s{T0}, s{T1}")
    if not SEP:
        a.i("s_waitcnt lgkmcnt(0)")
        a.i("s_barrier")
    for blk in range(4):
        a.need_acc(ACC + 16 * blk, 16)
    for blk in range(4):
        ct, tt = blk >> 1, blk & 1
        for q in range(4):
            r = ACC + 16 * blk + 4 * q
            off = tt * 32 * PITCH + (ct * 32 + 8 * q) * 4
            a.i(f"ds_write_b128 v{t}, v[{r}:{r+3}] offset:{off}")
    a.i("s_waitcnt lgkmcnt(0)")
    a.i("s_barrier")
    R = ACC
    for hf in range(TPW // 8):
        for w in range(NW):
            for p in range(2):
                r = R + hf * 32 + w * 8 + p * 4
                va = (t + 3, t + 6, t + 7)[w // 3]
                a.i(f"ds_read_b128 v[{r}:{r+3}], v{va} offset:{(w % 3) * WSZ + hf * 8 * PITCH + p * 16}")
    a.i("s_waitcnt lgkmcnt(0) vmcnt(0)")
    for hf in range(TPW // 8):
        b = R + hf * 32
        step = 8
        while step < NW * 8:
            for w in range(0, NW * 8, 2 * step):
                for j in range(8):
                    a.i(f"v_add_f32 v{b+w+j}, v{b+w+j}, v{b+w+step+j}")
            step *= 2
        for j in range(8):
            a.i(f"v_mul_f32 v{b+j}, v{b+j}, v{V_RC+hf}")
        for j in range(4):
            a.i(f"v_cvt_pk_bf16_f32 v{b+8+j}, v{b+2*j}, v{b+2*j+1}")
        if hf:
            a.i(f"s_add_u32 s{T0}, s{T0}, 8192")
        a.i(f"buffer_store_dwordx4 v[{b+8}:{b+11}], v{t+4}, s[{C_OUT}:{C_OUT+3}], s{T0} offen {cfg.out_aux}")
    stamp(a, 4, 60)
    stamp_flush(a, 1, 6, C_WS, 60)
    a.label("K2_done")
    a.i("s_endpgm")
    lds = NW * (DW * 2048 + WSZ) if SEP else max(NW * DW * 2048, NW * WSZ)
    return a.text(), lds, NW


def kd(name, nv, accum, nsgpr=102):
    return f""".p2align 6
.amdhsa_kernel {name}
  .amdhsa_next_free_vgpr {nv}
  .amdhsa_next_free_sgpr {nsgpr}
  .amdhsa_accum_offset {accum}
  .amdhsa_group_segment_fixed_size 0
  .amdhsa_kernarg_size 88
  .amdhsa_user_sgpr_count 2
  .amdhsa_user_sgpr_kernarg_segment_ptr 1
  .amdhsa_system_sgpr_workgroup_id_x 1
  .amdhsa_float_denorm_mode_32 3
.end_amdhsa_kernel"""


def build(c1=None, c2=None):
    c1 = c1 or K1Cfg()
    c2 = c2 or K2Cfg()
    k1 = gen_k1(c1)
    k2, lds2, nw2 = gen_k2(c2)
    hdr = f"""; gated_mix: linear attention block + SwiGLU block, gated mix.  Generated by gen/gen8.py
; @launch kernel=k1_kernel grid=(256,1,1) block=(512,1,1) lds={K1_LDS}
; @launch kernel=k2_kernel grid=(256,1,1) block=({nw2*64},1,1) lds={lds2}
.amdgcn_target "amdgcn-amd-amdhsa--gfx950"
.text
"""
    tail = """
.p2align 8
CODE_END:
    s_endpgm
.section .rodata,"a"
"""
    return hdr + k1 + "\n" + k2 + tail + kd("k1_kernel", 256, 128) + "\n" + kd("k2_kernel", 224, 128) + "\n"


if __name__ == "__main__":
    if "--diag" in sys.argv:
        DIAG = True
        sys.argv.remove("--diag")
    c1, c2 = K1Cfg(), K2Cfg()
    for arg in list(sys.argv[1:]):
        if "=" in arg:
            k, v = arg.split("=")
            c = c2 if k.startswith("k2_") else c1
            k = k[3:] if k.startswith("k2_") else k
            setattr(c, k, v if k.endswith("_aux") else int(v))
            sys.argv.remove(arg)
    KROT, NM, SHIFT, TOUCHX = c1.krot, c1.nm, c1.shift, c1.touch_x
    out = sys.argv[1] if len(sys.argv) > 1 else f"cdna_kernels/{NAME}.s"
    open(out, "w").write(build(c1, c2))
    print("wrote", out)
```

```python
import sys

NAME = "gated_mix__linear_attn_block__glu_gated_swiglu__prompt"

AF_OFF = 0
AF_TT = 144 * 1024
AF_SIZE = 64 * AF_TT
KVT_OFF = AF_SIZE
KVT_HEAD = 1152
KVT_SIZE = 32 * KVT_HEAD
G_OFF = KVT_OFF + KVT_SIZE
G_SIZE = 2048 * 8
WS_USED = G_OFF + G_SIZE

STAMP_OFF = 16 << 20
DIAG = False

LOG2E = 0x3FB8AA3B
NLOG2E = 0xBFB8AA3B
EPS = 0x358637BD


class Asm:
    def __init__(self):
        self.L = []
        self.n = 0
        self.vm = []
        self.vm_done = 0
        self.ds = []
        self.ds_done = 0
        self.mfma_w = {}

    def raw(self, s):
        self.L.append(s)

    def i(self, s):
        self.L.append("    " + s)
        self.n += 1

    def label(self, s):
        self.L.append(s + ":")

    def vmem(self, tag, s):
        self.i(s)
        self.vm.append(tag)

    def dsop(self, tag, s):
        self.i(s)
        self.ds.append(tag)

    def _need(self, lst, tags):
        last = -1
        for k, t in enumerate(lst):
            if t in tags:
                last = k
        return last

    def wait(self, vm=(), ds=(), vm_all=False, ds_all=False):
        parts = []
        if vm_all:
            lv = len(self.vm) - 1
        else:
            lv = self._need(self.vm, set(vm)) if vm else -1
        if lv >= self.vm_done:
            n = len(self.vm) - 1 - lv
            assert n <= 63, n
            parts.append(f"vmcnt({n})")
            self.vm_done = lv + 1
        if ds_all:
            ld = len(self.ds) - 1
        else:
            ld = self._need(self.ds, set(ds)) if ds else -1
        if ld >= self.ds_done:
            n = len(self.ds) - 1 - ld
            if n > 15:
                n = 15
                ld = len(self.ds) - 1 - 15
            parts.append(f"lgkmcnt({n})")
            self.ds_done = ld + 1
        if parts:
            self.i("s_waitcnt " + " ".join(parts))

    def nop(self, k):
        while k > 0:
            c = min(k, 16)
            self.L.append(f"    s_nop {c-1}")
            self.n += c
            k -= c

    def mfma(self, d, a, b, c):
        cs = "0" if c is None else f"v[{c}:{c+15}]"
        self.i(f"v_mfma_f32_32x32x16_bf16 v[{d}:{d+15}], {a}, {b}, {cs}")
        self.mfma_w[d] = self.n

    def need_acc(self, d, dist=13):
        if d in self.mfma_w:
            gap = self.n - self.mfma_w[d]
            if gap < dist:
                self.nop(dist - gap)

    def text(self):
        return "\n".join(self.L)


def stamp(a, k, base=16):
    if DIAG:
        a.i(f"s_memrealtime s[{base+2*k}:{base+2*k+1}]")


def stamp_flush(a, kern, nst, ws_ptr_srd, base=16, t0=38):
    if not DIAG:
        return
    a.i("s_waitcnt vmcnt(0)")
    stamp(a, nst - 1, base)
    a.i("s_waitcnt lgkmcnt(0)")
    a.i("v_cmp_eq_u32 vcc, 0, v0")
    a.i("s_and_saveexec_b64 s[94:95], vcc")
    a.i(f"s_cbranch_execz STAMP_skip_{a.n}")
    lbl = f"STAMP_skip_{a.n-1}"
    a.L[-1] = f"    s_cbranch_execz {lbl}"
    a.i(f"s_mov_b32 s{ws_ptr_srd+2}, {STAMP_OFF + 65536}")
    a.i(f"s_lshl_b32 s3, s2, 6")
    a.i(f"s_add_u32 s3, s3, {STAMP_OFF + kern*16384}")
    a.i("v_mov_b32 v2, 0")
    for k in range(nst):
        src = t0 if k == 0 else base + 2 * k
        a.i(f"v_mov_b32 v4, s{src}")
        a.i(f"v_mov_b32 v5, s{src+1}")
        a.i(f"buffer_store_dwordx2 v[4:5], v2, s[{ws_ptr_srd}:{ws_ptr_srd+3}], s3 offen offset:{8*k}")
        a.i("s_nop 1")
    a.label(lbl)


def srd(a, s, ptr, size):
    a.i(f"s_mov_b32 s{s}, s{ptr}")
    a.i(f"s_and_b32 s{s+1}, s{ptr+1}, 0xffff")
    a.i(f"s_mov_b32 s{s+2}, {size}")
    a.i(f"s_mov_b32 s{s+3}, 0x20000")


class K1Cfg:
    store_aux = "sc1"
    fill_per_gap = 28
    ahead = 5
    pf_w2 = True
    krot = 1
    nm = 2
    fill_last = 20
    pf_mode = 1
    pf_round = 1
    shift = 1
    touch_x = 1


S_X, S_A, S_B, S_WS, S_GW, S_DBG, S_W2, S_WO = 40, 44, 48, 52, 56, 60, 64, 68
S_XCD, S_IDX, S_WAVE, S_TILE0, S_PITCH, S_COLA, S_COLB, S_UNIT = 4, 5, 6, 7, 8, 9, 10, 11
S_T0, S_T1, S_T2, S_T3 = 12, 13, 14, 15
S_XKF = 72
S_WK = 80
S_M0X = 88
S_M0W = 89
S_ST = 90
S_C1, S_C2, S_C3 = 91, 92, 93
S_MASK = 94
S_TMP = 96
S_P = 97
S_SAVE = 98
S_PR, S_CT = 100, 101
S_XKP = 30
S_LB = 34

V_LANE = 1
V_WA, V_WB, V_XD = 2, 3, 4
V_WT = 5
V_STO = 6
V_ZS = 7
V_XF = 8
V_T = 12
V_XFR = 20
V_E = 44
V_KV = 48
V_ACC = 64

SLOT = 40960
BUF = [0, SLOT, 2 * SLOT, 3 * SLOT]
K1_LDS = 3 * SLOT + 32768


def dma_stage_ops(i, nm):
    slot = BUF[i % 3]
    ops = []
    for seg, (va, sr) in enumerate(((V_WA, S_A), (V_WB, S_B))):
        ops.append([("s", None, f"s_add_u32 m0, s{S_M0W}, {slot + seg*8192}"),
                    ("s", None, "s_nop 0"),
                    ("v", f"S{i}", f"buffer_load_dwordx4 v{va}, s[{sr}:{sr+3}], s{S_WK+i} offen lds")])
    for m in range(nm):
        ops.append([("s", None, f"s_add_u32 m0, s{S_M0X}, {slot + 16384 + m*8192}"),
                    ("s", None, f"s_add_u32 s{S_TMP}, s{S_TBP}, {m*65536}"),
                    ("s", None, f"s_and_b32 s{S_TMP}, s{S_TMP}, 0x1fffff"),
                    ("s", None, f"s_add_u32 s{S_TMP}, s{S_TMP}, s{S_XKF+i}"),
                    ("v", f"S{i}", f"buffer_load_dwordx4 v{V_XD}, s[{S_X}:{S_X+3}], s{S_TMP} offen lds")])
    return ops


def dma_tile_ops(lj, tile, buf):
    ops = []
    for m in range(4):
        ops.append([("s", None, f"s_add_u32 m0, s{S_M0X}, {buf + m*8192}"),
                    ("s", None, f"s_add_u32 s{S_TMP}, s{S_TB0}, {tile*32768}"),
                    ("s", None, f"s_and_b32 s{S_TMP}, s{S_TMP}, 0x1fffff"),
                    ("s", None, f"s_add_u32 s{S_TMP}, s{S_TMP}, s{S_XKP+m}"),
                    ("v", f"L{lj}", f"buffer_load_dwordx4 v{V_XD}, s[{S_X}:{S_X+3}], s{S_TMP} offen lds")])
    return ops


def emit_group(a, grp):
    for kind, tag, text in grp:
        if kind == "v":
            a.vmem(tag, text)
        else:
            a.i(text)


KROT = 1
NM = 3
SHIFT = 1
TOUCHX = 1
S_TBP, S_TB0, S_TP = 9, 10, 8
S_KR = 39


def k1_prologue(a):
    a.i("s_cmp_ge_u32 s2, 256")
    a.i("s_cbranch_scc1 K1_done")
    if DIAG:
        a.i("s_memrealtime s[38:39]")
    a.i("s_load_dwordx16 s[16:31], s[0:1], 0")
    a.i("s_load_dwordx4 s[32:35], s[0:1], 64")
    a.i("s_load_dwordx2 s[36:37], s[0:1], 80")
    a.i("s_getpc_b64 s[98:99]")
    a.label("K1_pc")
    a.i(f"s_and_b32 s{S_XCD}, s2, 7")
    a.i(f"s_lshr_b32 s{S_IDX}, s2, 3")
    a.i(f"v_and_b32 v{V_LANE}, 63, v0")
    a.i(f"v_lshrrev_b32 v{V_T}, 6, v0")
    a.i(f"s_lshl_b32 s{S_T0}, s{S_IDX}, 11")
    a.i(f"v_readfirstlane_b32 s{S_WAVE}, v{V_T}")
    a.i(f"v_lshlrev_b32 v{V_T+1}, 7, v0")
    a.i(f"v_add_u32 v{V_T+1}, s{S_T0}, v{V_T+1}")
    a.i(f"v_min_u32 v{V_T+1}, CODE_END-K1_pc-4, v{V_T+1}")
    a.i("v_cmp_gt_u32 vcc, 16, v0")
    a.i("s_and_saveexec_b64 s[94:95], vcc")
    a.i("s_cbranch_execz K1_nopf")
    a.i(f"global_load_dword v{V_E}, v{V_T+1}, s[98:99]")
    a.label("K1_nopf")
    a.i("s_mov_b64 exec, s[94:95]")
    a.i(f"s_lshr_b32 s{S_PR}, s{S_WAVE}, 2")
    a.i(f"s_and_b32 s{S_CT}, s{S_WAVE}, 3")
    a.i(f"s_mul_i32 s{S_T0}, s{S_IDX}, 43")
    a.i(f"s_lshr_b32 s{S_T0}, s{S_T0}, 8")
    a.i(f"s_mul_i32 s{S_T1}, s{S_T0}, 6")
    a.i(f"s_sub_u32 s{S_P}, s{S_IDX}, s{S_T1}")
    a.i(f"s_lshl_b32 s{S_T0}, s{S_T0}, 3")
    a.i(f"s_add_u32 s{S_UNIT}, s{S_T0}, s{S_XCD}")
    a.i(f"s_mul_i32 s{S_TILE0}, s{S_P}, 11")
    a.i(f"s_max_u32 s{S_T0}, s{S_P}, 4")
    a.i(f"s_sub_u32 s{S_T0}, s{S_T0}, 4")
    a.i(f"s_sub_u32 s{S_TILE0}, s{S_TILE0}, s{S_T0}")
    a.i(f"s_lshl_b32 s{S_COLA}, s{S_UNIT}, 7")
    a.i(f"s_mov_b32 s{S_COLB}, s{S_COLA}")
    a.i(f"s_sub_u32 s{S_T0}, s{S_UNIT}, 28")
    a.i(f"s_lshl_b32 s{S_T0}, s{S_T0}, 8")
    a.i(f"s_add_u32 s{S_T1}, s{S_T0}, 128")
    a.i(f"s_cmp_ge_u32 s{S_UNIT}, 28")
    a.i(f"s_cselect_b32 s{S_COLA}, s{S_T0}, s{S_COLA}")
    a.i(f"s_cselect_b32 s{S_COLB}, s{S_T1}, s{S_COLB}")
    a.i("s_cselect_b32 s3, 1, 0")
    a.i(f"s_lshl_b32 s{S_T0}, s{S_XCD}, 7")
    a.i(f"s_add_u32 s{S_T1}, s{S_T0}, 2048")
    a.i(f"s_add_u32 s{S_T0}, s{S_T0}, 1024")
    a.i(f"s_sub_u32 s{S_T2}, s{S_IDX}, 24")
    a.i(f"s_lshl_b32 s{S_T3}, s{S_T2}, 3")
    a.i(f"s_cmp_ge_u32 s{S_IDX}, 24")
    a.i(f"s_cselect_b32 s{S_COLA}, s{S_T0}, s{S_COLA}")
    a.i(f"s_cselect_b32 s{S_COLB}, s{S_T1}, s{S_COLB}")
    a.i(f"s_cselect_b32 s{S_P}, s{S_T2}, s{S_P}")
    a.i(f"s_cselect_b32 s{S_TILE0}, s{S_T3}, s{S_TILE0}")
    a.i("s_cselect_b32 s3, 2, s3")
    a.i("s_cmp_eq_u32 s3, 0")
    a.i(f"s_movk_i32 s{S_T0}, 3584")
    a.i(f"s_movk_i32 s{S_T1}, 3072")
    a.i(f"s_cselect_b32 s{S_PITCH}, s{S_T0}, s{S_T1}")
    if SHIFT:
        a.i(f"s_mul_i32 s{S_T2}, s{S_XCD}, 11")
        a.i(f"s_lshr_b32 s{S_T2}, s{S_T2}, 3")
        a.i(f"s_add_u32 s{S_TILE0}, s{S_TILE0}, s{S_T2}")
    a.i(f"s_lshl_b32 s{S_T3}, s{S_PITCH}, 6")
    if KROT:
        a.i(f"s_add_u32 s{S_C1}, s{S_XCD}, s{S_IDX}")
    else:
        a.i(f"s_mov_b32 s{S_C1}, s{S_XCD}")
    for i in range(8):
        a.i(f"s_add_u32 s{S_T0}, s{S_C1}, {i}")
        a.i(f"s_and_b32 s{S_T0}, s{S_T0}, 7")
        a.i(f"s_lshl_b32 s{S_XKF+i}, s{S_T0}, 7")
        a.i(f"s_mul_i32 s{S_WK+i}, s{S_T0}, s{S_T3}")
    a.i(f"s_lshl_b32 s{S_M0W}, s{S_WAVE}, 10")
    a.i(f"s_lshl_b32 s{S_M0X}, s{S_PR}, 12")
    a.i(f"s_lshl_b32 s{S_T0}, s{S_CT}, 10")
    a.i(f"s_add_u32 s{S_M0X}, s{S_M0X}, s{S_T0}")
    t = V_T
    a.i(f"v_lshrrev_b32 v{t}, 3, v{V_LANE}")
    a.i(f"v_and_b32 v{t+1}, 7, v{V_LANE}")
    a.i(f"v_bfe_u32 v{t+2}, v{V_LANE}, 4, 1")
    a.i(f"v_lshlrev_b32 v{t+2}, 1, v{t+2}")
    a.i(f"v_xor_b32 v{t+3}, v{t+1}, v{t+2}")
    a.i(f"v_xor_b32 v{t+4}, 4, v{t+3}")
    a.i(f"s_lshl_b32 s{S_T0}, s{S_WAVE}, 3")
    a.i(f"v_add_u32 v{t+5}, s{S_T0}, v{t}")
    a.i(f"v_mul_lo_u32 v{t+5}, v{t+5}, s{S_PITCH}")
    a.i(f"v_lshl_add_u32 v{V_WA}, v{t+3}, 4, v{t+5}")
    a.i(f"v_add_u32 v{V_WA}, s{S_COLA}, v{V_WA}")
    a.i(f"v_lshl_add_u32 v{V_WB}, v{t+4}, 4, v{t+5}")
    a.i(f"v_add_u32 v{V_WB}, s{S_COLB}, v{V_WB}")
    a.i(f"s_lshl_b32 s{S_T0}, s{S_CT}, 3")
    a.i(f"v_add_u32 v{t+5}, s{S_T0}, v{t}")
    a.i(f"v_bfe_u32 v{t+6}, v{t+5}, 1, 3")
    a.i(f"v_xor_b32 v{t+6}, v{t+6}, v{t+1}")
    a.i(f"v_lshlrev_b32 v{t+5}, 10, v{t+5}")
    a.i(f"v_lshl_add_u32 v{V_XD}, v{t+6}, 4, v{t+5}")
    a.i("s_waitcnt lgkmcnt(0)")
    a.i("s_cmp_eq_u32 s3, 0")
    a.i(f"s_cselect_b32 s{S_A}, s24, s18")
    a.i(f"s_cselect_b32 s{S_A+1}, s25, s19")
    a.i(f"s_cselect_b32 s{S_B}, s26, s18")
    a.i(f"s_cselect_b32 s{S_B+1}, s27, s19")
    a.i(f"s_lshl_b32 s{S_A+2}, s{S_PITCH}, 9")
    a.i(f"s_and_b32 s{S_A+1}, s{S_A+1}, 0xffff")
    a.i(f"s_and_b32 s{S_B+1}, s{S_B+1}, 0xffff")
    a.i(f"s_mov_b32 s{S_B+2}, s{S_A+2}")
    a.i(f"s_mov_b32 s{S_A+3}, 0x20000")
    a.i(f"s_mov_b32 s{S_B+3}, 0x20000")
    srd(a, S_X, 16, 2048 * 1024)
    a.i(f"s_add_u32 s{S_TP}, s{S_TILE0}, s{S_PR}")
    a.i(f"s_lshl_b32 s{S_TBP}, s{S_TP}, 15")
    a.i(f"s_lshl_b32 s{S_TB0}, s{S_TILE0}, 15")
    for i in range(3):
        ops = dma_stage_ops(i, 3)
        for grp in ops[:-1]:
            emit_group(a, grp)
        if NM == 3:
            a.i("s_cmp_eq_u32 s3, 2")
            a.i(f"s_cbranch_scc1 K1_skip{i}")
            emit_group(a, ops[-1])
            a.label(f"K1_skip{i}")
    srd(a, S_WS, 36, WS_USED)
    srd(a, S_GW, 30, 1024)
    srd(a, S_DBG, 34, 256)
    srd(a, S_W2, 28, 1792 * 1024)
    srd(a, S_WO, 20, 512 * 1024)
    if TOUCHX:
        a.i(f"s_lshl_b32 s{S_T0}, s2, 3")
        a.i(f"s_add_u32 s{S_T0}, s{S_T0}, s{S_WAVE}")
        a.i(f"s_lshl_b32 s{S_T0}, s{S_T0}, 10")
        a.i(f"v_lshlrev_b32 v{V_E+1}, 7, v{V_LANE}")
        a.i("s_mov_b64 exec, 0xff")
        a.i(f"buffer_load_dword v{V_E+2}, v{V_E+1}, s[{S_X}:{S_X+3}], s{S_T0} offen")
        a.i("s_mov_b64 exec, -1")
    for m in range(4):
        a.i(f"s_add_u32 s{S_T0}, s{S_C1}, s{S_PR}")
        a.i(f"s_add_u32 s{S_T0}, s{S_T0}, {2*m}")
        a.i(f"s_and_b32 s{S_T0}, s{S_T0}, 7")
        a.i(f"s_lshl_b32 s{S_XKP+m}, s{S_T0}, 7")
    a.i(f"s_mov_b32 s{S_C1}, {LOG2E:#x}")
    a.i(f"s_mov_b32 s{S_C2}, {NLOG2E:#x}")
    a.i(f"s_mov_b32 s{S_C3}, {EPS:#x}")
    a.i(f"v_lshlrev_b32 v{V_STO}, 4, v{V_LANE}")
    a.i(f"v_and_b32 v{t}, 31, v{V_LANE}")
    a.i(f"v_lshrrev_b32 v{t+1}, 5, v{V_LANE}")
    a.i(f"v_bfe_u32 v{t+2}, v{t}, 1, 3")
    a.i(f"v_xor_b32 v{t+2}, v{t+2}, v{t+1}")
    a.i(f"v_lshlrev_b32 v{t}, 7, v{t}")
    a.i(f"s_lshl_b32 s{S_T0}, s{S_PR}, 12")
    a.i(f"v_add_u32 v{t}, s{S_T0}, v{t}")
    for s in range(4):
        a.i(f"v_xor_b32 v{t+3}, {2*s}, v{t+2}")
        a.i(f"v_lshl_add_u32 v{V_XF+s}, v{t+3}, 4, v{t}")
    a.i(f"v_bfe_u32 v{t}, v{V_LANE}, 4, 1")
    a.i(f"v_lshrrev_b32 v{t+1}, 5, v{V_LANE}")
    a.i(f"v_bfe_u32 v{t+2}, v{V_LANE}, 2, 2")
    a.i(f"v_bfe_u32 v{t+3}, v{V_LANE}, 1, 1")
    a.i(f"s_lshl_b32 s{S_T0}, s{S_CT}, 1")
    a.i(f"v_add_u32 v{t+3}, s{S_T0}, v{t+3}")
    a.i(f"v_bfe_u32 v{t+4}, v{V_LANE}, 3, 1")
    a.i(f"v_lshlrev_b32 v{t+4}, 1, v{t+4}")
    a.i(f"v_lshl_add_u32 v{t+4}, v{t}, 2, v{t+4}")
    a.i(f"v_xor_b32 v{t+3}, v{t+3}, v{t+4}")
    a.i(f"v_lshlrev_b32 v{t+5}, 13, v{t}")
    a.i(f"v_lshl_add_u32 v{t+5}, v{t+1}, 10, v{t+5}")
    a.i(f"v_lshl_add_u32 v{t+5}, v{t+2}, 7, v{t+5}")
    a.i(f"v_lshl_add_u32 v{t+5}, v{t+3}, 4, v{t+5}")
    a.i(f"v_and_b32 v{t+6}, 1, v{V_LANE}")
    a.i(f"v_lshl_add_u32 v{V_WT}, v{t+6}, 3, v{t+5}")
    cur0, cur1 = BUF[1], BUF[1] + 4096
    b0 = [BUF[3], BUF[0], BUF[3], BUF[0]]
    b1 = [BUF[2], BUF[1], BUF[2], BUF[1]]
    a.i(f"s_cmp_eq_u32 s{S_PR}, 0")
    for r in range(4):
        d0 = (b0[r] - cur0) & 0xffffffff
        d1 = (b1[r] - cur1) & 0xffffffff
        cur0, cur1 = b0[r], b1[r]
        a.i(f"s_mov_b32 s{S_T0}, {d0:#x}")
        a.i(f"s_mov_b32 s{S_T1}, {d1:#x}")
        a.i(f"s_cselect_b32 s{S_LB+r}, s{S_T0}, s{S_T1}")


def mk_ops(chk_blks):
    ops = []

    def V(cost, s, chk=False):
        def f(a, s=s, chk=chk):
            if chk:
                for b in chk_blks:
                    a.need_acc(b)
            a.i(s)
        ops.append((cost, f))
    return ops, V


def epi_mlp(cfg, acc, m):
    ops, V = mk_ops([acc])
    for r in range(8):
        V(4, f"v_mul_f32 v{acc+8+r}, v{acc+r}, v{acc+8+r}", chk=True)
    for r in range(8):
        V(4, f"v_mul_f32 v{acc+r}, s{S_C2}, v{acc+r}")
    for r in range(8):
        V(8, f"v_exp_f32 v{acc+r}, v{acc+r}")
    for r in range(8):
        V(4, f"v_add_f32 v{acc+r}, 1.0, v{acc+r}")
    for r in range(8):
        V(8, f"v_rcp_f32 v{acc+r}, v{acc+r}")
    for r in range(8):
        V(4, f"v_mul_f32 v{acc+8+r}, v{acc+r}, v{acc+8+r}")
    for j in range(4):
        V(4, f"v_cvt_pk_bf16_f32 v{acc+j}, v{acc+8+2*j}, v{acc+9+2*j}")

    def st(a):
        a.i(f"s_add_u32 s{S_TMP}, s{S_TP}, {2*m}")
        a.i(f"s_and_b32 s{S_TMP}, s{S_TMP}, 63")
        a.i(f"s_mul_i32 s{S_TMP}, s{S_TMP}, {AF_TT}")
        a.i(f"s_add_u32 s{S_TMP}, s{S_TMP}, s{S_ST}")
        a.vmem("st", f"buffer_store_dwordx4 v[{acc}:{acc+3}], v{V_STO}, s[{S_WS}:{S_WS+3}], s{S_TMP} offen {cfg.store_aux}")
        a.nop(1)
    ops.append((12, st))
    return ops


def phi_ops(V, regs, tmp):
    for k, r in enumerate(regs):
        V(4, f"v_mul_f32 v{tmp+k}, s{S_C1}, v{r}", chk=True)
    for k, r in enumerate(regs):
        V(8, f"v_exp_f32_e64 v{tmp+k}, v{tmp+k} clamp")
    for k, r in enumerate(regs):
        V(4, f"v_max_f32 v{r}, 0, v{r}")
    for k, r in enumerate(regs):
        V(4, f"v_add_f32 v{r}, v{r}, v{tmp+k}")
    for k, r in enumerate(regs):
        V(4, f"v_add_f32 v{r}, s{S_C3}, v{r}")


def epi_q(cfg, acc, m):
    ops, V = mk_ops([acc])
    for half in range(2):
        regs = [acc + 8 * half + r for r in range(8)]
        phi_ops(V, regs, V_T)
        o = acc + 8 * half
        for j in range(4):
            V(4, f"v_cvt_pk_bf16_f32 v{o+j}, v{regs[2*j]}, v{regs[2*j+1]}")

        def st(a, o=o, half=half):
            a.i(f"s_add_u32 s{S_TMP}, s{S_TP}, {2*m}")
            a.i(f"s_and_b32 s{S_TMP}, s{S_TMP}, 63")
            a.i(f"s_mul_i32 s{S_TMP}, s{S_TMP}, {AF_TT}")
            a.i(f"s_add_u32 s{S_TMP}, s{S_TMP}, s{S_ST}")
            if half:
                a.i(f"s_add_u32 s{S_TMP}, s{S_TMP}, 4096")
            a.vmem("st", f"buffer_store_dwordx4 v[{o}:{o+3}], v{V_STO}, s[{S_WS}:{S_WS+3}], s{S_TMP} offen {cfg.store_aux}")
            a.nop(1)
        ops.append((12, st))
    return ops


def epi_kv(cfg, acc0, acc1, first):
    ops, V = mk_ops([acc0, acc1])
    for r in range(16):
        V(4, f"v_permlane16_swap_b32 v{acc0+r}, v{acc1+r}", chk=True)
    for half in range(2):
        phi_ops(V, [acc0 + 8 * half + r for r in range(8)], V_T)
    for j in range(8):
        V(4, f"v_cvt_pk_bf16_f32 v{acc1+j}, v{acc1+2*j}, v{acc1+2*j+1}")
    for r in range(16):
        if first and r == 0:
            V(4, f"v_mov_b32 v{V_ZS}, v{acc0}")
        else:
            V(4, f"v_add_f32 v{V_ZS}, v{V_ZS}, v{acc0+r}")
    for j in range(8):
        V(4, f"v_cvt_pk_bf16_f32 v{acc0+j}, v{acc0+2*j}, v{acc0+2*j+1}")

    def mm(a):
        a.nop(2)
        a.mfma(V_KV, f"v[{acc0}:{acc0+3}]", f"v[{acc1}:{acc1+3}]", None if first else V_KV)
        a.mfma(V_KV, f"v[{acc0+4}:{acc0+7}]", f"v[{acc1+4}:{acc1+7}]", V_KV)
    ops.append((24, mm))
    return ops


class K1State:
    pass


def k1_first_pass(a, cfg, kv):
    nm = 2 if kv else NM
    nl = 4 if kv else 11 - 2 * NM
    n1 = 2 * nm
    acc_blk = [V_ACC + 16 * k for k in range(4)]
    lbuf = [BUF[3], BUF[2], BUF[0], BUF[1], BUF[3], BUF[2], BUF[0]]
    a.vm, a.vm_done, a.ds, a.ds_done, a.mfma_w = ["pf"], 0, [], 0, {}
    for i in range(3):
        for grp in dma_stage_ops(i, nm):
            a.vm.append(f"S{i}")

    def opnds(q, xf):
        w = f"a[{4*q}:{4*q+3}]"
        x = f"v[{xf}:{xf+3}]"
        return (x, w) if kv else (w, x)

    def fp_reads(n):
        i, s = divmod(n, 4)
        L = []
        for rd in range(2):
            L.append((f"w{n}", f"ds_read_b64_tr_b16 a[{4*n+2*rd}:{4*n+2*rd+1}], v{V_WT} offset:{s*2048 + rd*512}"))
        for m in range(nm):
            xf = V_XFR + (n % 2) * 12 + 4 * m
            L.append((f"x{n}_{m}", f"ds_read_b128 v[{xf}:{xf+3}], v{V_XF+s} offset:{16384 + m*8192}"))
        return L

    st = K1State()
    st.nm, st.nl, st.n1, st.acc_blk, st.lbuf, st.opnds, st.kv = nm, nl, n1, acc_blk, lbuf, opnds, kv
    stamp(a, 1)
    a.wait(vm=["S0"])
    a.i("s_barrier")
    stamp(a, 2)
    for tag, text in fp_reads(0):
        a.dsop(tag, text)
    dma_q = []
    for n in range(32):
        i, s = divmod(n, 4)
        pre = []
        if s == 3:
            a.wait(ds_all=True)
            tgs = [f"S{i+1}"] if i < 7 else ["L0", "L1"]
            for tg in tgs:
                assert not any(op[1] == tg for g in dma_q for op in g), tg
                assert tg in a.vm
            a.wait(vm=tgs)
            a.i("s_barrier")
            if kv and i == 2:
                a.i(f"s_or_b32 s{S_T0}, s{S_P}, s{S_PR}")
                a.i(f"s_cmp_lg_u32 s{S_T0}, 0")
                a.i("s_cbranch_scc1 K1_kv_noflag")
                a.i("s_mov_b64 exec, 1")
                a.i(f"v_mov_b32 v{V_T}, 1")
                a.i(f"v_mov_b32 v{V_T+1}, 0")
                a.i(f"buffer_store_dword v{V_T}, v{V_T+1}, s[{S_DBG}:{S_DBG+3}], s{S_UNIT} offen sc1")
                a.i("s_mov_b64 exec, -1")
                a.label("K1_kv_noflag")
            if i + 3 <= 7:
                dma_q += dma_stage_ops(i + 3, nm)
            if i == 4:
                dma_q += dma_tile_ops(0, n1, lbuf[0])
            if i >= 5:
                dma_q += dma_tile_ops(i - 4, n1 + i - 4, lbuf[i - 4])
            if i < 7:
                d = (BUF[(i + 1) % 3] - BUF[i % 3]) & 0xffffffff
                pre = [f"v_add_u32 v{r}, {d:#x}, v{r}" for r in (V_WT, V_XF, V_XF + 1, V_XF + 2, V_XF + 3)]
            else:
                pre = [f"v_add_u32 v{r}, s{S_LB}, v{r}" for r in (V_XF, V_XF + 1, V_XF + 2, V_XF + 3)]
        for p in pre:
            a.i(p)
        if n < 31:
            fill = fp_reads(n + 1)
        else:
            fill = [lp_read(0, q) for q in range(3)]
        for m in range(nm):
            a.wait(ds=[f"w{n}", f"x{n}_{m}"])
            A, B = opnds(n, V_XFR + (n % 2) * 12 + 4 * m)
            a.mfma(acc_blk[m], A, B, None if n == 0 else acc_blk[m])
            k = 0
            while fill and k < 2:
                tag, text = fill.pop(0)
                a.dsop(tag, text)
                k += 1
            if dma_q:
                emit_group(a, dma_q.pop(0))
        while fill:
            tag, text = fill.pop(0)
            a.dsop(tag, text)
    st.dma_q = dma_q
    stamp(a, 3)
    return st


RING = 6


def lp_read(rd, q):
    i, s = divmod(q, 4)
    xf = V_XFR + 4 * ((rd * 32 + q) % RING)
    return (f"l{rd}_{q}", f"ds_read_b128 v[{xf}:{xf+3}], v{V_XF+s} offset:{i*4096}")


def k1_later(a, cfg, st, typ):
    nm, nl, n1, acc_blk, lbuf, opnds = st.nm, st.nl, st.n1, st.acc_blk, st.lbuf, st.opnds
    dma_q = list(st.dma_q)
    AH = cfg.ahead
    if typ == "mlp":
        a.i(f"s_lshl_b32 s{S_T0}, s{S_UNIT}, 2")
        a.i(f"s_add_u32 s{S_T0}, s{S_T0}, s{S_CT}")
    elif typ == "q":
        a.i(f"s_lshl_b32 s{S_T0}, s{S_UNIT}, 3")
        a.i(f"s_add_u32 s{S_T0}, s{S_T0}, s{S_CT}")
        a.i(f"s_sub_u32 s{S_T0}, s{S_T0}, {28*8-112}")
    if typ != "kv":
        a.i(f"s_lshl_b32 s{S_ST}, s{S_T0}, 10")
        if AF_OFF:
            a.i(f"s_add_u32 s{S_ST}, s{S_ST}, {AF_OFF}")
    for q in range(3, AH):
        tag, text = lp_read(0, q)
        a.dsop(tag, text)
    epi = []
    free_blk = acc_blk[nm:]

    def push_epi(blks, m, first=False):
        if typ == "mlp":
            ops = epi_mlp(cfg, blks[0], m)
        elif typ == "q":
            ops = epi_q(cfg, blks[0], m)
        else:
            ops = epi_kv(cfg, blks[0], blks[1], first)

        def rel(a, blks=blks):
            free_blk.extend(blks)
        ops.append((0, rel))
        epi.extend(ops)

    if typ == "kv":
        push_epi([acc_blk[0], acc_blk[1]], 0, first=True)
    else:
        for m in range(nm):
            push_epi([acc_blk[m]], m)
    extra = []
    if cfg.pf_w2 and typ != "kv":
        extra = pf_w2_ops(cfg)
    nrounds = (nl + 1) // 2
    pend = []

    def drain():
        while epi:
            c, f = epi.pop(0)
            f(a)

    for rd in range(nrounds):
        last_odd = (2 * rd + 1 >= nl)
        if last_odd:
            snap = (list(a.vm), a.vm_done, list(a.ds), a.ds_done, dict(a.mfma_w), list(epi), list(free_blk), a.n)
            a.i(f"s_lshr_b32 s{S_T0}, s{S_P}, 2")
            a.i(f"s_or_b32 s{S_T0}, s{S_T0}, s{S_PR}")
            a.i(f"s_cmp_eq_u32 s{S_T0}, 0")
            a.i(f"s_cbranch_scc1 K1_{typ}_last")
            stamp(a, 4)
            drain()
            stamp(a, 5)
            stamp_flush(a, 0, 7, S_WS)
            a.i("s_endpgm")
            a.label(f"K1_{typ}_last")
            a.vm, a.vm_done, a.ds, a.ds_done, a.mfma_w = snap[0], snap[1], snap[2], snap[3], snap[4]
            epi[:] = snap[5]
            free_blk[:] = snap[6]
            a.mfma_w = {k: a.n - (snap[7] - v) for k, v in snap[4].items()}
        while not free_blk:
            c, f = epi.pop(0)
            f(a)
        blk = free_blk.pop(0)
        has_next = rd + 1 < nrounds
        for q in range(32):
            if q == 32 - AH and has_next:
                tgs = [f"L{j}" for j in (2 * rd + 2, 2 * rd + 3) if j < nl]
                for tg in tgs:
                    assert not any(op[1] == tg for g in dma_q for op in g), tg
                    assert tg in a.vm
                a.wait(vm=tgs, ds_all=True)
                a.i("s_barrier")
                for nxt in (2 * rd + 4, 2 * rd + 5):
                    if nxt < nl:
                        dma_q += dma_tile_ops(nxt, n1 + nxt, lbuf[nxt])
                for r in range(4):
                    a.i(f"v_add_u32 v{V_XF+r}, s{S_LB+rd+1}, v{V_XF+r}")
            a.wait(ds=[f"l{rd}_{q}"])
            A, B = opnds(q, V_XFR + 4 * ((rd * 32 + q) % RING))
            a.mfma(blk, A, B, None if q == 0 else blk)
            if q + AH < 32:
                tag, text = lp_read(rd, q + AH)
                a.dsop(tag, text)
            elif has_next:
                tag, text = lp_read(rd + 1, q + AH - 32)
                a.dsop(tag, text)
            budget = cfg.fill_last if last_odd else cfg.fill_per_gap
            if dma_q:
                emit_group(a, dma_q.pop(0))
                budget -= 16
            elif extra and rd == cfg.pf_round and q % 2 == 0:
                emit_group(a, extra.pop(0))
                budget -= 16
            while epi and budget > 0:
                c, f = epi[0]
                if c > budget and budget < 16:
                    break
                epi.pop(0)
                f(a)
                budget -= c
        pend.append(blk)
        if typ == "kv":
            if len(pend) == 2:
                push_epi(pend, 0)
                pend = []
        else:
            push_epi(pend, nm + rd)
            pend = []
    assert not dma_q and not extra
    stamp(a, 4)
    if typ == "kv":
        k1_g_loads(a)
    drain()
    if typ == "kv":
        k1_kv_tail(a)
        k1_g_compute(a)
    stamp(a, 5)
    stamp_flush(a, 0, 7, S_WS)
    a.i("s_endpgm")


def pf_w2_ops(cfg):
    ops = []
    if cfg.pf_mode == 0:
        ops.append([("s", None, f"s_lshl_b32 s{S_T0}, s2, 3"),
                    ("s", None, f"s_add_u32 s{S_T0}, s{S_T0}, s{S_WAVE}"),
                    ("s", None, f"s_lshl_b32 s{S_T0}, s{S_T0}, 11"),
                    ("s", None, f"v_lshlrev_b32 v{V_E+1}, 7, v{V_LANE}"),
                    ("s", None, f"s_sub_u32 s{S_T1}, s{S_T0}, {1792*1024}"),
                    ("s", None, "s_mov_b64 exec, 0xffff"),
                    ("v", "pf", f"buffer_load_dword v{V_E}, v{V_E+1}, s[{S_W2}:{S_W2+3}], s{S_T0} offen"),
                    ("v", "pf", f"buffer_load_dword v{V_E}, v{V_E+1}, s[{S_WO}:{S_WO+3}], s{S_T1} offen"),
                    ("s", None, "s_mov_b64 exec, -1")])
    else:
        halves = [None] if cfg.pf_mode == 1 else [0, 1]
        for hv in halves:
            ops.append([("s", None, f"s_lshl_b32 s{S_T0}, s{S_IDX}, 3"),
                        ("s", None, f"s_add_u32 s{S_T0}, s{S_T0}, s{S_WAVE}"),
                        ("s", None, f"s_mul_i32 s{S_T0}, s{S_T0}, {12*1024}"),
                        ("s", None, f"s_and_b32 s{S_T1}, s{S_XCD}, 1" if hv is None else f"s_mov_b32 s{S_T1}, {hv}"),
                        ("s", None, f"s_lshl_b32 s{S_T1}, s{S_T1}, 9"),
                        ("s", None, f"s_add_u32 s{S_T0}, s{S_T0}, s{S_T1}"),
                        ("s", None, f"v_lshrrev_b32 v{V_E+1}, 2, v{V_LANE}"),
                        ("s", None, f"v_lshlrev_b32 v{V_E+1}, 10, v{V_E+1}"),
                        ("s", None, f"v_and_b32 v{V_E+2}, 3, v{V_LANE}"),
                        ("s", None, f"v_lshl_add_u32 v{V_E+1}, v{V_E+2}, 7, v{V_E+1}"),
                        ("s", None, f"v_add_u32 v{V_E+1}, s{S_T0}, v{V_E+1}"),
                        ("s", None, f"v_subrev_u32 v{V_E+2}, {1792*1024}, v{V_E+1}"),
                        ("s", None, "s_mov_b32 exec_hi, 0xffff"),
                        ("v", "pf", f"buffer_load_dword v{V_E}, v{V_E+1}, s[{S_W2}:{S_W2+3}], 0 offen"),
                        ("v", "pf", f"buffer_load_dword v{V_E}, v{V_E+2}, s[{S_WO}:{S_WO+3}], 0 offen"),
                        ("s", None, "s_mov_b64 exec, -1")])
    return ops


def k1_kv_head(a):
    a.i(f"s_lshl_b32 s{S_T0}, s{S_XCD}, 2")
    a.i(f"s_add_u32 s{S_T0}, s{S_T0}, s{S_CT}")
    a.i(f"s_lshl_b32 s{S_UNIT}, s{S_T0}, 2")
    a.i(f"s_mul_i32 s{S_ST}, s{S_T0}, {KVT_HEAD}")
    a.i(f"s_add_u32 s{S_ST}, s{S_ST}, {KVT_OFF}")
    a.i(f"s_or_b32 s{S_T0}, s{S_P}, s{S_PR}")
    a.i(f"s_cmp_lg_u32 s{S_T0}, 0")
    a.i("s_cbranch_scc1 K1_kv_nozero")
    a.i(f"v_lshlrev_b32 v{V_T}, 3, v{V_LANE}")
    for k in range(6):
        a.i(f"v_mov_b32 v{V_KV+k}, 0")
    a.i(f"buffer_atomic_swap_x2 v[{V_KV}:{V_KV+1}], v{V_T}, s[{S_WS}:{S_WS+3}], s{S_ST} offen sc0")
    a.i(f"buffer_atomic_swap_x2 v[{V_KV+2}:{V_KV+3}], v{V_T}, s[{S_WS}:{S_WS+3}], s{S_ST} offen offset:512 sc0")
    a.i("s_mov_b64 exec, 0xffff")
    a.i(f"buffer_atomic_swap_x2 v[{V_KV+4}:{V_KV+5}], v{V_T}, s[{S_WS}:{S_WS+3}], s{S_ST} offen offset:1024 sc0")
    a.i("s_mov_b64 exec, -1")
    a.label("K1_kv_nozero")


def k1_kv_tail(a):
    t = V_T
    B = V_ACC
    a.need_acc(V_KV, 16)
    for r in range(8):
        a.i(f"v_permlane16_swap_b32 v{V_KV+8+r}, v{t+r}")
    a.i(f"v_mov_b32 v{B}, v{V_ZS}")
    a.nop(2)
    a.i(f"v_permlane16_swap_b32 v{B}, v{V_ZS}")
    a.nop(1)
    a.i(f"v_add_f32 v{V_ZS}, v{V_ZS}, v{B}")
    a.i(f"v_mov_b32 v{B}, v{V_ZS}")
    a.nop(2)
    a.i(f"v_permlane32_swap_b32 v{B}, v{V_ZS}")
    a.nop(1)
    a.i(f"v_add_f32 v{V_ZS}, v{V_ZS}, v{B}")
    for r in range(8):
        a.i(f"v_add_f32 v{V_KV+r}, v{V_KV+r}, v{t+r}")
    a.i(f"s_mul_i32 s{S_T1}, s{S_WAVE}, {KVT_HEAD}")
    a.i(f"s_add_u32 s{S_T1}, s{S_T1}, {BUF[3]}")
    a.i(f"v_and_b32 v{B}, 15, v{V_LANE}")
    a.i(f"v_lshrrev_b32 v{B+1}, 5, v{V_LANE}")
    a.i(f"v_lshl_add_u32 v{B+1}, v{B+1}, 4, v{B}")
    a.i(f"v_lshlrev_b32 v{B+1}, 5, v{B+1}")
    a.i(f"v_add_u32 v{B+1}, s{S_T1}, v{B+1}")
    a.i(f"v_and_b32 v{B+2}, 3, v{B}")
    a.i(f"v_lshrrev_b32 v{B+3}, 3, v{B}")
    a.i(f"v_lshl_add_u32 v{B+2}, v{B+3}, 2, v{B+2}")
    a.i(f"v_bfe_u32 v{B+3}, v{B}, 2, 1")
    a.i(f"v_lshl_add_u32 v{B+2}, v{B+3}, 3, v{B+2}")
    a.i(f"v_lshlrev_b32 v{B+2}, 2, v{B+2}")
    a.i(f"v_add_u32 v{B+2}, s{S_T1}, v{B+2}")
    a.i(f"v_lshlrev_b32 v{B+4}, 2, v{V_LANE}")
    a.i(f"v_add_u32 v{B+3}, s{S_T1}, v{B+4}")
    a.i(f"s_mov_b32 s{S_MASK}, 0xffff")
    a.i(f"s_mov_b32 s{S_MASK+1}, 0xffff")
    a.i(f"s_mov_b64 exec, s[{S_MASK}:{S_MASK+1}]")
    a.i(f"ds_write_b128 v{B+1}, v[{V_KV}:{V_KV+3}]")
    a.i(f"ds_write_b128 v{B+1}, v[{V_KV+4}:{V_KV+7}] offset:16")
    a.i("s_mov_b64 exec, 0xffff")
    a.i(f"ds_write_b32 v{B+2}, v{V_ZS} offset:1024")
    a.i("s_mov_b64 exec, -1")
    a.i("s_waitcnt lgkmcnt(0)")
    for k in range(5):
        a.i(f"ds_read_b32 v{B+8+k}, v{B+3} offset:{256*k}")
    a.label("K1_kv_poll")
    a.i("s_mov_b64 exec, 1")
    a.i(f"v_mov_b32 v{t+1}, 0")
    a.i(f"buffer_load_dword v{t}, v{t+1}, s[{S_DBG}:{S_DBG+3}], s{S_UNIT} offen sc1")
    a.i("s_waitcnt vmcnt(0)")
    a.i(f"v_readfirstlane_b32 s{S_T0}, v{t}")
    a.i("s_mov_b64 exec, -1")
    a.i(f"s_cmp_lg_u32 s{S_T0}, 0")
    a.i("s_cbranch_scc1 K1_kv_go")
    a.i("s_sleep 8")
    a.i("s_branch K1_kv_poll")
    a.label("K1_kv_go")
    a.vm_done = len(a.vm)
    a.i("s_waitcnt lgkmcnt(0)")
    for k in range(5):
        if k == 4:
            a.i("s_mov_b64 exec, 0xffff")
        a.vmem("at", f"buffer_atomic_add_f32 v{B+8+k}, v{B+4}, s[{S_WS}:{S_WS+3}], s{S_ST} offen offset:{256*k}")
    a.i("s_mov_b64 exec, -1")


def k1_g_loads(a):
    a.i(f"s_lshl_b32 s{S_T0}, s{S_P}, 8")
    a.i(f"s_lshl_b32 s{S_T1}, s{S_XCD}, 5")
    a.i(f"s_add_u32 s{S_T0}, s{S_T0}, s{S_T1}")
    a.i(f"s_lshl_b32 s{S_T1}, s{S_WAVE}, 2")
    a.i(f"s_add_u32 s{S_T2}, s{S_T0}, s{S_T1}")
    a.i(f"s_lshl_b32 s{S_T0}, s{S_T2}, 10")
    e = V_XFR
    a.nop(4)
    a.vmem("g", f"buffer_load_dwordx4 v[{e}:{e+3}], v{V_STO}, s[{S_GW}:{S_GW+3}], 0 offen")
    for k in range(4):
        a.vmem("g", f"buffer_load_dwordx4 v[{e+4+4*k}:{e+7+4*k}], v{V_STO}, s[{S_X}:{S_X+3}], s{S_T0} offen offset:{1024*k}")


def k1_g_compute(a):
    e = V_XFR
    a.wait(vm=["g"])
    t = V_ACC + 16
    R = [V_ACC + 24 + k for k in range(4)]
    gw = V_ACC + 40
    for j in range(4):
        a.i(f"v_lshlrev_b32 v{gw+2*j}, 16, v{e+j}")
        a.i(f"v_and_b32 v{gw+2*j+1}, 0xffff0000, v{e+j}")
    for row in range(4):
        xs = e + 4 + 4 * row
        acc = R[row]
        for j in range(4):
            a.i(f"v_lshlrev_b32 v{t}, 16, v{xs+j}")
            a.i(f"v_and_b32 v{t+1}, 0xffff0000, v{xs+j}")
            a.i(f"v_mul_f32 v{t}, v{t}, v{gw+2*j}")
            a.i(f"v_mul_f32 v{t+1}, v{t+1}, v{gw+2*j+1}")
            a.i(f"v_cvt_pk_bf16_f32 v{t+2}, v{t}, v{t+1}")
            a.i(f"v_lshlrev_b32 v{t}, 16, v{t+2}")
            a.i(f"v_and_b32 v{t+1}, 0xffff0000, v{t+2}")
            if j == 0:
                a.i(f"v_add_f32 v{acc}, v{t}, v{t+1}")
            else:
                a.i(f"v_add_f32 v{acc}, v{acc}, v{t}")
                a.i(f"v_add_f32 v{acc}, v{acc}, v{t+1}")
    a.nop(2)
    for mod in ("row_shr:1", "row_shr:2", "row_shr:4", "row_shr:8"):
        for r in R:
            a.i(f"v_add_f32_dpp v{r}, v{r}, v{r} {mod} row_mask:0xf bank_mask:0xf bound_ctrl:0")
    for r in R:
        a.i(f"v_add_f32_dpp v{r}, v{r}, v{r} row_bcast:15 row_mask:0xa bank_mask:0xf")
    for r in R:
        a.i(f"v_add_f32_dpp v{r}, v{r}, v{r} row_bcast:31 row_mask:0xc bank_mask:0xf")

    def rnd(regs):
        for r in regs:
            a.i(f"v_cvt_pk_bf16_f32 v{r}, v{r}, v{r}")
        for r in regs:
            a.i(f"v_and_b32 v{r}, 0xffff0000, v{r}")
    rnd(R)
    for r in R:
        a.i(f"v_mul_f32 v{r}, s{S_C2}, v{r}")
    for r in R:
        a.i(f"v_exp_f32 v{r}, v{r}")
    for r in R:
        a.i(f"v_add_f32 v{r}, 1.0, v{r}")
    for r in R:
        a.i(f"v_rcp_f32 v{r}, v{r}")
    a.nop(1)
    rnd(R)
    o = V_ACC + 32
    O = [o + 2 * k + 1 for k in range(4)]
    for k in range(4):
        a.i(f"v_sub_f32 v{O[k]}, 1.0, v{R[k]}")
    rnd(O)
    for k in range(4):
        a.i(f"v_max_f32 v{O[k]}, 0x30800000, v{O[k]}")
    for k in range(4):
        a.i(f"v_rcp_f32 v{t+k}, v{O[k]}")
    a.nop(1)
    for k in range(4):
        a.i(f"v_fma_f32 v{t+4+k}, -v{O[k]}, v{t+k}, 1.0")
    for k in range(4):
        a.i(f"v_fma_f32 v{t+k}, v{t+4+k}, v{t+k}, v{t+k}")
    for k in range(4):
        a.i(f"v_mul_f32 v{o+2*k}, v{R[k]}, v{t+k}")
    a.i(f"s_lshl_b32 s{S_T0}, s{S_T2}, 3")
    a.i(f"s_add_u32 s{S_T0}, s{S_T0}, {G_OFF}")
    a.i(f"v_mov_b32 v{t}, 0")
    a.i(f"s_mov_b32 s{S_SAVE}, 0")
    a.i(f"s_mov_b32 s{S_SAVE+1}, 0x80000000")
    a.i(f"s_mov_b64 exec, s[{S_SAVE}:{S_SAVE+1}]")
    a.vmem("gst", f"buffer_store_dwordx4 v[{o}:{o+3}], v{t}, s[{S_WS}:{S_WS+3}], s{S_T0} offen sc1")
    a.vmem("gst", f"buffer_store_dwordx4 v[{o+4}:{o+7}], v{t}, s[{S_WS}:{S_WS+3}], s{S_T0} offen offset:16 sc1")
    a.i("s_mov_b64 exec, -1")


def gen_k1(cfg):
    import copy
    a = Asm()
    a.raw(".globl k1_kernel\n.p2align 8\n.type k1_kernel,@function\nk1_kernel:")
    k1_prologue(a)
    a.i("s_cmp_eq_u32 s3, 2")
    a.i("s_cbranch_scc1 K1_kv")
    st = k1_first_pass(a, cfg, False)
    snap = (list(a.vm), a.vm_done, list(a.ds), a.ds_done, dict(a.mfma_w), a.n)
    a.i("s_cmp_eq_u32 s3, 1")
    a.i("s_cbranch_scc1 K1_q")
    k1_later(a, cfg, st, "mlp")
    a.raw(".p2align 6")
    a.label("K1_q")
    a.vm, a.vm_done, a.ds, a.ds_done = list(snap[0]), snap[1], list(snap[2]), snap[3]
    a.mfma_w = {k: a.n - (snap[5] - v) for k, v in snap[4].items()}
    k1_later(a, cfg, st, "q")
    a.raw(".p2align 6")
    a.label("K1_kv")
    k1_kv_head(a)
    st = k1_first_pass(a, cfg, True)
    k1_later(a, cfg, st, "kv")
    a.label("K1_done")
    a.i("s_endpgm")
    return a.text()


class K2Cfg:
    depth = 6
    wdepth = 8
    mode = 1
    nw = 4
    sep = 1
    out_aux = 'sc0 sc1'


def gen_k2(cfg):
    a = Asm()
    D, DW, NW = cfg.depth, cfg.wdepth, cfg.nw
    NH, NA = 112 // NW, 32 // NW
    C_WS, C_W2, C_WO, C_OUT = 40, 44, 48, 52
    C_W, C_RB, C_CB, C_M0, T0, T1, T2, T3 = 4, 5, 6, 7, 8, 9, 10, 11
    S_HB, S_WB, S_QB, S_OB, S_KVB, C_EPS = 12, 13, 14, 15, 56, 57
    V_L = 1
    V_A0, V_A1, V_WD, V_TR0, V_TR1, V_KVA = 2, 3, 4, 5, 6, 7
    VT = 8
    V_G = 16
    V_RC = 20
    V_KVF = 24
    V_WF = 32
    V_OF = 48
    P = 56
    ACC = 64
    A_ND = 64
    assert 8 * D <= 64
    a.raw(".globl k2_kernel\n.p2align 8\n.type k2_kernel,@function\nk2_kernel:")
    a.i("s_cmp_ge_u32 s2, 256")
    a.i("s_cbranch_scc1 K2_done")
    if DIAG:
        a.i("s_memrealtime s[38:39]")
    a.i("s_load_dwordx2 s[16:17], s[0:1], 16")
    a.i("s_load_dwordx2 s[18:19], s[0:1], 48")
    a.i("s_load_dwordx2 s[20:21], s[0:1], 64")
    a.i("s_load_dwordx2 s[22:23], s[0:1], 80")
    a.i("s_getpc_b64 s[24:25]")
    a.label("K2_pc")
    a.i(f"s_and_b32 s{T0}, s2, 7")
    a.i(f"s_lshr_b32 s{T1}, s2, 3")
    a.i(f"v_and_b32 v{V_L}, 63, v0")
    a.i(f"v_lshrrev_b32 v{VT}, 6, v0")
    a.i(f"s_lshl_b32 s{T2}, s{T1}, 9")
    a.i(f"v_readfirstlane_b32 s{C_W}, v{VT}")
    a.i(f"v_lshlrev_b32 v{VT+1}, 7, v0")
    a.i(f"v_add_u32 v{VT+1}, s{T2}, v{VT+1}")
    a.i(f"v_min_u32 v{VT+1}, CODE_END-K2_pc-4, v{VT+1}")
    a.i("v_cmp_gt_u32 vcc, 4, v0")
    a.i("s_and_saveexec_b64 s[26:27], vcc")
    a.i("s_cbranch_execz K2_nopf")
    a.i(f"global_load_dword v{P+7}, v{VT+1}, s[24:25]")
    a.label("K2_nopf")
    a.i("s_mov_b64 exec, s[26:27]")
    a.vm.append("pf")
    if cfg.mode == 0:
        a.i(f"s_lshr_b32 s{C_RB}, s{T1}, 3")
        a.i(f"s_lshl_b32 s{T2}, s{T0}, 2")
        a.i(f"s_add_u32 s{C_RB}, s{C_RB}, s{T2}")
        a.i(f"s_and_b32 s{C_CB}, s{T1}, 7")
    else:
        a.i(f"s_lshr_b32 s{C_RB}, s{T0}, 1")
        a.i(f"s_lshl_b32 s{C_RB}, s{C_RB}, 3")
        a.i(f"s_lshr_b32 s{T2}, s{T1}, 2")
        a.i(f"s_add_u32 s{C_RB}, s{C_RB}, s{T2}")
        a.i(f"s_and_b32 s{C_CB}, s{T0}, 1")
        a.i(f"s_lshl_b32 s{C_CB}, s{C_CB}, 2")
        a.i(f"s_and_b32 s{T2}, s{T1}, 3")
        a.i(f"s_add_u32 s{C_CB}, s{C_CB}, s{T2}")
    t = VT
    a.i(f"s_mul_i32 s{T0}, s{C_RB}, {2*AF_TT}")
    a.i(f"v_lshlrev_b32 v{V_A0}, 4, v{V_L}")
    a.i(f"v_add_u32 v{V_A0}, s{T0}, v{V_A0}")
    a.i(f"v_add_u32 v{V_A1}, {AF_TT}, v{V_A0}")
    a.i(f"s_mul_i32 s{S_HB}, s{C_W}, {NH*1024}")
    a.i(f"s_mul_i32 s{S_WB}, s{C_W}, {NH*16384}")
    a.i(f"s_mul_i32 s{S_QB}, s{C_W}, {NA*1024}")
    a.i(f"s_add_u32 s{S_QB}, s{S_QB}, {112*1024}")
    a.i(f"s_mul_i32 s{S_OB}, s{C_W}, {NA*16384}")
    a.i(f"s_mul_i32 s{S_KVB}, s{C_W}, {NA*KVT_HEAD}")
    a.i(f"s_add_u32 s{S_KVB}, s{S_KVB}, {KVT_OFF}")
    a.i(f"s_mul_i32 s{C_M0}, s{C_W}, {DW*2048}")
    SEP = cfg.sep and NW * (DW * 2048 + 64 * 272) <= 163840
    if SEP:
        a.i(f"s_add_u32 s{C_M0}, s{C_M0}, {NW*64*272}")
    a.i(f"s_mov_b32 s{C_EPS}, {EPS:#x}")
    a.i(f"v_lshrrev_b32 v{t}, 3, v{V_L}")
    a.i(f"v_and_b32 v{t+1}, 7, v{V_L}")
    a.i(f"v_bfe_u32 v{t+2}, v{V_L}, 4, 1")
    a.i(f"v_lshlrev_b32 v{t+2}, 2, v{t+2}")
    a.i(f"v_xor_b32 v{t+1}, v{t+1}, v{t+2}")
    a.i(f"v_lshlrev_b32 v{t}, 10, v{t}")
    a.i(f"v_lshl_add_u32 v{V_WD}, v{t+1}, 4, v{t}")
    a.i(f"s_lshl_b32 s{T0}, s{C_CB}, 7")
    a.i(f"v_add_u32 v{V_WD}, s{T0}, v{V_WD}")
    a.i("s_waitcnt lgkmcnt(0)")
    srd(a, C_WS, 22, WS_USED)
    srd(a, C_W2, 18, 1792 * 1024)
    srd(a, C_WO, 16, 512 * 1024)

    seq = []
    hq, aq = list(range(NH)), list(range(NA))
    NS = NH + NA
    gap = max((NS - 3) // NA, 2)
    for n in range(NS):
        if aq and n % gap == gap - 1 and n < NS - 2:
            seq.append(("a", aq.pop(0)))
        elif hq:
            seq.append(("h", hq.pop(0)))
        else:
            seq.append(("a", aq.pop(0)))
    assert not hq and not aq

    def issue_w(n):
        kind, k = seq[n]
        d = n % DW
        wb, w = (S_WB, C_W2) if kind == "h" else (S_OB, C_WO)
        for b in range(2):
            a.i(f"s_add_u32 m0, s{C_M0}, {d*2048 + b*1024}")
            a.i(f"s_add_u32 s{T2}, s{wb}, {k*16384 + b*8192}")
            a.vmem(f"s{n}", f"buffer_load_dwordx4 v{V_WD}, s[{w}:{w+3}], s{T2} offen lds")

    def issue(n):
        kind, k = seq[n]
        d = n % D
        ab = S_HB if kind == "h" else S_QB
        a.i(f"s_add_u32 s{T1}, s{ab}, {k*1024}")
        a.vmem(f"s{n}", f"buffer_load_dwordx4 a[{8*d}:{8*d+3}], v{V_A0}, s[{C_WS}:{C_WS+3}], s{T1} offen")
        a.vmem(f"s{n}", f"buffer_load_dwordx4 a[{8*d+4}:{8*d+7}], v{V_A1}, s[{C_WS}:{C_WS+3}], s{T1} offen")

    def kv_issue(k):
        a.i(f"s_add_u32 s{T3}, s{S_KVB}, {k*KVT_HEAD}")
        a.vmem(f"kv{k}", f"buffer_load_dwordx4 v[{VT}:{VT+3}], v{V_KVA}, s[{C_WS}:{C_WS+3}], s{T3} offen")
        a.vmem(f"kv{k}", f"buffer_load_dwordx4 v[{VT+4}:{VT+7}], v{V_KVA}, s[{C_WS}:{C_WS+3}], s{T3} offen offset:16")

    def tr_reads(n):
        d = n % DW
        wf = V_WF + 8 * (n % 2)
        for ct, va in enumerate((V_TR0, V_TR1)):
            for rd in range(2):
                r = wf + 4 * ct + 2 * rd
                a.dsop(f"t{n}", f"ds_read_b64_tr_b16 v[{r}:{r+1}], v{va} offset:{d*2048 + rd*1024}")

    for n in range(max(D, DW)):
        if n < DW:
            issue_w(n)
        if n < D:
            issue(n)
    srd(a, C_OUT, 20, 2048 * 1024)
    u = P
    a.i(f"v_lshrrev_b32 v{u}, 5, v{V_L}")
    a.i(f"v_bfe_u32 v{u+1}, v{V_L}, 2, 2")
    a.i(f"v_lshl_add_u32 v{u}, v{u}, 2, v{u+1}")
    a.i(f"v_bfe_u32 v{u+1}, v{V_L}, 4, 1")
    a.i(f"v_bfe_u32 v{u+2}, v{V_L}, 1, 1")
    a.i(f"v_lshl_add_u32 v{u+1}, v{u+1}, 1, v{u+2}")
    a.i(f"v_bfe_u32 v{u+2}, v{V_L}, 3, 1")
    a.i(f"v_lshlrev_b32 v{u+2}, 2, v{u+2}")
    a.i(f"v_xor_b32 v{u+1}, v{u+1}, v{u+2}")
    a.i(f"v_lshlrev_b32 v{u}, 7, v{u}")
    a.i(f"v_lshl_add_u32 v{u}, v{u+1}, 4, v{u}")
    a.i(f"v_and_b32 v{u+1}, 1, v{V_L}")
    a.i(f"v_lshl_add_u32 v{u}, v{u+1}, 3, v{u}")
    a.i(f"v_add_u32 v{V_TR0}, s{C_M0}, v{u}")
    a.i(f"v_xor_b32 v{u}, 64, v{u}")
    a.i(f"v_add_u32 v{V_TR1}, s{C_M0}, v{u}")
    a.i(f"v_and_b32 v{u}, 31, v{V_L}")
    a.i(f"v_lshrrev_b32 v{u+1}, 5, v{V_L}")
    a.i(f"v_lshl_add_u32 v{u+2}, v{u+1}, 4, v{u}")
    a.i(f"v_add_u32 v{u+1}, 32, v{u+1}")
    a.i(f"v_cmp_gt_u32 vcc, 16, v{u}")
    a.i(f"v_lshlrev_b32 v{V_G+2}, 3, v{u}")
    a.i(f"s_lshl_b32 s{T0}, s{C_RB}, 9")
    a.i(f"s_add_u32 s{T0}, s{T0}, {G_OFF}")
    a.i(f"v_cndmask_b32 v{u+2}, v{u+1}, v{u+2}, vcc")
    a.i(f"v_lshlrev_b32 v{V_KVA}, 5, v{u+2}")
    a.vmem("kv0", f"buffer_load_dword v{V_G}, v{V_G+2}, s[{C_WS}:{C_WS+3}], s{T0} offen")
    a.vmem("kv0", f"buffer_load_dword v{V_G+1}, v{V_G+2}, s[{C_WS}:{C_WS+3}], s{T0} offen offset:256")
    kv_issue(0)
    stamp(a, 1, 60)
    a.wait(vm=["s0"])
    stamp(a, 2, 60)
    tr_reads(0)
    nd_w = {}
    for n in range(NS):
        kind, k = seq[n]
        d = n % D
        if kind == "a":
            a.wait(vm=[f"kv{k}"])
            for j in range(4):
                a.i(f"v_cvt_pk_bf16_f32 v{V_KVF+j}, v{VT+2*j}, v{VT+2*j+1}")
            a.nop(2)
            for tt in range(2):
                b = A_ND + 16 * tt
                a.i(f"v_mfma_f32_32x32x16_bf16 a[{b}:{b+15}], v[{V_KVF}:{V_KVF+3}], a[{8*d+4*tt}:{8*d+4*tt+3}], 0")
                nd_w[tt] = a.n
            if k + 1 < NA:
                kv_issue(k + 1)
        if n + 1 < NS:
            a.wait(vm=[f"s{n+1}"])
            tr_reads(n + 1)
        if kind == "a":
            for tt in range(2):
                g_ = a.n - nd_w[tt]
                if g_ < 13:
                    a.nop(13 - g_)
                a.i(f"v_accvgpr_read_b32 v{V_RC+tt}, a{A_ND+16*tt+8}")
            for tt in range(2):
                a.i(f"v_add_f32 v{V_RC+tt}, s{C_EPS}, v{V_RC+tt}")
            for tt in range(2):
                a.i(f"v_rcp_f32 v{V_RC+tt}, v{V_RC+tt}")
            a.nop(1)
            for tt in range(2):
                a.i(f"v_mul_f32 v{V_RC+tt}, v{V_RC+tt}, v{V_G+tt}")
            for tt in range(2):
                for j in range(8):
                    a.i(f"v_accvgpr_read_b32 v{P+j}, a{A_ND+16*tt+j}")
                for j in range(8):
                    a.i(f"v_mul_f32 v{P+j}, v{P+j}, v{V_RC+tt}")
                for j in range(4):
                    a.i(f"v_cvt_pk_bf16_f32 v{V_OF+4*tt+j}, v{P+2*j}, v{P+2*j+1}")
            a.nop(2)
        a.wait(ds=[f"t{n}"])
        wf = V_WF + 8 * (n % 2)
        for ct in range(2):
            for tt in range(2):
                blk = ACC + 16 * (ct * 2 + tt)
                B = f"v[{V_OF+4*tt}:{V_OF+4*tt+3}]" if kind == "a" else f"a[{8*d+4*tt}:{8*d+4*tt+3}]"
                a.mfma(blk, f"v[{wf+4*ct}:{wf+4*ct+3}]", B, blk if n else None)
        if n + DW < NS:
            issue_w(n + DW)
        if n + D < NS:
            issue(n + D)
    stamp(a, 3, 60)
    PITCH = 272
    WSZ = 64 * PITCH
    TPW = 64 // NW
    a.i(f"v_lshrrev_b32 v{t+1}, 3, v{V_L}")
    a.i(f"s_mul_i32 s{T0}, s{C_W}, {TPW}")
    a.i(f"v_add_u32 v{t+1}, s{T0}, v{t+1}")
    a.i(f"v_lshlrev_b32 v{t+5}, 3, v{t+1}")
    a.i(f"s_lshl_b32 s{T0}, s{C_RB}, 9")
    a.i(f"s_add_u32 s{T0}, s{T0}, {G_OFF + 4}")
    for hf in range(TPW // 8):
        a.i(f"buffer_load_dword v{V_RC+hf}, v{t+5}, s[{C_WS}:{C_WS+3}], s{T0} offen offset:{64*hf}")
    a.i(f"v_and_b32 v{t}, 31, v{V_L}")
    a.i(f"v_lshrrev_b32 v{t+2}, 5, v{V_L}")
    a.i(f"v_mul_u32_u24 v{t}, {PITCH}, v{t}")
    a.i(f"v_lshl_add_u32 v{t}, v{t+2}, 4, v{t}")
    a.i(f"s_mul_i32 s{T0}, s{C_W}, {WSZ}")
    a.i(f"v_add_u32 v{t}, s{T0}, v{t}")
    a.i(f"v_and_b32 v{t+2}, 7, v{V_L}")
    a.i(f"v_mul_u32_u24 v{t+3}, {PITCH}, v{t+1}")
    a.i(f"v_lshl_add_u32 v{t+3}, v{t+2}, 5, v{t+3}")
    a.i(f"v_add_u32 v{t+6}, {3*WSZ}, v{t+3}")
    a.i(f"v_add_u32 v{t+7}, {6*WSZ}, v{t+3}")
    a.i(f"v_lshlrev_b32 v{t+4}, 10, v{t+1}")
    a.i(f"v_lshl_add_u32 v{t+4}, v{t+2}, 4, v{t+4}")
    a.i(f"s_lshl_b32 s{T0}, s{C_RB}, 16")
    a.i(f"s_lshl_b32 s{T1}, s{C_CB}, 7")
    a.i(f"s_add_u32 s{T0}, s{T0}, s{T1}")
    if not SEP:
        a.i("s_waitcnt lgkmcnt(0)")
        a.i("s_barrier")
    for blk in range(4):
        a.need_acc(ACC + 16 * blk, 16)
    for blk in range(4):
        ct, tt = blk >> 1, blk & 1
        for q in range(4):
            r = ACC + 16 * blk + 4 * q
            off = tt * 32 * PITCH + (ct * 32 + 8 * q) * 4
            a.i(f"ds_write_b128 v{t}, v[{r}:{r+3}] offset:{off}")
    a.i("s_waitcnt lgkmcnt(0)")
    a.i("s_barrier")
    R = ACC
    for hf in range(TPW // 8):
        for w in range(NW):
            for p in range(2):
                r = R + hf * 32 + w * 8 + p * 4
                va = (t + 3, t + 6, t + 7)[w // 3]
                a.i(f"ds_read_b128 v[{r}:{r+3}], v{va} offset:{(w % 3) * WSZ + hf * 8 * PITCH + p * 16}")
    a.i("s_waitcnt lgkmcnt(0) vmcnt(0)")
    for hf in range(TPW // 8):
        b = R + hf * 32
        step = 8
        while step < NW * 8:
            for w in range(0, NW * 8, 2 * step):
                for j in range(8):
                    a.i(f"v_add_f32 v{b+w+j}, v{b+w+j}, v{b+w+step+j}")
            step *= 2
        for j in range(8):
            a.i(f"v_mul_f32 v{b+j}, v{b+j}, v{V_RC+hf}")
        for j in range(4):
            a.i(f"v_cvt_pk_bf16_f32 v{b+8+j}, v{b+2*j}, v{b+2*j+1}")
        if hf:
            a.i(f"s_add_u32 s{T0}, s{T0}, 8192")
        a.i(f"buffer_store_dwordx4 v[{b+8}:{b+11}], v{t+4}, s[{C_OUT}:{C_OUT+3}], s{T0} offen {cfg.out_aux}")
    stamp(a, 4, 60)
    stamp_flush(a, 1, 6, C_WS, 60)
    if DIAG:
        a.i("s_mov_b64 exec, -1")
        a.i("s_cmp_lg_u32 s2, 8")
        a.i("s_cbranch_scc1 K2_done")
        a.i(f"s_cmp_lg_u32 s{C_W}, 0")
        a.i("s_cbranch_scc1 K2_done")
        a.i("s_load_dwordx2 s[16:17], s[0:1], 72")
        a.i("s_waitcnt vmcnt(0) lgkmcnt(0)")
        srd(a, 44, 16, 256)
        a.i(f"s_mov_b32 s{C_WS+2}, {STAMP_OFF + 65536}")
        a.i(f"v_and_b32 v2, 7, v{V_L}")
        a.i("v_lshlrev_b32 v2, 3, v2")
        a.i(f"v_lshrrev_b32 v3, 3, v{V_L}")
        a.i("v_lshl_add_u32 v2, v3, 14, v2")
        a.i(f"s_mov_b32 s3, {STAMP_OFF + 8*64}")
        a.i("s_mov_b64 exec, 0xffff")
        a.i(f"buffer_load_dword v4, v2, s[{C_WS}:{C_WS+3}], s3 offen sc1")
        a.i(f"v_lshlrev_b32 v5, 2, v{V_L}")
        a.i("s_waitcnt vmcnt(0)")
        a.i("buffer_store_dword v4, v5, s[44:47], 0 offen")
    a.label("K2_done")
    a.i("s_endpgm")
    lds = NW * (DW * 2048 + WSZ) if SEP else max(NW * DW * 2048, NW * WSZ)
    return a.text(), lds, NW


def kd(name, nv, accum, nsgpr=102):
    return f""".p2align 6
.amdhsa_kernel {name}
  .amdhsa_next_free_vgpr {nv}
  .amdhsa_next_free_sgpr {nsgpr}
  .amdhsa_accum_offset {accum}
  .amdhsa_group_segment_fixed_size 0
  .amdhsa_kernarg_size 88
  .amdhsa_user_sgpr_count 2
  .amdhsa_user_sgpr_kernarg_segment_ptr 1
  .amdhsa_system_sgpr_workgroup_id_x 1
  .amdhsa_float_denorm_mode_32 3
.end_amdhsa_kernel"""


def build(c1=None, c2=None):
    c1 = c1 or K1Cfg()
    c2 = c2 or K2Cfg()
    k1 = gen_k1(c1)
    k2, lds2, nw2 = gen_k2(c2)
    hdr = f"""; gated_mix: linear attention block + SwiGLU block, gated mix.  Generated by gen/gen8.py
; @launch kernel=k1_kernel grid=(256,1,1) block=(512,1,1) lds={K1_LDS}
; @launch kernel=k2_kernel grid=(256,1,1) block=({nw2*64},1,1) lds={lds2}
.amdgcn_target "amdgcn-amd-amdhsa--gfx950"
.text
"""
    tail = """
.p2align 8
CODE_END:
    s_endpgm
.section .rodata,"a"
"""
    return hdr + k1 + "\n" + k2 + tail + kd("k1_kernel", 256, 128) + "\n" + kd("k2_kernel", 224, 128) + "\n"


if __name__ == "__main__":
    if "--diag" in sys.argv:
        DIAG = True
        sys.argv.remove("--diag")
    c1, c2 = K1Cfg(), K2Cfg()
    for arg in list(sys.argv[1:]):
        if "=" in arg:
            k, v = arg.split("=")
            c = c2 if k.startswith("k2_") else c1
            k = k[3:] if k.startswith("k2_") else k
            setattr(c, k, v if k.endswith("_aux") else int(v))
            sys.argv.remove(arg)
    KROT, NM, SHIFT, TOUCHX = c1.krot, c1.nm, c1.shift, c1.touch_x
    out = sys.argv[1] if len(sys.argv) > 1 else f"cdna_kernels/{NAME}.s"
    open(out, "w").write(build(c1, c2))
    print("wrote", out)
```
